```python
import torch

def _softmax(x, axis=-1):
    return torch.softmax(x, dim=axis)
def _gelu(x):
    return torch.nn.functional.gelu(x, approximate="tanh")
def _silu(x):
    return torch.nn.functional.silu(x)
def _sigmoid(x):
    return torch.sigmoid(x)
def _layernorm(x, axis=-1, eps=1e-5):
    m = x.mean(dim=axis, keepdim=True)
    v = x.var(dim=axis, keepdim=True, unbiased=False)
    return (x - m) / torch.sqrt(v + eps)
def _scatter_add(tgt, idx, src, axis=0):
    return tgt.clone().index_add_(axis, idx, src)
def _segment_sum(src, seg, n):
    out = torch.zeros((n,) + src.shape[1:], dtype=src.dtype)
    return out.index_add_(0, seg, src)
def _pad(x, pw):
    flat = tuple(v for pair in reversed(pw) for v in pair)
    return torch.nn.functional.pad(x, flat)

kernel_name = 'interleave_layers__sliding_block_cached__mixer_token_mlp__decode'

def setup_inputs():

    _w = (lambda a: (lambda t: t.to(torch.bfloat16) if t.is_floating_point() else t)(torch.as_tensor(a)))
    def _A_setup():
        B, Sq, D = 1, 1, 512
        Hq, Hkv, Sk, Dh = 32, 8, 65536, 128
        assert Hq % Hkv == 0, (Hq, Hkv)
        return {
            "x": _w((lambda *s: torch.randn(*s, dtype=torch.bfloat16) * 0.05)(B, Sq, D)),
            "k_cache": _w((lambda *s: torch.randn(*s, dtype=torch.bfloat16) * 0.8)(B, Hkv, Sk, Dh)),
            "v_cache": _w((lambda *s: torch.randn(*s, dtype=torch.bfloat16) * 1.6)(B, Hkv, Sk, Dh)),
            "wq": _w((lambda *s: torch.randn(*s, dtype=torch.bfloat16) * 0.8)(D, Hq * Dh) * (D ** -0.5)),
            "wo": _w((lambda *s: torch.randn(*s, dtype=torch.bfloat16) * 1.6)(Hq * Dh, D) * ((Hq * Dh) ** -0.5)),
        }
    _A_in = _A_setup()

    def _B_setup():
        B, S, D, F = 1, 1, 512, 1792
        return {
            "x": _w((lambda *s: torch.randn(*s, dtype=torch.bfloat16) * 0.05)(B, S, D)),
            "w1": _w((lambda *s: torch.randn(*s, dtype=torch.bfloat16) * 0.8)(S, F) * (S ** -0.5)),
            "b1": _w((lambda *s: torch.randn(*s, dtype=torch.bfloat16) * 0.2)(F) * 0.02),
            "w2": _w((lambda *s: torch.randn(*s, dtype=torch.bfloat16) * 0.2)(F, S) * (F ** -0.5)),
            "b2": _w((lambda *s: torch.randn(*s, dtype=torch.bfloat16) * 0.2)(S) * 0.02),
        }
    _B_in = _B_setup()

    return {
        "A_x": _A_in["x"],
        "A_k_cache": _A_in["k_cache"],
        "A_v_cache": _A_in["v_cache"],
        "A_wq": _A_in["wq"],
        "A_wo": _A_in["wo"],
        "B_x": _B_in["x"],
        "B_w1": _B_in["w1"],
        "B_b1": _B_in["b1"],
        "B_w2": _B_in["w2"],
        "B_b2": _B_in["b2"],
    }

def reference(A_x, A_k_cache, A_v_cache, A_wq, A_wo, B_x, B_w1, B_b1, B_w2, B_b2):
    def _A_ref(x, k_cache, v_cache, wq, wo):
        B, Sq, D = x.shape
        Hq, Dh = 32, 128
        Hkv, Sk = k_cache.shape[1], k_cache.shape[2]
        W = min(4096, max(256, Sk // 4))
        rep = Hq // Hkv
        q = (lambda x, *d: x.permute(*d))((x @ wq).reshape(B, Sq, Hq, Dh), 0, 2, 1, 3)
        k = (lambda x, n, axis: torch.repeat_interleave(x, n, dim=axis))(k_cache[:, :, Sk - W:, :], rep, axis=1)
        v = (lambda x, n, axis: torch.repeat_interleave(x, n, dim=axis))(v_cache[:, :, Sk - W:, :], rep, axis=1)
        scores = torch.einsum("bhqd,bhkd->bhqk", q, k) * (Dh ** -0.5)
        p = _softmax(scores, axis=-1)
        o = torch.einsum("bhqk,bhkd->bhqd", p, v)
        return (lambda x, *d: x.permute(*d))(o, 0, 2, 1, 3).reshape(B, Sq, Hq * Dh) @ wo

    def _B_ref(x, w1, b1, w2, b2):
        B, S, D = x.shape
        h = _layernorm(x, axis=-1)
        u = torch.einsum("bsd,sf->bdf", h, w1) + b1
        u = _gelu(u)
        y = torch.einsum("bdf,fs->bds", u, w2) + b2
        return (lambda x, *d: x.permute(*d))(y, 0, 2, 1)

    x = A_x
    x = x + _A_ref(_layernorm(x, axis=-1), A_k_cache, A_v_cache, A_wq, A_wo)
    x = x + _B_ref(_layernorm(x, axis=-1), B_w1, B_b1, B_w2, B_b2)
    x = x + _A_ref(_layernorm(x, axis=-1), A_k_cache, A_v_cache, A_wq, A_wo)
    x = x + _B_ref(_layernorm(x, axis=-1), B_w1, B_b1, B_w2, B_b2)
    return x
```

```python
import sys, struct

NAME = "interleave_layers__sliding_block_cached__mixer_token_mlp__decode"
TS = int(sys.argv[2]) if len(sys.argv) > 2 else 0
OUT = sys.argv[1] if len(sys.argv) > 1 else "cdna_kernels/%s.s" % NAME

L = []
def e(s): L.append("  " + s)
def lab(s): L.append(s + ":")
def nop(n):
    while n > 0:
        k = min(n, 16)
        e("s_nop %d" % (k - 1))
        n -= k

def f2u(x): return struct.unpack("<I", struct.pack("<f", x))[0]
def fh(x): return "0x%08x" % f2u(x)

LSTRIDE = 0x800000
QS_OFF = 0x1000
ST_OFF = 0x10000
PO_OFF = 0x100000
OP_OFF = 0x200000
X1_OFF = 0x300000
X2_OFF = 0x300800
LV = 0
LWO = 32768
LW1 = 49152
LB1 = LW1 + 3584
LW2 = LB1 + 3584
LSC = 60416
LSS = LSC + 8192
LOC = LSS + 256
LMC = LOC + 8192
LDS_TOTAL = LMC + 256

W0 = 65536 - 4096
LOG2E = 1.4426950408889634
SCALE = 128.0 ** -0.5

sWG = 2
sWAVE = 4
sG = 5
sC = 6
sTAG = 7
sT0, sT1, sT2, sT3 = 8, 9, 10, 11
sCNT = 12
sEX = 14
P_X, P_K, P_V, P_WQ, P_WO, P_BX, P_W1, P_B1, P_W2, P_B2, P_OUT, P_DBG, P_WS = [16 + 2 * i for i in range(13)]
sWL = 42
sC1, sC2, sC3, sC4, sC5, sC6 = 44, 45, 46, 47, 48, 49
sTSB = 50
def sp(i): return "s[%d:%d]" % (i, i + 1)

vTID = 0
vL = 1
vWQ = 16
vK = 32
vVF = 64
vWO = 96
vW1 = 112
vB1 = 119
vW2 = 126
vB2 = 133
vXR = 134
aQS = 136
aPOW = 137
aSTW = 138
aSTR = 139
aPOR = 140
aOPW = 141
aOPR = 142
aX1R = 143
aOWN = 144
aQW = 145
aVT = 146
aSCW = 147
aSCR = 148
aL16 = 149
vN4 = 150
T = 152
def v(i): return "v%d" % i
def vr(i, n): return "v[%d:%d]" % (i, i + n - 1)

ts_count = [0]
def ts():
    if not TS: return
    i = ts_count[0]
    ts_count[0] += 1
    e("s_memtime s[98:99]")
    e("s_waitcnt lgkmcnt(0)")
    e("s_mov_b32 s%d, s98" % (sTSB + i))

DPPM = "row_mask:0xf bank_mask:0xf"

def allreduce(op, regs, tmps, rors=(1, 2, 4, 8)):
    ins = "v_add_f32" if op == "add" else "v_max_f32"
    n = len(regs)
    pad = max(0, 2 - (n - 1))
    nop(2)
    for r in rors:
        for x in regs:
            e("%s_dpp %s, %s, %s row_ror:%d %s" % (ins, v(x), v(x), v(x), r, DPPM))
        nop(pad)
    for sw in ("v_permlane16_swap_b32", "v_permlane32_swap_b32"):
        for x, t in zip(regs, tmps):
            e("v_mov_b32 %s, %s" % (v(t), v(x)))
        nop(max(0, 2 - (n - 1)))
        for x, t in zip(regs, tmps):
            e("%s %s, %s" % (sw, v(x), v(t)))
        nop(1)
        for x, t in zip(regs, tmps):
            e("%s %s, %s, %s" % (ins, v(x), v(x), v(t)))
        nop(max(0, 2 - (n - 1)))

def round_bf16_pair(a, b, tmp):
    e("v_cvt_pk_bf16_f32 %s, %s, %s" % (v(tmp), v(a), v(b)))
    e("v_lshlrev_b32 %s, 16, %s" % (v(a), v(tmp)))
    e("v_and_b32 %s, 0xffff0000, %s" % (v(b), v(tmp)))

def layernorm(X, extra, tb):
    s, t, m, r, u0, u1 = tb, tb + 1, tb + 2, tb + 3, tb + 4, tb + 5
    e("v_add_f32 %s, %s, %s" % (v(s), v(X), v(X + 1)))
    e("v_add_f32 %s, %s, %s" % (v(t), v(X + 2), v(X + 3)))
    e("v_add_f32 %s, %s, %s" % (v(u0), v(X + 4), v(X + 5)))
    e("v_add_f32 %s, %s, %s" % (v(u1), v(X + 6), v(X + 7)))
    e("v_add_f32 %s, %s, %s" % (v(s), v(s), v(t)))
    e("v_add_f32 %s, %s, %s" % (v(u0), v(u0), v(u1)))
    e("v_add_f32 %s, %s, %s" % (v(s), v(s), v(u0)))
    allreduce("add", [s], [t])
    e("v_mul_f32 %s, %s, %s" % (v(m), fh(1.0 / 512), v(s)))
    e("v_sub_f32 %s, %s, %s" % (v(u0), v(X), v(m)))
    e("v_mul_f32 %s, %s, %s" % (v(s), v(u0), v(u0)))
    for i in range(1, 8):
        e("v_sub_f32 %s, %s, %s" % (v(u0), v(X + i), v(m)))
        e("v_fmac_f32 %s, %s, %s" % (v(s), v(u0), v(u0)))
    allreduce("add", [s], [t])
    e("v_mul_f32 %s, %s, %s" % (v(s), fh(1.0 / 512), v(s)))
    round_bf16_pair(m, s, t)
    e("v_add_f32 %s, %s, %s" % (v(s), fh(1e-5), v(s)))
    e("v_cvt_pk_bf16_f32 %s, %s, %s" % (v(t), v(s), v(s)))
    e("v_lshlrev_b32 %s, 16, %s" % (v(s), v(t)))
    e("v_sqrt_f32 %s, %s" % (v(s), v(s)))
    nop(1)
    e("v_cvt_pk_bf16_f32 %s, %s, %s" % (v(t), v(s), v(s)))
    e("v_lshlrev_b32 %s, 16, %s" % (v(s), v(t)))
    e("v_rcp_f32 %s, %s" % (v(r), v(s)))
    regs = [X + i for i in range(8)] + list(extra)
    for i in range(0, len(regs), 2):
        a, b = regs[i], regs[i + 1]
        e("v_sub_f32 %s, %s, %s" % (v(a), v(a), v(m)))
        e("v_sub_f32 %s, %s, %s" % (v(b), v(b), v(m)))
        round_bf16_pair(a, b, t)
        e("v_mul_f32 %s, %s, %s" % (v(u0), v(a), v(r)))
        e("v_mul_f32 %s, %s, %s" % (v(u1), v(b), v(r)))
        e("v_fma_f32 %s, -%s, %s, %s" % (v(a), v(u0), v(s), v(a)))
        e("v_fma_f32 %s, -%s, %s, %s" % (v(b), v(u1), v(s), v(b)))
        e("v_fma_f32 %s, %s, %s, %s" % (v(a), v(a), v(r), v(u0)))
        e("v_fma_f32 %s, %s, %s, %s" % (v(b), v(b), v(r), v(u1)))
        round_bf16_pair(a, b, t)

poll_id = [0]
def poll(loads, tags, tmin, tmax):
    pid = poll_id[0]
    poll_id[0] += 1
    e("s_mov_b32 s%d, 0x100000" % sCNT)
    lab("POLL%d" % pid)
    for ld in loads:
        e(ld)
    e("s_waitcnt vmcnt(0)")
    tg = list(tags)
    if len(tg) == 1:
        e("v_cmp_ne_u32 vcc, s%d, %s" % (sTAG, v(tg[0])))
    else:
        first = tg[:3] if len(tg) >= 3 else tg[:2]
        rest = tg[len(first):]
        if len(first) == 3:
            e("v_min3_u32 %s, %s, %s, %s" % (v(tmin), v(first[0]), v(first[1]), v(first[2])))
            e("v_max3_u32 %s, %s, %s, %s" % (v(tmax), v(first[0]), v(first[1]), v(first[2])))
        else:
            e("v_min_u32 %s, %s, %s" % (v(tmin), v(first[0]), v(first[1])))
            e("v_max_u32 %s, %s, %s" % (v(tmax), v(first[0]), v(first[1])))
        while rest:
            if len(rest) >= 2:
                e("v_min3_u32 %s, %s, %s, %s" % (v(tmin), v(tmin), v(rest[0]), v(rest[1])))
                e("v_max3_u32 %s, %s, %s, %s" % (v(tmax), v(tmax), v(rest[0]), v(rest[1])))
                rest = rest[2:]
            else:
                e("v_min_u32 %s, %s, %s" % (v(tmin), v(tmin), v(rest[0])))
                e("v_max_u32 %s, %s, %s" % (v(tmax), v(tmax), v(rest[0])))
                rest = rest[1:]
        e("v_cmp_ne_u32 vcc, s%d, %s" % (sTAG, v(tmin)))
        e("v_cmp_ne_u32 %s, s%d, %s" % (sp(sT0), sTAG, v(tmax)))
        nop(1)
        e("s_or_b64 vcc, vcc, %s" % sp(sT0))
    e("s_sub_u32 s%d, s%d, 1" % (sCNT, sCNT))
    e("s_cbranch_scc1 POLLX%d" % pid)
    nop(1)
    e("s_cmp_lg_u64 vcc, 0")
    e("s_cbranch_scc1 POLL%d" % pid)
    lab("POLLX%d" % pid)

def lane0_begin():
    e("s_mov_b64 %s, exec" % sp(sEX))
    e("s_mov_b64 exec, 1")
def lane0_end():
    e("s_mov_b64 exec, %s" % sp(sEX))

hdr = open("cdna_kernels/%s.s.ref" % NAME).read().split("\n")
head = []
for ln in hdr:
    if ln.startswith("; @launch"):
        head.append("; @launch grid=(256,1,1) block=(512,1,1) lds=%d" % LDS_TOTAL)
        break
    head.append(ln)
L.extend(head)
L.append('.amdgcn_target "amdgcn-amd-amdhsa--gfx950"')
L.append(".text")
L.append(".globl %s_kernel" % NAME)
L.append(".p2align 8")
L.append(".type %s_kernel,@function" % NAME)
lab("%s_kernel" % NAME)

e("s_cmp_ge_u32 s2, 256")
e("s_cbranch_scc1 END")
e("s_load_dwordx16 s[16:31], s[0:1], 0")
e("s_load_dwordx8 s[32:39], s[0:1], 64")
e("s_load_dwordx2 s[40:41], s[0:1], 96")
e("v_and_b32 %s, 63, v0" % v(vL))
e("v_lshrrev_b32 v2, 6, v0")
e("s_and_b32 s%d, s2, 7" % sG)
e("s_lshr_b32 s%d, s2, 3" % sC)
e("v_readfirstlane_b32 s%d, v2" % sWAVE)
e("v_lshlrev_b32 %s, 4, %s" % (v(aL16), v(vL)))
e("s_waitcnt lgkmcnt(0)")
e("s_load_dword s%d, %s, 0" % (sTAG, sp(P_WS)))
e("s_cmp_ge_u32 s%d, 4" % sWAVE)
e("s_cbranch_scc1 LOADER")

ts()
XV = T
XL = T + 8
e("global_load_dwordx4 %s, %s, %s" % (vr(XL, 4), v(aL16), sp(P_X)))
e("s_lshl_b32 s%d, s%d, 10" % (sT0, sG))
e("s_lshl_b32 s%d, s%d, 5" % (sT1, sC))
e("s_add_u32 s%d, s%d, s%d" % (sT0, sT0, sT1))
e("s_lshl_b32 s%d, s%d, 3" % (sT1, sWAVE))
e("s_add_u32 s%d, s%d, s%d" % (sT0, sT0, sT1))
e("v_lshlrev_b32 v2, 16, %s" % v(vL))
e("v_add_u32 v2, s%d, v2" % sT0)
for i in range(8):
    e("global_load_dwordx2 %s, v2, %s" % (vr(vWQ + 2 * i, 2), sp(P_WQ)))
    if i < 7:
        e("v_add_u32 v2, 0x2000, v2")
e("s_lshl_b32 s%d, s%d, 24" % (sT0, sG))
e("s_lshl_b32 s%d, s%d, 15" % (sT1, sC))
e("s_add_u32 s%d, s%d, s%d" % (sT0, sT0, sT1))
e("s_lshl_b32 s%d, s%d, 13" % (sT1, sWAVE))
e("s_add_u32 s%d, s%d, s%d" % (sT0, sT0, sT1))
e("s_add_u32 s%d, s%d, 0x%x" % (sT0, sT0, W0 * 256))
e("v_and_b32 v3, 15, %s" % v(vL))
e("v_lshrrev_b32 v4, 4, %s" % v(vL))
e("v_lshlrev_b32 v2, 8, v3")
e("v_lshl_add_u32 v2, v4, 4, v2")
e("v_add_u32 v2, s%d, v2" % sT0)
e("v_add_u32 v5, 0x1000, v2")
for Tt in range(2):
    for s in range(4):
        e("global_load_dwordx4 %s, %s, %s offset:%d" % (vr(vK + Tt * 16 + s * 4, 4), "v2" if Tt == 0 else "v5", sp(P_K), s * 64))
e("v_mov_b32 v6, 0")
e("global_load_ushort %s, v6, %s" % (v(vB2), sp(P_B2)))
e("s_barrier")

e("v_and_b32 v6, 3, v3")
e("v_lshlrev_b32 v6, 9, v6")
e("v_lshl_add_u32 v6, v4, 5, v6")
e("s_lshl_b32 s%d, s%d, 11" % (sT0, sG))
e("s_add_u32 s%d, s%d, 0x%x" % (sT0, sT0, QS_OFF))
e("v_add_u32 %s, s%d, v6" % (v(aQS), sT0))
e("s_lshl_b32 s%d, s%d, 6" % (sT1, sC))
e("s_add_u32 s%d, s%d, s%d" % (sT0, sT0, sT1))
e("s_lshl_b32 s%d, s%d, 4" % (sT1, sWAVE))
e("s_add_u32 s%d, s%d, s%d" % (sT0, sT0, sT1))
e("v_mov_b32 %s, s%d" % (v(aQW), sT0))
e("v_lshrrev_b32 v6, 3, %s" % v(vL))
e("v_lshlrev_b32 v6, 12, v6")
e("v_bfe_u32 v7, %s, 1, 2" % v(vL))
e("v_lshl_add_u32 v6, v7, 10, v6")
e("v_and_b32 v7, 1, %s" % v(vL))
e("v_lshl_add_u32 v6, v7, 4, v6")
e("s_lshl_b32 s%d, s%d, 17" % (sT0, sG))
e("s_lshl_b32 s%d, s%d, 15" % (sT1, sWAVE))
e("s_add_u32 s%d, s%d, s%d" % (sT0, sT0, sT1))
e("s_lshl_b32 s%d, s%d, 5" % (sT1, sC))
e("s_add_u32 s%d, s%d, s%d" % (sT0, sT0, sT1))
e("s_add_u32 s%d, s%d, 0x%x" % (sT0, sT0, PO_OFF))
e("v_add_u32 %s, s%d, v6" % (v(aPOW), sT0))
e("s_lshl_b32 s%d, s%d, 11" % (sT0, sG))
e("s_lshl_b32 s%d, s%d, 9" % (sT1, sWAVE))
e("s_add_u32 s%d, s%d, s%d" % (sT0, sT0, sT1))
e("s_lshl_b32 s%d, s%d, 4" % (sT1, sC))
e("s_add_u32 s%d, s%d, s%d" % (sT0, sT0, sT1))
e("s_add_u32 s%d, s%d, 0x%x" % (sT0, sT0, ST_OFF))
e("v_mov_b32 %s, s%d" % (v(aSTW), sT0))
e("s_lshl_b32 s%d, s%d, 11" % (sT0, sG))
e("s_lshr_b32 s%d, s%d, 3" % (sT1, sC))
e("s_lshl_b32 s%d, s%d, 9" % (sT1, sT1))
e("s_add_u32 s%d, s%d, s%d" % (sT0, sT0, sT1))
e("s_add_u32 s%d, s%d, 0x%x" % (sT0, sT0, ST_OFF))
e("v_lshrrev_b32 v6, 1, %s" % v(vL))
e("v_lshlrev_b32 v6, 4, v6")
e("v_add_u32 %s, s%d, v6" % (v(aSTR), sT0))
e("s_lshl_b32 s%d, s%d, 17" % (sT0, sG))
e("s_lshl_b32 s%d, s%d, 12" % (sT1, sC))
e("s_add_u32 s%d, s%d, s%d" % (sT0, sT0, sT1))
e("s_lshl_b32 s%d, s%d, 10" % (sT1, sWAVE))
e("s_add_u32 s%d, s%d, s%d" % (sT0, sT0, sT1))
e("s_add_u32 s%d, s%d, 0x%x" % (sT0, sT0, PO_OFF))
e("v_add_u32 %s, s%d, %s" % (v(aPOR), sT0, v(aL16)))
e("s_lshl_b32 s%d, s2, 4" % sT0)
e("s_add_u32 s%d, s%d, 0x%x" % (sT0, sT0, OP_OFF))
e("v_lshlrev_b32 v6, 12, v0")
e("v_add_u32 %s, s%d, v6" % (v(aOPW), sT0))
e("s_lshl_b32 s%d, s2, 12" % sT0)
e("s_add_u32 s%d, s%d, 0x%x" % (sT0, sT0, OP_OFF))
e("v_add_u32 %s, s%d, %s" % (v(aOPR), sT0, v(aL16)))
e("v_lshlrev_b32 v6, 5, %s" % v(vL))
e("v_add_u32 %s, 0x%x, v6" % (v(aX1R), X1_OFF))
e("s_lshl_b32 s%d, s2, 3" % sT0)
e("s_add_u32 s%d, s%d, 0x%x" % (sT0, sT0, X1_OFF))
e("v_mov_b32 %s, s%d" % (v(aOWN), sT0))
e("v_lshrrev_b32 v6, 2, v3")
e("v_lshl_add_u32 v6, v4, 2, v6")
e("v_lshlrev_b32 v7, 8, v6")
e("v_and_b32 v6, 7, v6")
e("v_lshl_add_u32 v7, v6, 5, v7")
e("v_and_b32 v6, 3, %s" % v(vL))
e("v_lshl_add_u32 v7, v6, 3, v7")
e("s_lshl_b32 s%d, s%d, 13" % (sT0, sWAVE))
e("v_add_u32 %s, s%d, v7" % (v(aVT), sT0))
e("s_lshl_b32 s%d, s%d, 11" % (sT0, sWAVE))
e("s_add_u32 s%d, s%d, 0x%x" % (sT0, sT0, LSC))
e("v_lshlrev_b32 v6, 4, v3")
e("v_add_u32 %s, s%d, v6" % (v(aSCW), sT0))
e("s_lshl_b32 s%d, s%d, 2" % (sT0, sWAVE))
e("s_add_u32 s%d, s%d, 0x%x" % (sT0, sT0, LSC))
e("v_lshlrev_b32 v6, 5, %s" % v(vL))
e("v_add_u32 %s, s%d, v6" % (v(aSCR), sT0))
e("s_mov_b32 s%d, %s" % (sC1, fh(LOG2E)))
e("s_mov_b32 s%d, %s" % (sC2, fh(SCALE)))
GC0 = -2.0 * 0.7978845608028654 * LOG2E
GC1 = GC0 * 0.044715
e("s_mov_b32 s%d, %s" % (sC3, fh(GC0)))
e("s_mov_b32 s%d, %s" % (sC4, fh(GC1)))
e("s_waitcnt lgkmcnt(0)")
e("s_add_u32 s%d, s%d, 1" % (sTAG, sTAG))
e("s_lshl_b32 s%d, s2, 2" % sT0)
e("v_mov_b32 v6, s%d" % sT0)
e("global_load_dword %s, v6, %s" % (v(vXR), sp(P_X)))

for layer in range(2):
    if layer == 0:
        e("s_mov_b64 %s, %s" % (sp(sWL), sp(P_WS)))
    else:
        e("s_add_u32 s%d, s%d, 0x%x" % (sWL, P_WS, LSTRIDE))
        e("s_addc_u32 s%d, s%d, 0" % (sWL + 1, P_WS + 1))
    if layer == 0:
        e("s_waitcnt vmcnt(18)")
        ts()
        for i in range(4):
            e("v_lshlrev_b32 %s, 16, %s" % (v(XV + 2 * i), v(XL + i)))
            e("v_and_b32 %s, 0xffff0000, %s" % (v(XV + 2 * i + 1), v(XL + i)))
    else:
        G0 = T + 8
        poll(["global_load_dwordx4 %s, %s, %s offset:%d sc1" % (vr(G0, 4), v(aX1R), sp(P_WS), X2_OFF - X1_OFF),
              "global_load_dwordx4 %s, %s, %s offset:%d sc1" % (vr(G0 + 4, 4), v(aX1R), sp(P_WS), X2_OFF - X1_OFF + 16)],
             [G0 + 1, G0 + 3, G0 + 5, G0 + 7], T + 16, T + 17)
        ts()
        for i in range(4):
            e("v_lshlrev_b32 %s, 16, %s" % (v(XV + 2 * i), v(G0 + 2 * i)))
            e("v_and_b32 %s, 0xffff0000, %s" % (v(XV + 2 * i + 1), v(G0 + 2 * i)))
    layernorm(XV, [], T + 16)
    if layer == 0:
        e("s_waitcnt vmcnt(10)")
    A = T + 24
    U = T + 28
    for i in range(8):
        for hlf in range(2):
            w = vWQ + 2 * i + hlf
            e("v_lshlrev_b32 %s, 16, %s" % (v(U), v(w)))
            e("v_and_b32 %s, 0xffff0000, %s" % (v(U + 1), v(w)))
            if i == 0:
                e("v_mul_f32 %s, %s, %s" % (v(A + 2 * hlf), v(XV), v(U)))
                e("v_mul_f32 %s, %s, %s" % (v(A + 2 * hlf + 1), v(XV), v(U + 1)))
            else:
                e("v_fmac_f32 %s, %s, %s" % (v(A + 2 * hlf), v(XV + i), v(U)))
                e("v_fmac_f32 %s, %s, %s" % (v(A + 2 * hlf + 1), v(XV + i), v(U + 1)))
    allreduce("add", [A, A + 1, A + 2, A + 3], [U, U + 1, U + 2, U + 3])
    e("v_cvt_pk_bf16_f32 %s, %s, %s" % (v(U), v(A), v(A + 1)))
    e("v_mov_b32 %s, s%d" % (v(U + 1), sTAG))
    e("v_cvt_pk_bf16_f32 %s, %s, %s" % (v(U + 2), v(A + 2), v(A + 3)))
    e("v_mov_b32 %s, s%d" % (v(U + 3), sTAG))
    lane0_begin()
    e("global_store_dwordx4 %s, %s, %s sc1" % (v(aQW), vr(U, 4), sp(sWL)))
    lane0_end()
    ts()
    QL = T
    loads = []
    tags = []
    for s in range(4):
        loads.append("global_load_dwordx4 %s, %s, %s offset:%d sc1" % (vr(QL + 8 * s, 4), v(aQS), sp(sWL), s * 128))
        loads.append("global_load_dwordx4 %s, %s, %s offset:%d sc1" % (vr(QL + 8 * s + 4, 4), v(aQS), sp(sWL), s * 128 + 16))
        tags += [QL + 8 * s + 1, QL + 8 * s + 3, QL + 8 * s + 5, QL + 8 * s + 7]
    poll(loads, tags, T + 32, T + 33)
    ts()
    for s in range(4):
        b = QL + 8 * s
        e("v_mov_b32 %s, %s" % (v(b + 1), v(b + 2)))
        e("v_mov_b32 %s, %s" % (v(b + 2), v(b + 4)))
        e("v_mov_b32 %s, %s" % (v(b + 3), v(b + 6)))
    SC0 = T + 32
    nop(2)
    for s in range(4):
        for Tt in range(2):
            c = "0" if s == 0 else vr(SC0 + 4 * Tt, 4)
            e("v_mfma_f32_16x16x32_bf16 %s, %s, %s, %s" % (vr(SC0 + 4 * Tt, 4), vr(vK + Tt * 16 + s * 4, 4), vr(QL + 8 * s, 4), c))
    nop(8)
    tmp = T + 40
    for i in range(0, 8, 2):
        round_bf16_pair(SC0 + i, SC0 + i + 1, tmp)
        e("v_mul_f32 %s, s%d, %s" % (v(SC0 + i), sC2, v(SC0 + i)))
        e("v_mul_f32 %s, s%d, %s" % (v(SC0 + i + 1), sC2, v(SC0 + i + 1)))
        round_bf16_pair(SC0 + i, SC0 + i + 1, tmp)
    M = T + 41
    e("v_max3_f32 %s, %s, %s, %s" % (v(M), v(SC0), v(SC0 + 1), v(SC0 + 2)))
    e("v_max3_f32 %s, %s, %s, %s" % (v(M), v(M), v(SC0 + 3), v(SC0 + 4)))
    e("v_max3_f32 %s, %s, %s, %s" % (v(M), v(M), v(SC0 + 5), v(SC0 + 6)))
    e("v_max_f32 %s, %s, %s" % (v(M), v(M), v(SC0 + 7)))
    allreduce("max", [M], [tmp], rors=())
    MM = T + 42
    e("v_mul_f32 %s, s%d, %s" % (v(MM), sC1, v(M)))
    for i in range(8):
        e("v_fma_f32 %s, %s, s%d, -%s" % (v(SC0 + i), v(SC0 + i), sC1, v(MM)))
    for i in range(8):
        e("v_exp_f32 %s, %s" % (v(SC0 + i), v(SC0 + i)))
    nop(1)
    LS = T + 43
    e("v_add_f32 %s, %s, %s" % (v(LS), v(SC0), v(SC0 + 1)))
    for i in range(2, 8):
        e("v_add_f32 %s, %s, %s" % (v(LS), v(LS), v(SC0 + i)))
    allreduce("add", [LS], [tmp], rors=())
    PA = T + 44
    for i in range(4):
        e("v_cvt_pk_bf16_f32 %s, %s, %s" % (v(PA + i), v(SC0 + 2 * i), v(SC0 + 2 * i + 1)))
    if layer == 0:
        e("s_barrier")
        for Td in range(8):
            e("v_xor_b32 v6, 0x%x, %s" % (Td << 5, v(aVT)))
            e("ds_read_b64_tr_b16 %s, v6" % vr(vVF + 4 * Td, 2))
            e("ds_read_b64_tr_b16 %s, v6 offset:4096" % vr(vVF + 4 * Td + 2, 2))
        e("s_waitcnt lgkmcnt(0)")
    ts()
    D0 = T + 48
    nop(2)
    for Td in range(8):
        e("v_mfma_f32_16x16x32_bf16 %s, %s, %s, 0" % (vr(D0 + 4 * Td, 4), vr(PA, 4), vr(vVF + 4 * Td, 4)))
    e("s_lshl_b32 s%d, s%d, 5" % (sT0, sWAVE))
    e("s_add_u32 s%d, s%d, 0x%x" % (sT0, sT0, LSS))
    e("v_lshlrev_b32 v6, 3, %s" % v(vL))
    e("v_add_u32 v6, s%d, v6" % sT0)
    e("v_mov_b32 %s, %s" % (v(T + 40), v(M)))
    e("v_mov_b32 %s, %s" % (v(T + 41), v(LS)))
    e("s_mov_b64 %s, exec" % sp(sEX))
    e("s_mov_b64 exec, 15")
    e("ds_write_b64 v6, %s" % vr(T + 40, 2))
    e("s_mov_b64 exec, 0xffff")
    nop(4)
    for Td in range(8):
        e("ds_write_b128 %s, %s offset:%d" % (v(aSCW), vr(D0 + 4 * Td, 4), Td * 256))
    e("s_mov_b64 exec, %s" % sp(sEX))
    e("s_waitcnt lgkmcnt(0)")
    e("s_barrier")
    R = T
    for w_ in range(4):
        e("ds_read2_b32 %s, %s offset0:%d offset1:%d" % (vr(R + 2 * w_, 2), v(aSCR), 0, 4)) if w_ == 0 else None
    for w_ in range(1, 4):
        e("v_add_u32 v6, 0x%x, %s" % (2048 * w_, v(aSCR)))
        e("ds_read2_b32 %s, v6 offset0:0 offset1:4" % vr(R + 2 * w_, 2))
    e("s_lshl_b32 s%d, s%d, 3" % (sT0, sWAVE))
    e("s_add_u32 s%d, s%d, 0x%x" % (sT0, sT0, LSS))
    e("v_mov_b32 v6, s%d" % sT0)
    for w_ in range(4):
        e("ds_read_b64 %s, v6 offset:%d" % (vr(R + 8 + 2 * w_, 2), 32 * w_))
    e("s_waitcnt lgkmcnt(0)")
    MC, E0, LC, O0, O1 = T + 16, T + 17, T + 22, T + 24, T + 26
    e("v_max3_f32 %s, %s, %s, %s" % (v(MC), v(R + 8), v(R + 10), v(R + 12)))
    e("v_max_f32 %s, %s, %s" % (v(MC), v(MC), v(R + 14)))
    for w_ in range(4):
        e("v_sub_f32 %s, %s, %s" % (v(E0 + w_), v(R + 8 + 2 * w_), v(MC)))
        e("v_mul_f32 %s, s%d, %s" % (v(E0 + w_), sC1, v(E0 + w_)))
    for w_ in range(4):
        e("v_exp_f32 %s, %s" % (v(E0 + w_), v(E0 + w_)))
    nop(1)
    e("v_mul_f32 %s, %s, %s" % (v(LC), v(E0), v(R + 9)))
    e("v_mul_f32 %s, %s, %s" % (v(O0), v(E0), v(R)))
    e("v_mul_f32 %s, %s, %s" % (v(O1), v(E0), v(R + 1)))
    for w_ in range(1, 4):
        e("v_fmac_f32 %s, %s, %s" % (v(LC), v(E0 + w_), v(R + 9 + 2 * w_)))
        e("v_fmac_f32 %s, %s, %s" % (v(O0), v(E0 + w_), v(R + 2 * w_)))
        e("v_fmac_f32 %s, %s, %s" % (v(O1), v(E0 + w_), v(R + 2 * w_ + 1)))
    e("v_mov_b32 %s, s%d" % (v(O0 + 1), sTAG))
    e("v_mov_b32 %s, s%d" % (v(O1 + 1), sTAG))
    e("global_store_dwordx4 %s, %s, %s sc1" % (v(aPOW), vr(O0, 4), sp(sWL)))
    S4 = T + 28
    e("v_mov_b32 %s, %s" % (v(S4), v(MC)))
    e("v_mov_b32 %s, s%d" % (v(S4 + 1), sTAG))
    e("v_mov_b32 %s, %s" % (v(S4 + 2), v(LC)))
    e("v_mov_b32 %s, s%d" % (v(S4 + 3), sTAG))
    lane0_begin()
    e("global_store_dwordx4 %s, %s, %s sc1" % (v(aSTW), vr(S4, 4), sp(sWL)))
    lane0_end()
    ts()
    if layer == 0:
        e("s_lshl_b32 s%d, s%d, 12" % (sT0, sWAVE))
        e("s_add_u32 s%d, s%d, 0x%x" % (sT0, sT0, LWO))
        e("v_add_u32 v6, s%d, %s" % (sT0, v(aL16)))
        for i in range(4):
            e("ds_read_b128 %s, v6 offset:%d" % (vr(vWO + 4 * i, 4), 1024 * i))
        e("v_lshlrev_b32 v6, 1, v0")
        for k in range(7):
            e("ds_read_u16 %s, v6 offset:%d" % (v(vW1 + k), LW1 + 512 * k))
            e("ds_read_u16 %s, v6 offset:%d" % (v(vB1 + k), LB1 + 512 * k))
            e("ds_read_u16 %s, v6 offset:%d" % (v(vW2 + k), LW2 + 512 * k))
        e("s_waitcnt lgkmcnt(0)")
        for k in range(7):
            for b in (vW1, vB1, vW2):
                e("v_lshlrev_b32 %s, 16, %s" % (v(b + k), v(b + k)))
        e("v_lshlrev_b32 %s, 16, %s" % (v(vB2), v(vB2)))
        e("v_and_b32 %s, 0xffff0000, %s" % (v(vXR + 1), v(vXR)))
        e("v_lshlrev_b32 %s, 16, %s" % (v(vXR), v(vXR)))
    SR, PR = T, T + 4
    poll(["global_load_dwordx4 %s, %s, %s sc1" % (vr(SR, 4), v(aSTR), sp(sWL)),
          "global_load_dwordx4 %s, %s, %s sc1" % (vr(PR, 4), v(aPOR), sp(sWL))],
         [SR + 1, SR + 3, PR + 1, PR + 3], T + 8, T + 9)
    ts()
    Mx = T + 8
    e("v_mov_b32 %s, %s" % (v(Mx), v(SR)))
    allreduce("max", [Mx], [T + 9], rors=(2, 4, 8))
    Ee = T + 10
    e("v_sub_f32 %s, %s, %s" % (v(Ee), v(SR), v(Mx)))
    e("v_mul_f32 %s, s%d, %s" % (v(Ee), sC1, v(Ee)))
    e("v_exp_f32 %s, %s" % (v(Ee), v(Ee)))
    nop(1)
    A0, A1, A2 = T + 12, T + 13, T + 14
    e("v_mul_f32 %s, %s, %s" % (v(A0), v(Ee), v(SR + 2)))
    e("v_mul_f32 %s, %s, %s" % (v(A1), v(Ee), v(PR)))
    e("v_mul_f32 %s, %s, %s" % (v(A2), v(Ee), v(PR + 2)))
    allreduce("add", [A0, A1, A2], [T + 16, T + 17, T + 18], rors=(2, 4, 8))
    e("v_rcp_f32 %s, %s" % (v(A0), v(A0)))
    nop(1)
    e("v_mul_f32 %s, %s, %s" % (v(A1), v(A1), v(A0)))
    e("v_mul_f32 %s, %s, %s" % (v(A2), v(A2), v(A0)))
    round_bf16_pair(A1, A2, T + 16)
    OO = T + 20
    nop(2)
    e("v_mov_b32_dpp %s, %s quad_perm:[0,0,2,2] %s" % (v(OO), v(A1), DPPM))
    e("v_mov_b32_dpp %s, %s quad_perm:[0,0,2,2] %s" % (v(OO + 1), v(A2), DPPM))
    e("v_mov_b32_dpp %s, %s quad_perm:[1,1,3,3] %s" % (v(OO + 2), v(A1), DPPM))
    e("v_mov_b32_dpp %s, %s quad_perm:[1,1,3,3] %s" % (v(OO + 3), v(A2), DPPM))
    AC = T + 24
    U = T + 32
    for i in range(4):
        for k in range(4):
            w = vWO + 4 * i + k
            e("v_lshlrev_b32 %s, 16, %s" % (v(U), v(w)))
            e("v_and_b32 %s, 0xffff0000, %s" % (v(U + 1), v(w)))
            if i == 0:
                e("v_mul_f32 %s, %s, %s" % (v(AC + 2 * k), v(OO), v(U)))
                e("v_mul_f32 %s, %s, %s" % (v(AC + 2 * k + 1), v(OO), v(U + 1)))
            else:
                e("v_fmac_f32 %s, %s, %s" % (v(AC + 2 * k), v(OO + i), v(U)))
                e("v_fmac_f32 %s, %s, %s" % (v(AC + 2 * k + 1), v(OO + i), v(U + 1)))
    e("s_lshl_b32 s%d, s%d, 11" % (sT0, sWAVE))
    e("s_add_u32 s%d, s%d, 0x%x" % (sT0, sT0, LOC))
    e("v_lshlrev_b32 v6, 5, %s" % v(vL))
    e("v_add_u32 v6, s%d, v6" % sT0)
    e("ds_write_b128 v6, %s" % vr(AC, 4))
    e("ds_write_b128 v6, %s offset:16" % vr(AC + 4, 4))
    e("v_lshlrev_b32 v6, 3, v0")
    e("v_add_u32 v6, 0x%x, v6" % LOC)
    e("s_waitcnt lgkmcnt(0)")
    e("s_barrier")
    R = T
    for w_ in range(4):
        e("ds_read_b64 %s, v6 offset:%d" % (vr(R + 2 * w_, 2), 2048 * w_))
    e("s_waitcnt lgkmcnt(0)")
    O4 = T + 8
    e("v_add_f32 %s, %s, %s" % (v(O4), v(R), v(R + 2)))
    e("v_add_f32 %s, %s, %s" % (v(O4 + 2), v(R + 1), v(R + 3)))
    e("v_add_f32 %s, %s, %s" % (v(R + 4), v(R + 4), v(R + 6)))
    e("v_add_f32 %s, %s, %s" % (v(R + 5), v(R + 5), v(R + 7)))
    e("v_add_f32 %s, %s, %s" % (v(O4), v(O4), v(R + 4)))
    e("v_add_f32 %s, %s, %s" % (v(O4 + 2), v(O4 + 2), v(R + 5)))
    e("v_mov_b32 %s, s%d" % (v(O4 + 1), sTAG))
    e("v_mov_b32 %s, s%d" % (v(O4 + 3), sTAG))
    e("global_store_dwordx4 %s, %s, %s sc1" % (v(aOPW), vr(O4, 4), sp(sWL)))
    ts()
    e("s_cmp_lg_u32 s%d, 0" % sWAVE)
    e("s_cbranch_scc1 XSKIP%d" % layer)
    XR = T + 16
    loads = []
    tags = []
    for k in range(4):
        loads.append("global_load_dwordx4 %s, %s, %s offset:%d sc1" % (vr(XR + 4 * k, 4), v(aOPR), sp(sWL), 1024 * k))
        tags += [XR + 4 * k + 1, XR + 4 * k + 3]
    poll(loads, tags, T + 32, T + 33)
    ts()
    Y0, Y1 = T + 32, T + 33
    e("v_add_f32 %s, %s, %s" % (v(Y0), v(XR), v(XR + 4)))
    e("v_add_f32 %s, %s, %s" % (v(Y1), v(XR + 2), v(XR + 6)))
    e("v_add_f32 %s, %s, %s" % (v(XR + 8), v(XR + 8), v(XR + 12)))
    e("v_add_f32 %s, %s, %s" % (v(XR + 10), v(XR + 10), v(XR + 14)))
    e("v_add_f32 %s, %s, %s" % (v(Y0), v(Y0), v(XR + 8)))
    e("v_add_f32 %s, %s, %s" % (v(Y1), v(Y1), v(XR + 10)))
    allreduce("add", [Y0, Y1], [T + 34, T + 35])
    round_bf16_pair(Y0, Y1, T + 34)
    e("v_add_f32 %s, %s, %s" % (v(Y0), v(Y0), v(vXR)))
    e("v_add_f32 %s, %s, %s" % (v(Y1), v(Y1), v(vXR + 1)))
    e("v_cvt_pk_bf16_f32 %s, %s, %s" % (v(T + 36), v(Y0), v(Y1)))
    e("v_mov_b32 %s, s%d" % (v(T + 37), sTAG))
    lane0_begin()
    e("global_store_dwordx2 %s, %s, %s sc1" % (v(aOWN), vr(T + 36, 2), sp(sWL)))
    lane0_end()
    ts()
    lab("XSKIP%d" % layer)
    G0 = T + 8
    GO = T + 16
    poll(["global_load_dwordx4 %s, %s, %s sc1" % (vr(G0, 4), v(aX1R), sp(sWL)),
          "global_load_dwordx4 %s, %s, %s offset:16 sc1" % (vr(G0 + 4, 4), v(aX1R), sp(sWL)),
          "global_load_dwordx2 %s, %s, %s sc1" % (vr(GO, 2), v(aOWN), sp(sWL))],
         [G0 + 1, G0 + 3, G0 + 5, G0 + 7, GO + 1], T + 18, T + 19)
    ts()
    for i in range(4):
        e("v_lshlrev_b32 %s, 16, %s" % (v(XV + 2 * i), v(G0 + 2 * i)))
        e("v_and_b32 %s, 0xffff0000, %s" % (v(XV + 2 * i + 1), v(G0 + 2 * i)))
    H0, H1 = T + 18, T + 19
    X1a, X1b = T + 20, T + 21
    e("v_lshlrev_b32 %s, 16, %s" % (v(H0), v(GO)))
    e("v_and_b32 %s, 0xffff0000, %s" % (v(H1), v(GO)))
    e("v_mov_b32 %s, %s" % (v(X1a), v(H0)))
    e("v_mov_b32 %s, %s" % (v(X1b), v(H1)))
    layernorm(XV, [H0, H1], T + 24)
    layernorm(XV, [H0, H1], T + 24)
    Ya, Yb = T + 22, T + 23
    a, b, t0, t1, t2 = T + 24, T + 25, T + 26, T + 27, T + 28
    for k in range(7):
        e("v_mul_f32 %s, %s, %s" % (v(a), v(H0), v(vW1 + k)))
        e("v_mul_f32 %s, %s, %s" % (v(b), v(H1), v(vW1 + k)))
        round_bf16_pair(a, b, t2)
        e("v_add_f32 %s, %s, %s" % (v(a), v(a), v(vB1 + k)))
        e("v_add_f32 %s, %s, %s" % (v(b), v(b), v(vB1 + k)))
        round_bf16_pair(a, b, t2)
        e("v_mul_f32 %s, %s, %s" % (v(t0), v(a), v(a)))
        e("v_mul_f32 %s, %s, %s" % (v(t1), v(b), v(b)))
        e("v_mov_b32 %s, s%d" % (v(t2), sC3))
        e("v_fma_f32 %s, %s, s%d, %s" % (v(t0), v(t0), sC4, v(t2)))
        e("v_fma_f32 %s, %s, s%d, %s" % (v(t1), v(t1), sC4, v(t2)))
        e("v_mul_f32 %s, %s, %s" % (v(t0), v(t0), v(a)))
        e("v_mul_f32 %s, %s, %s" % (v(t1), v(t1), v(b)))
        e("v_exp_f32 %s, %s" % (v(t0), v(t0)))
        e("v_exp_f32 %s, %s" % (v(t1), v(t1)))
        nop(1)
        e("v_add_f32 %s, 1.0, %s" % (v(t0), v(t0)))
        e("v_add_f32 %s, 1.0, %s" % (v(t1), v(t1)))
        e("v_rcp_f32 %s, %s" % (v(t0), v(t0)))
        e("v_rcp_f32 %s, %s" % (v(t1), v(t1)))
        nop(1)
        e("v_mul_f32 %s, %s, %s" % (v(a), v(a), v(t0)))
        e("v_mul_f32 %s, %s, %s" % (v(b), v(b), v(t1)))
        round_bf16_pair(a, b, t2)
        if k == 0:
            e("v_mul_f32 %s, %s, %s" % (v(Ya), v(a), v(vW2 + k)))
            e("v_mul_f32 %s, %s, %s" % (v(Yb), v(b), v(vW2 + k)))
        else:
            e("v_fmac_f32 %s, %s, %s" % (v(Ya), v(a), v(vW2 + k)))
            e("v_fmac_f32 %s, %s, %s" % (v(Yb), v(b), v(vW2 + k)))
    allreduce("add", [Ya, Yb], [T + 24, T + 25])
    e("s_lshl_b32 s%d, s%d, 3" % (sT0, sWAVE))
    e("s_add_u32 s%d, s%d, 0x%x" % (sT0, sT0, LMC))
    e("v_mov_b32 v6, s%d" % sT0)
    lane0_begin()
    e("ds_write_b64 v6, %s" % vr(Ya, 2))
    lane0_end()
    e("s_waitcnt lgkmcnt(0)")
    e("s_barrier")
    e("s_cmp_lg_u32 s%d, 0" % sWAVE)
    e("s_cbranch_scc1 MSKIP%d" % layer)
    e("v_mov_b32 v6, 0x%x" % LMC)
    e("ds_read_b128 %s, v6" % vr(T + 24, 4))
    e("ds_read_b128 %s, v6 offset:16" % vr(T + 28, 4))
    e("s_waitcnt lgkmcnt(0)")
    e("v_add_f32 %s, %s, %s" % (v(Ya), v(T + 24), v(T + 26)))
    e("v_add_f32 %s, %s, %s" % (v(Yb), v(T + 25), v(T + 27)))
    e("v_add_f32 %s, %s, %s" % (v(T + 28), v(T + 28), v(T + 30)))
    e("v_add_f32 %s, %s, %s" % (v(T + 29), v(T + 29), v(T + 31)))
    e("v_add_f32 %s, %s, %s" % (v(Ya), v(Ya), v(T + 28)))
    e("v_add_f32 %s, %s, %s" % (v(Yb), v(Yb), v(T + 29)))
    round_bf16_pair(Ya, Yb, T + 24)
    e("v_add_f32 %s, %s, %s" % (v(Ya), v(Ya), v(vB2)))
    e("v_add_f32 %s, %s, %s" % (v(Yb), v(Yb), v(vB2)))
    round_bf16_pair(Ya, Yb, T + 24)
    e("v_add_f32 %s, %s, %s" % (v(Ya), v(Ya), v(X1a)))
    e("v_add_f32 %s, %s, %s" % (v(Yb), v(Yb), v(X1b)))
    e("v_cvt_pk_bf16_f32 %s, %s, %s" % (v(T + 26), v(Ya), v(Yb)))
    e("v_mov_b32 %s, s%d" % (v(T + 27), sTAG))
    if layer == 0:
        e("v_lshlrev_b32 %s, 16, %s" % (v(vXR), v(T + 26)))
        e("v_and_b32 %s, 0xffff0000, %s" % (v(vXR + 1), v(T + 26)))
        lane0_begin()
        e("global_store_dwordx2 %s, %s, %s offset:%d sc1" % (v(aOWN), vr(T + 26, 2), sp(P_WS), X2_OFF - X1_OFF))
        lane0_end()
    else:
        e("s_lshl_b32 s%d, s2, 2" % sT0)
        e("v_mov_b32 v6, s%d" % sT0)
        lane0_begin()
        e("global_store_dword v6, %s, %s" % (v(T + 26), sp(P_OUT)))
        e("s_cmp_lg_u32 s2, 0")
        e("s_cbranch_scc1 NOEP")
        e("v_mov_b32 v6, 0")
        e("global_store_dword v6, %s, %s" % (v(T + 27), sp(P_WS)))
        lab("NOEP")
        lane0_end()
    ts()
    lab("MSKIP%d" % layer)

if TS:
    e("s_cmp_lg_u32 s%d, 0" % sWAVE)
    e("s_cbranch_scc1 END")
    e("s_cmp_lg_u32 s2, %d" % (TS - 1))
    e("s_cbranch_scc1 END")
    lane0_begin()
    e("v_mov_b32 v6, 0")
    n = ts_count[0]
    for i in range(n):
        e("s_sub_u32 s%d, s%d, s%d" % (sT0, sTSB + i, sTSB))
        e("v_mov_b32 v7, s%d" % sT0)
        e("global_store_dword v6, v7, %s offset:%d" % (sp(P_DBG), 4 * i))
    lane0_end()
e("s_branch END")

lab("LOADER")
e("s_sub_u32 s%d, s%d, 4" % (sWAVE, sWAVE))
e("v_and_b32 v3, 15, %s" % v(vL))
e("v_lshrrev_b32 v4, 4, %s" % v(vL))
e("v_lshrrev_b32 v5, 1, v3")
e("v_xor_b32 v6, v5, v4")
e("v_xor_b32 v7, 4, v6")
e("v_and_b32 v5, 1, v3")
e("v_lshl_add_u32 v6, v6, 1, v5")
e("v_lshl_add_u32 v7, v7, 1, v5")
e("v_lshlrev_b32 v6, 4, v6")
e("v_lshlrev_b32 v7, 4, v7")
e("v_lshl_add_u32 v6, v4, 8, v6")
e("v_lshl_add_u32 v7, v4, 8, v7")
e("s_lshl_b32 s%d, s%d, 24" % (sT0, sG))
e("s_lshl_b32 s%d, s%d, 15" % (sT1, sC))
e("s_add_u32 s%d, s%d, s%d" % (sT0, sT0, sT1))
e("s_lshl_b32 s%d, s%d, 13" % (sT1, sWAVE))
e("s_add_u32 s%d, s%d, s%d" % (sT0, sT0, sT1))
e("s_add_u32 s%d, s%d, 0x%x" % (sT0, sT0, W0 * 256))
e("v_add_u32 v6, s%d, v6" % sT0)
e("v_add_u32 v7, s%d, v7" % sT0)
e("v_add_u32 v7, 0x400, v7")
e("s_lshl_b32 s%d, s%d, 13" % (sT2, sWAVE))
e("s_barrier")
for i in range(8):
    e("s_add_u32 s%d, s%d, 0x%x" % (sT3, sT2, LV + 1024 * i))
    e("s_mov_b32 m0, s%d" % sT3)
    nop(1)
    e("global_load_lds_dwordx4 %s, %s" % ("v6" if i % 2 == 0 else "v7", sp(P_V)))
    if i % 2 == 0:
        e("v_add_u32 v6, 0x800, v6")
    else:
        e("v_add_u32 v7, 0x800, v7")
e("s_lshl_b32 s%d, s%d, 19" % (sT0, sG))
e("s_lshl_b32 s%d, s%d, 14" % (sT1, sC))
e("s_add_u32 s%d, s%d, s%d" % (sT0, sT0, sT1))
e("s_lshl_b32 s%d, s%d, 12" % (sT1, sWAVE))
e("s_add_u32 s%d, s%d, s%d" % (sT0, sT0, sT1))
e("v_add_u32 v6, s%d, %s" % (sT0, v(aL16)))
for i in range(4):
    e("s_add_u32 s%d, s%d, 0x%x" % (sT3, sT1, LWO + 1024 * i))
    e("s_mov_b32 m0, s%d" % sT3)
    nop(1)
    e("global_load_lds_dwordx4 v6, %s" % sp(P_WO))
    e("v_add_u32 v6, 0x400, v6")
e("s_lshl_b32 s%d, s%d, 10" % (sT1, sWAVE))
e("v_add_u32 v6, s%d, %s" % (sT1, v(aL16)))
e("s_mov_b64 %s, exec" % sp(sEX))
e("s_cmp_lg_u32 s%d, 3" % sWAVE)
e("s_cbranch_scc1 LD_FULL")
e("s_mov_b32 exec_hi, 0")
lab("LD_FULL")
for base, ptr in ((LW1, P_W1), (LB1, P_B1), (LW2, P_W2)):
    e("s_add_u32 s%d, s%d, 0x%x" % (sT3, sT1, base))
    e("s_mov_b32 m0, s%d" % sT3)
    nop(1)
    e("global_load_lds_dwordx4 v6, %s" % sp(ptr))
e("s_mov_b64 exec, %s" % sp(sEX))
e("s_waitcnt vmcnt(7)")
e("s_barrier")
e("s_waitcnt vmcnt(0)")
e("s_barrier")
lab("END")
e("s_endpgm")

L.append('.section .rodata,"a"')
L.append(".p2align 6")
L.append(".amdhsa_kernel %s_kernel" % NAME)
L.append("  .amdhsa_next_free_vgpr 256")
L.append("  .amdhsa_next_free_sgpr 102")
L.append("  .amdhsa_accum_offset 256")
L.append("  .amdhsa_group_segment_fixed_size 0")
L.append("  .amdhsa_kernarg_size 104")
L.append("  .amdhsa_user_sgpr_count 2")
L.append("  .amdhsa_user_sgpr_kernarg_segment_ptr 1")
L.append("  .amdhsa_system_sgpr_workgroup_id_x 1")
L.append("  .amdhsa_float_denorm_mode_32 3")
L.append(".end_amdhsa_kernel")
open(OUT, "w").write("\n".join(L) + "\n")
print("wrote", OUT, "lines", len(L), "ts", ts_count[0])
```

```python
import sys, struct

NAME = "interleave_layers__sliding_block_cached__mixer_token_mlp__decode"
TS = int(sys.argv[2]) if len(sys.argv) > 2 else 0
OUT = sys.argv[1] if len(sys.argv) > 1 else "cdna_kernels/%s.s" % NAME

L = []
def e(s): L.append("  " + s)
def lab(s): L.append(s + ":")
def nop(n):
    while n > 0:
        k = min(n, 16)
        e("s_nop %d" % (k - 1))
        n -= k
def f2u(x): return struct.unpack("<I", struct.pack("<f", x))[0]
def fh(x): return "0x%08x" % f2u(x)

QS_OFF = 0x1000
ST_OFF = 0x8000
X1_OFF = 0x10000
X2_OFF = 0x20000
PO_OFF = 0x100000
OP_OFF = 0x200000
LV = 0
LWO = 32768
LW1 = 49152
LB1 = LW1 + 3584
LW2 = LB1 + 3584
LSS = 59904
LMC = 60160
LHB = 60288
LQ = 60416
LH = 61440
LSC = 63488
LOC = LSC + 8192
LWQ = LOC + 8192
LDS_TOTAL = LWQ + 16384

W0 = 65536 - 4096
LOG2E = 1.4426950408889634
SCALE = 128.0 ** -0.5

sWAVE = 4; sG = 5; sC = 6; sTAG = 7
sT0, sT1, sT2, sT3 = 8, 9, 10, 11
sCNT = 12; sPIV = 13
sEX = 14
P_X, P_K, P_V, P_WQ, P_WO, P_BX, P_W1, P_B1, P_W2, P_B2, P_OUT, P_DBG, P_WS = [16 + 2 * i for i in range(13)]
sLAY = 42; sPI = 43
sC1, sC2, sC3, sC4 = 44, 45, 46, 47
sTSB = 50
def sp(i): return "s[%d:%d]" % (i, i + 1)

vL = 1
vWQ = 16; vK = 32; vVF = 64; vWO = 96
vW1 = 112; vB1 = 119; vW2 = 126; vB2 = 133
vXR = 134
aQS = 136; aPOW = 137; aSTW = 138; aSTR = 139; aPOR = 140; aOPW = 141; aOPR = 142
aX1R = 143; aXW = 144; aQW = 145; aVT = 146; aSCW = 147; aSCR = 148; aL16 = 149
aQF = 150; aL32 = 151
T = 152
def v(i): return "v%d" % i
def vr(i, n): return "v[%d:%d]" % (i, i + n - 1)

NTS = 13
ts_count = [0]
def ts():
    if not TS: return
    i = ts_count[0]; ts_count[0] += 1
    e("s_memtime s[98:99]" if TS != 9999 else "s_memrealtime s[98:99]")
    e("s_waitcnt lgkmcnt(0)")
    e("s_cmp_eq_u32 s%d, 0" % sLAY)
    e("s_cselect_b32 s%d, s98, s%d" % (sTSB + i, sTSB + i))
    e("s_cselect_b32 s%d, s%d, s98" % (sTSB + NTS + i, sTSB + NTS + i))

DPPM = "row_mask:0xf bank_mask:0xf"

def allreduce(op, regs, tmps, rors=(1, 2, 4, 8)):
    ins = "v_add_f32" if op == "add" else "v_max_f32"
    n = len(regs)
    pad = max(0, 2 - (n - 1))
    nop(2)
    for r in rors:
        for x in regs:
            e("%s_dpp %s, %s, %s row_ror:%d %s" % (ins, v(x), v(x), v(x), r, DPPM))
        nop(pad)
    for sw in ("v_permlane16_swap_b32", "v_permlane32_swap_b32"):
        for x, t in zip(regs, tmps):
            e("v_mov_b32 %s, %s" % (v(t), v(x)))
        nop(pad)
        for x, t in zip(regs, tmps):
            e("%s %s, %s" % (sw, v(x), v(t)))
        nop(1)
        for x, t in zip(regs, tmps):
            e("%s %s, %s, %s" % (ins, v(x), v(x), v(t)))
        nop(pad)

def round_bf16_pair(a, b, tmp):
    e("v_cvt_pk_bf16_f32 %s, %s, %s" % (v(tmp), v(a), v(b)))
    e("v_lshlrev_b32 %s, 16, %s" % (v(a), v(tmp)))
    e("v_and_b32 %s, 0xffff0000, %s" % (v(b), v(tmp)))

def layernorm(X, extra, tb, only_extra=False):
    s, q, m, r, u0, t, t2 = tb, tb + 1, tb + 2, tb + 3, tb + 4, tb + 5, tb + 6
    nop(1)
    e("v_readfirstlane_b32 s%d, %s" % (sPIV, v(X)))
    nop(2)
    e("v_subrev_f32 %s, s%d, %s" % (v(s), sPIV, v(X)))
    e("v_mul_f32 %s, %s, %s" % (v(q), v(s), v(s)))
    for i in range(1, 8):
        e("v_subrev_f32 %s, s%d, %s" % (v(u0), sPIV, v(X + i)))
        e("v_add_f32 %s, %s, %s" % (v(s), v(s), v(u0)))
        e("v_fmac_f32 %s, %s, %s" % (v(q), v(u0), v(u0)))
    allreduce("add", [s, q], [t, t2])
    e("v_mul_f32 %s, %s, %s" % (v(s), fh(1.0 / 512), v(s)))
    e("v_mul_f32 %s, %s, %s" % (v(q), fh(1.0 / 512), v(q)))
    e("v_fma_f32 %s, -%s, %s, %s" % (v(q), v(s), v(s), v(q)))
    e("v_max_f32 %s, 0, %s" % (v(q), v(q)))
    e("v_add_f32 %s, s%d, %s" % (v(m), sPIV, v(s)))
    round_bf16_pair(m, q, t)
    e("v_add_f32 %s, %s, %s" % (v(q), fh(1e-5), v(q)))
    e("v_cvt_pk_bf16_f32 %s, %s, %s" % (v(t), v(q), v(q)))
    e("v_lshlrev_b32 %s, 16, %s" % (v(q), v(t)))
    e("v_sqrt_f32 %s, %s" % (v(q), v(q)))
    nop(1)
    e("v_cvt_pk_bf16_f32 %s, %s, %s" % (v(t), v(q), v(q)))
    e("v_lshlrev_b32 %s, 16, %s" % (v(q), v(t)))
    e("v_rcp_f32 %s, %s" % (v(r), v(q)))
    regs = ([] if only_extra else [X + i for i in range(8)]) + list(extra)
    for i in range(0, len(regs), 2):
        a, b = regs[i], regs[i + 1]
        e("v_sub_f32 %s, %s, %s" % (v(a), v(a), v(m)))
        e("v_sub_f32 %s, %s, %s" % (v(b), v(b), v(m)))
        round_bf16_pair(a, b, t)
        e("v_mul_f32 %s, %s, %s" % (v(a), v(a), v(r)))
        e("v_mul_f32 %s, %s, %s" % (v(b), v(b), v(r)))
        round_bf16_pair(a, b, t)

poll_id = [0]
def poll(loads, tags, tmin, tmax):
    pid = poll_id[0]; poll_id[0] += 1
    e("s_mov_b32 s%d, 0x100000" % sCNT)
    lab("POLL%d" % pid)
    for ld in loads:
        e(ld)
    e("s_waitcnt vmcnt(0)")
    tg = list(tags)
    first = tg[:3] if len(tg) >= 3 else tg[:2]
    rest = tg[len(first):]
    if len(first) == 3:
        e("v_min3_u32 %s, %s, %s, %s" % (v(tmin), v(first[0]), v(first[1]), v(first[2])))
        e("v_max3_u32 %s, %s, %s, %s" % (v(tmax), v(first[0]), v(first[1]), v(first[2])))
    else:
        e("v_min_u32 %s, %s, %s" % (v(tmin), v(first[0]), v(first[1])))
        e("v_max_u32 %s, %s, %s" % (v(tmax), v(first[0]), v(first[1])))
    while rest:
        if len(rest) >= 2:
            e("v_min3_u32 %s, %s, %s, %s" % (v(tmin), v(tmin), v(rest[0]), v(rest[1])))
            e("v_max3_u32 %s, %s, %s, %s" % (v(tmax), v(tmax), v(rest[0]), v(rest[1])))
            rest = rest[2:]
        else:
            e("v_min_u32 %s, %s, %s" % (v(tmin), v(tmin), v(rest[0])))
            e("v_max_u32 %s, %s, %s" % (v(tmax), v(tmax), v(rest[0])))
            rest = rest[1:]
    e("v_cmp_ne_u32 vcc, s%d, %s" % (sTAG, v(tmin)))
    e("v_cmp_ne_u32 %s, s%d, %s" % (sp(sT0), sTAG, v(tmax)))
    nop(1)
    e("s_or_b64 vcc, vcc, %s" % sp(sT0))
    e("s_cmp_eq_u64 vcc, 0")
    e("s_cbranch_scc1 POLLX%d" % pid)
    e("s_sub_u32 s%d, s%d, 1" % (sCNT, sCNT))
    e("s_cbranch_scc0 POLL%d" % pid)
    lab("POLLX%d" % pid)

def mask_begin(m):
    e("s_mov_b64 %s, exec" % sp(sEX))
    if m == 0xffffffff:
        e("s_mov_b32 exec_hi, 0")
    else:
        e("s_mov_b64 exec, 0x%x" % m)
def mask_end():
    e("s_mov_b64 exec, %s" % sp(sEX))

def sacc(terms, const):
    first = True
    for reg, sh in terms:
        if first:
            e("s_lshl_b32 s%d, s%d, %d" % (sT0, reg, sh)); first = False
        else:
            e("s_lshl_b32 s%d, s%d, %d" % (sT1, reg, sh))
            e("s_add_u32 s%d, s%d, s%d" % (sT0, sT0, sT1))
    if const:
        e("s_add_u32 s%d, s%d, 0x%x" % (sT0, sT0, const))

hdr = open("cdna_kernels/%s.s.ref" % NAME).read().split("\n")
for ln in hdr:
    if ln.startswith("; @launch"):
        L.append("; @launch grid=(256,1,1) block=(512,1,1) lds=%d" % LDS_TOTAL)
        break
    L.append(ln)
L.append('.amdgcn_target "amdgcn-amd-amdhsa--gfx950"')
L.append(".text")
L.append(".globl %s_kernel" % NAME)
L.append(".p2align 8")
L.append(".type %s_kernel,@function" % NAME)
lab("%s_kernel" % NAME)

e("s_cmp_ge_u32 s2, 256")
e("s_cbranch_scc1 END")
e("s_load_dwordx16 s[16:31], s[0:1], 0")
e("s_load_dwordx8 s[32:39], s[0:1], 64")
e("s_load_dwordx2 s[40:41], s[0:1], 96")
e("v_and_b32 %s, 63, v0" % v(vL))
e("v_lshrrev_b32 v2, 6, v0")
e("s_and_b32 s%d, s2, 7" % sG)
e("s_lshr_b32 s%d, s2, 3" % sC)
e("v_readfirstlane_b32 s%d, v2" % sWAVE)
e("v_lshlrev_b32 %s, 4, %s" % (v(aL16), v(vL)))
e("v_lshlrev_b32 %s, 5, %s" % (v(aL32), v(vL)))
e("s_mov_b32 s%d, 0" % sLAY)
e("s_lshl_b32 s%d, s%d, 5" % (sPI, sG))
e("s_add_u32 s%d, s%d, s%d" % (sPI, sPI, sC))
e("s_waitcnt lgkmcnt(0)")
e("s_cmp_ge_u32 s%d, 4" % sWAVE)
e("s_cbranch_scc1 LOADER")
e("s_load_dword s%d, %s, 0" % (sTAG, sp(P_WS)))

XV = T
XL = T + 8
NTS_PRE = 0
if TS:
    e("s_memtime s[98:99]" if TS != 9999 else "s_memrealtime s[98:99]")
    e("s_waitcnt lgkmcnt(0)")
    e("s_mov_b32 s%d, s98" % (sTSB + 2 * NTS))
e("s_cmp_lg_u32 s%d, 0" % sWAVE)
e("s_cbranch_scc1 NOX")
e("global_load_dwordx4 %s, %s, %s" % (vr(XL, 4), v(aL16), sp(P_X)))
lab("NOX")
sacc([(sG, 24), (sC, 15), (sWAVE, 13)], W0 * 256)
e("v_and_b32 v3, 15, %s" % v(vL))
e("v_lshrrev_b32 v4, 4, %s" % v(vL))
e("v_lshlrev_b32 v2, 8, v3")
e("v_lshl_add_u32 v2, v4, 4, v2")
e("v_add_u32 v2, s%d, v2" % sT0)
e("v_add_u32 v5, 0x1000, v2")
for Tt in range(2):
    for s in range(4):
        e("global_load_dwordx4 %s, %s, %s offset:%d" % (vr(vK + Tt * 16 + s * 4, 4), "v2" if Tt == 0 else "v5", sp(P_K), s * 64) + " nt")
e("v_mov_b32 v6, 0")
e("global_load_ushort %s, v6, %s" % (v(vB2), sp(P_B2)))
e("s_lshl_b32 s%d, s%d, 2" % (sT0, sPI))
e("v_mov_b32 v6, s%d" % sT0)
e("global_load_dword %s, v6, %s" % (v(vXR), sp(P_X)))

sacc([(sG, 11)], QS_OFF)
e("v_add_u32 %s, s%d, %s" % (v(aQS), sT0, v(aL32)))
sacc([(sG, 11), (sC, 6), (sWAVE, 4)], QS_OFF)
e("v_mov_b32 %s, s%d" % (v(aQW), sT0))
e("v_and_b32 v6, 3, v3")
e("v_lshlrev_b32 v6, 8, v6")
e("v_lshl_add_u32 v6, v4, 4, v6")
e("v_add_u32 %s, 0x%x, v6" % (v(aQF), LQ))
sacc([(sG, 17), (sC, 12)], PO_OFF)
e("v_lshlrev_b32 v6, 4, v0")
e("v_add_u32 %s, s%d, v6" % (v(aPOW), sT0))
sacc([(2, 12)], OP_OFF)
e("v_add_u32 %s, s%d, v6" % (v(aOPW), sT0))
sacc([(sG, 11), (sC, 6), (sWAVE, 4)], ST_OFF)
e("v_mov_b32 %s, s%d" % (v(aSTW), sT0))
e("s_lshr_b32 s%d, s%d, 3" % (sT2, sC))
sacc([(sG, 11), (sT2, 4)], ST_OFF)
e("v_lshrrev_b32 v6, 1, %s" % v(vL))
e("v_lshlrev_b32 v7, 6, v6")
e("v_add_u32 %s, s%d, v7" % (v(aSTR), sT0))
sacc([(sG, 17), (sC, 7), (sWAVE, 5)], PO_OFF)
e("v_lshlrev_b32 v7, 12, v6")
e("v_and_b32 v6, 1, %s" % v(vL))
e("v_lshl_add_u32 v7, v6, 4, v7")
e("v_add_u32 %s, s%d, v7" % (v(aPOR), sT0))
sacc([(sPI, 4)], OP_OFF)
e("v_lshlrev_b32 v6, 12, %s" % v(vL))
e("v_add_u32 %s, s%d, v6" % (v(aOPR), sT0))
e("s_and_b32 s%d, s2, 31" % sT2)
sacc([(sT2, 11)], X1_OFF)
e("v_add_u32 %s, s%d, %s" % (v(aX1R), sT0, v(aL32)))
sacc([(sPI, 3)], X1_OFF)
e("v_lshlrev_b32 v6, 11, %s" % v(vL))
e("v_add_u32 %s, s%d, v6" % (v(aXW), sT0))
e("v_lshrrev_b32 v6, 2, v3")
e("v_lshl_add_u32 v6, v4, 2, v6")
e("v_lshlrev_b32 v7, 8, v6")
e("v_and_b32 v6, 7, v6")
e("v_lshl_add_u32 v7, v6, 5, v7")
e("v_and_b32 v6, 3, %s" % v(vL))
e("v_lshl_add_u32 v7, v6, 3, v7")
e("s_lshl_b32 s%d, s%d, 13" % (sT0, sWAVE))
e("v_add_u32 %s, s%d, v7" % (v(aVT), sT0))
sacc([(sWAVE, 11)], LSC)
e("v_lshlrev_b32 v6, 4, v3")
e("v_add_u32 %s, s%d, v6" % (v(aSCW), sT0))
sacc([(sWAVE, 2)], LSC)
e("v_add_u32 %s, s%d, %s" % (v(aSCR), sT0, v(aL32)))
e("s_mov_b32 s%d, %s" % (sC1, fh(LOG2E)))
e("s_mov_b32 s%d, %s" % (sC2, fh(SCALE)))
GC0 = -2.0 * 0.7978845608028654 * LOG2E
GC1 = GC0 * 0.044715
e("s_mov_b32 s%d, %s" % (sC3, fh(GC0)))
e("s_mov_b32 s%d, %s" % (sC4, fh(GC1)))
e("s_waitcnt lgkmcnt(0)")
e("s_add_u32 s%d, s%d, 1" % (sTAG, sTAG))

lab("LAYER")
e("s_cmp_lg_u32 s%d, 0" % sWAVE)
e("s_cbranch_scc1 QW")
e("s_cmp_lg_u32 s%d, 0" % sLAY)
e("s_cbranch_scc1 QPOLL")
e("s_waitcnt vmcnt(10)")
for i in range(4):
    e("v_lshlrev_b32 %s, 16, %s" % (v(XV + 2 * i), v(XL + i)))
    e("v_and_b32 %s, 0xffff0000, %s" % (v(XV + 2 * i + 1), v(XL + i)))
e("s_branch QLN")
lab("QPOLL")
G0 = T + 8
e("v_add_u32 v6, 0x%x, %s" % (X2_OFF - X1_OFF, v(aX1R)))
e("s_sub_u32 s%d, s%d, 1" % (sTAG, sTAG))
poll(["global_load_dwordx4 %s, v6, %s sc1" % (vr(G0, 4), sp(P_WS)),
      "global_load_dwordx4 %s, v6, %s offset:16 sc1" % (vr(G0 + 4, 4), sp(P_WS))],
     [G0 + 1, G0 + 3, G0 + 5, G0 + 7], T + 16, T + 17)
e("s_add_u32 s%d, s%d, 1" % (sTAG, sTAG))
for i in range(4):
    e("v_lshlrev_b32 %s, 16, %s" % (v(XV + 2 * i), v(G0 + 2 * i)))
    e("v_and_b32 %s, 0xffff0000, %s" % (v(XV + 2 * i + 1), v(G0 + 2 * i)))
lab("QLN")
ts()
layernorm(XV, [], T + 16)
e("v_add_u32 v6, 0x%x, %s" % (LH, v(aL32)))
e("ds_write_b128 v6, %s" % vr(XV, 4))
e("ds_write_b128 v6, %s offset:16" % vr(XV + 4, 4))
e("s_waitcnt lgkmcnt(0)")
e("s_barrier")
e("s_branch QG")
lab("QW")
e("v_add_u32 v6, 0x%x, %s" % (LH, v(aL32)))
e("s_barrier")
e("ds_read_b128 %s, v6" % vr(XV, 4))
e("ds_read_b128 %s, v6 offset:16" % vr(XV + 4, 4))
lab("QG")
e("s_cmp_lg_u32 s%d, 0" % sLAY)
e("s_cbranch_scc1 QG2")
sacc([(sWAVE, 3)], LWQ)
e("v_lshlrev_b32 v6, 8, %s" % v(vL))
e("v_add_u32 v6, s%d, v6" % sT0)
for i in range(8):
    e("ds_read_b64 %s, v6 offset:%d" % (vr(vWQ + 2 * i, 2), 32 * i))
lab("QG2")
e("s_waitcnt lgkmcnt(0)")
A = T + 24
U = T + 28
for i in range(8):
    for hlf in range(2):
        w = vWQ + 2 * i + hlf
        e("v_lshlrev_b32 %s, 16, %s" % (v(U), v(w)))
        e("v_and_b32 %s, 0xffff0000, %s" % (v(U + 1), v(w)))
        if i == 0:
            e("v_mul_f32 %s, %s, %s" % (v(A + 2 * hlf), v(XV), v(U)))
            e("v_mul_f32 %s, %s, %s" % (v(A + 2 * hlf + 1), v(XV), v(U + 1)))
        else:
            e("v_fmac_f32 %s, %s, %s" % (v(A + 2 * hlf), v(XV + i), v(U)))
            e("v_fmac_f32 %s, %s, %s" % (v(A + 2 * hlf + 1), v(XV + i), v(U + 1)))
allreduce("add", [A, A + 1, A + 2, A + 3], [U, U + 1, U + 2, U + 3])
e("v_cvt_pk_bf16_f32 %s, %s, %s" % (v(U), v(A), v(A + 1)))
e("v_mov_b32 %s, s%d" % (v(U + 1), sTAG))
e("v_cvt_pk_bf16_f32 %s, %s, %s" % (v(U + 2), v(A + 2), v(A + 3)))
e("v_mov_b32 %s, s%d" % (v(U + 3), sTAG))
mask_begin(1)
e("global_store_dwordx4 %s, %s, %s sc1" % (v(aQW), vr(U, 4), sp(P_WS)))
mask_end()
ts()
e("s_cmp_lg_u32 s%d, 0" % sWAVE)
e("s_cbranch_scc1 SW")
G0 = T
poll(["global_load_dwordx4 %s, %s, %s sc1" % (vr(G0, 4), v(aQS), sp(P_WS)),
      "global_load_dwordx4 %s, %s, %s offset:16 sc1" % (vr(G0 + 4, 4), v(aQS), sp(P_WS))],
     [G0 + 1, G0 + 3, G0 + 5, G0 + 7], T + 8, T + 9)
ts()
e("v_mov_b32 %s, %s" % (v(G0 + 1), v(G0 + 2)))
e("v_mov_b32 %s, %s" % (v(G0 + 2), v(G0 + 4)))
e("v_mov_b32 %s, %s" % (v(G0 + 3), v(G0 + 6)))
e("v_add_u32 v6, 0x%x, %s" % (LQ, v(aL16)))
e("ds_write_b128 v6, %s" % vr(G0, 4))
e("s_waitcnt lgkmcnt(0)")
lab("SW")
e("s_barrier")
QL = T
for s in range(4):
    e("ds_read_b128 %s, %s offset:%d" % (vr(QL + 4 * s, 4), v(aQF), 64 * s))
e("s_waitcnt vmcnt(0) lgkmcnt(0)")
SC0 = T + 32
for s in range(4):
    for Tt in range(2):
        c = "0" if s == 0 else vr(SC0 + 4 * Tt, 4)
        e("v_mfma_f32_16x16x32_bf16 %s, %s, %s, %s" % (vr(SC0 + 4 * Tt, 4), vr(vK + Tt * 16 + s * 4, 4), vr(QL + 4 * s, 4), c))
nop(8)
tmp = T + 40
for i in range(0, 8, 2):
    round_bf16_pair(SC0 + i, SC0 + i + 1, tmp)
    e("v_mul_f32 %s, s%d, %s" % (v(SC0 + i), sC2, v(SC0 + i)))
    e("v_mul_f32 %s, s%d, %s" % (v(SC0 + i + 1), sC2, v(SC0 + i + 1)))
    round_bf16_pair(SC0 + i, SC0 + i + 1, tmp)
M = T + 41
e("v_max3_f32 %s, %s, %s, %s" % (v(M), v(SC0), v(SC0 + 1), v(SC0 + 2)))
e("v_max3_f32 %s, %s, %s, %s" % (v(M), v(M), v(SC0 + 3), v(SC0 + 4)))
e("v_max3_f32 %s, %s, %s, %s" % (v(M), v(M), v(SC0 + 5), v(SC0 + 6)))
e("v_max_f32 %s, %s, %s" % (v(M), v(M), v(SC0 + 7)))
allreduce("max", [M], [tmp], rors=())
MM = T + 42
e("v_mul_f32 %s, s%d, %s" % (v(MM), sC1, v(M)))
for i in range(8):
    e("v_fma_f32 %s, %s, s%d, -%s" % (v(SC0 + i), v(SC0 + i), sC1, v(MM)))
for i in range(8):
    e("v_exp_f32 %s, %s" % (v(SC0 + i), v(SC0 + i)))
nop(1)
PA = T + 44
for i in range(4):
    e("v_cvt_pk_bf16_f32 %s, %s, %s" % (v(PA + i), v(SC0 + 2 * i), v(SC0 + 2 * i + 1)))
e("s_cmp_lg_u32 s%d, 0" % sLAY)
e("s_cbranch_scc1 SV")
e("s_barrier")
for Td in range(8):
    e("v_xor_b32 v6, 0x%x, %s" % (Td << 5, v(aVT)))
    e("ds_read_b64_tr_b16 %s, v6" % vr(vVF + 4 * Td, 2))
    e("ds_read_b64_tr_b16 %s, v6 offset:4096" % vr(vVF + 4 * Td + 2, 2))
e("s_waitcnt lgkmcnt(0)")
lab("SV")
ts()
D0 = T + 48
for Td in range(8):
    e("v_mfma_f32_16x16x32_bf16 %s, %s, %s, 0" % (vr(D0 + 4 * Td, 4), vr(PA, 4), vr(vVF + 4 * Td, 4)))
LS = T + 43
e("v_add_f32 %s, %s, %s" % (v(LS), v(SC0), v(SC0 + 1)))
for i in range(2, 8):
    e("v_add_f32 %s, %s, %s" % (v(LS), v(LS), v(SC0 + i)))
allreduce("add", [LS], [tmp], rors=())
sacc([(sWAVE, 5)], LSS)
e("v_lshlrev_b32 v6, 3, %s" % v(vL))
e("v_add_u32 v6, s%d, v6" % sT0)
e("v_mov_b32 %s, %s" % (v(T + 40), v(M)))
e("v_mov_b32 %s, %s" % (v(T + 41), v(LS)))
e("s_mov_b64 %s, exec" % sp(sEX))
e("s_mov_b64 exec, 15")
e("ds_write_b64 v6, %s" % vr(T + 40, 2))
e("s_mov_b64 exec, 0xffff")
for Td in range(8):
    e("ds_write_b128 %s, %s offset:%d" % (v(aSCW), vr(D0 + 4 * Td, 4), Td * 256))
e("s_mov_b64 exec, %s" % sp(sEX))
e("s_waitcnt lgkmcnt(0)")
e("s_barrier")
R = T
e("ds_read2_b32 %s, %s offset0:0 offset1:4" % (vr(R, 2), v(aSCR)))
for w_ in range(1, 4):
    e("v_add_u32 v6, 0x%x, %s" % (2048 * w_, v(aSCR)))
    e("ds_read2_b32 %s, v6 offset0:0 offset1:4" % vr(R + 2 * w_, 2))
sacc([(sWAVE, 3)], LSS)
e("v_mov_b32 v6, s%d" % sT0)
for w_ in range(4):
    e("ds_read_b64 %s, v6 offset:%d" % (vr(R + 8 + 2 * w_, 2), 32 * w_))
e("s_waitcnt lgkmcnt(0)")
MC, E0, LC, O0, O1 = T + 16, T + 17, T + 22, T + 24, T + 26
e("v_max3_f32 %s, %s, %s, %s" % (v(MC), v(R + 8), v(R + 10), v(R + 12)))
e("v_max_f32 %s, %s, %s" % (v(MC), v(MC), v(R + 14)))
for w_ in range(4):
    e("v_sub_f32 %s, %s, %s" % (v(E0 + w_), v(R + 8 + 2 * w_), v(MC)))
    e("v_mul_f32 %s, s%d, %s" % (v(E0 + w_), sC1, v(E0 + w_)))
for w_ in range(4):
    e("v_exp_f32 %s, %s" % (v(E0 + w_), v(E0 + w_)))
nop(1)
e("v_mul_f32 %s, %s, %s" % (v(LC), v(E0), v(R + 9)))
e("v_mul_f32 %s, %s, %s" % (v(O0), v(E0), v(R)))
e("v_mul_f32 %s, %s, %s" % (v(O1), v(E0), v(R + 1)))
for w_ in range(1, 4):
    e("v_fmac_f32 %s, %s, %s" % (v(LC), v(E0 + w_), v(R + 9 + 2 * w_)))
    e("v_fmac_f32 %s, %s, %s" % (v(O0), v(E0 + w_), v(R + 2 * w_)))
    e("v_fmac_f32 %s, %s, %s" % (v(O1), v(E0 + w_), v(R + 2 * w_ + 1)))
e("v_mov_b32 %s, s%d" % (v(O0 + 1), sTAG))
e("v_mov_b32 %s, s%d" % (v(O1 + 1), sTAG))
e("global_store_dwordx4 %s, %s, %s sc1" % (v(aPOW), vr(O0, 4), sp(P_WS)))
S4 = T + 28
e("v_mov_b32 %s, %s" % (v(S4), v(MC)))
e("v_mov_b32 %s, s%d" % (v(S4 + 1), sTAG))
e("v_mov_b32 %s, %s" % (v(S4 + 2), v(LC)))
e("v_mov_b32 %s, s%d" % (v(S4 + 3), sTAG))
mask_begin(1)
e("global_store_dwordx4 %s, %s, %s sc1" % (v(aSTW), vr(S4, 4), sp(P_WS)))
mask_end()
ts()
e("s_cmp_lg_u32 s%d, 0" % sLAY)
e("s_cbranch_scc1 OPH")
sacc([(sWAVE, 12)], LWO)
e("v_add_u32 v6, s%d, %s" % (sT0, v(aL16)))
for i in range(4):
    e("ds_read_b128 %s, v6 offset:%d" % (vr(vWO + 4 * i, 4), 1024 * i))
e("v_lshlrev_b32 v6, 1, v0")
for k in range(7):
    e("ds_read_u16 %s, v6 offset:%d" % (v(vW1 + k), LW1 + 512 * k))
    e("ds_read_u16 %s, v6 offset:%d" % (v(vB1 + k), LB1 + 512 * k))
    e("ds_read_u16 %s, v6 offset:%d" % (v(vW2 + k), LW2 + 512 * k))
e("s_waitcnt lgkmcnt(0)")
for k in range(7):
    for b in (vW1, vB1, vW2):
        e("v_lshlrev_b32 %s, 16, %s" % (v(b + k), v(b + k)))
e("v_lshlrev_b32 %s, 16, %s" % (v(vB2), v(vB2)))
e("v_and_b32 %s, 0xffff0000, %s" % (v(vXR + 1), v(vXR)))
e("v_lshlrev_b32 %s, 16, %s" % (v(vXR), v(vXR)))
lab("OPH")
SR, PR = T, T + 4
poll(["global_load_dwordx4 %s, %s, %s sc1" % (vr(SR, 4), v(aSTR), sp(P_WS)),
      "global_load_dwordx4 %s, %s, %s sc1" % (vr(PR, 4), v(aPOR), sp(P_WS))],
     [SR + 1, SR + 3, PR + 1, PR + 3], T + 8, T + 9)
ts()
Mx = T + 8
e("v_mov_b32 %s, %s" % (v(Mx), v(SR)))
allreduce("max", [Mx], [T + 9], rors=(2, 4, 8))
Ee = T + 10
e("v_sub_f32 %s, %s, %s" % (v(Ee), v(SR), v(Mx)))
e("v_mul_f32 %s, s%d, %s" % (v(Ee), sC1, v(Ee)))
e("v_exp_f32 %s, %s" % (v(Ee), v(Ee)))
nop(1)
A0, A1, A2 = T + 12, T + 13, T + 14
e("v_mul_f32 %s, %s, %s" % (v(A0), v(Ee), v(SR + 2)))
e("v_mul_f32 %s, %s, %s" % (v(A1), v(Ee), v(PR)))
e("v_mul_f32 %s, %s, %s" % (v(A2), v(Ee), v(PR + 2)))
allreduce("add", [A0, A1, A2], [T + 16, T + 17, T + 18], rors=(2, 4, 8))
e("v_rcp_f32 %s, %s" % (v(A0), v(A0)))
nop(1)
e("v_mul_f32 %s, %s, %s" % (v(A1), v(A1), v(A0)))
e("v_mul_f32 %s, %s, %s" % (v(A2), v(A2), v(A0)))
round_bf16_pair(A1, A2, T + 16)
OO = T + 20
nop(2)
e("v_mov_b32_dpp %s, %s quad_perm:[0,0,2,2] %s" % (v(OO), v(A1), DPPM))
e("v_mov_b32_dpp %s, %s quad_perm:[0,0,2,2] %s" % (v(OO + 1), v(A2), DPPM))
e("v_mov_b32_dpp %s, %s quad_perm:[1,1,3,3] %s" % (v(OO + 2), v(A1), DPPM))
e("v_mov_b32_dpp %s, %s quad_perm:[1,1,3,3] %s" % (v(OO + 3), v(A2), DPPM))
AC = T + 24
U = T + 32
for i in range(4):
    for k in range(4):
        w = vWO + 4 * i + k
        e("v_lshlrev_b32 %s, 16, %s" % (v(U), v(w)))
        e("v_and_b32 %s, 0xffff0000, %s" % (v(U + 1), v(w)))
        if i == 0:
            e("v_mul_f32 %s, %s, %s" % (v(AC + 2 * k), v(OO), v(U)))
            e("v_mul_f32 %s, %s, %s" % (v(AC + 2 * k + 1), v(OO), v(U + 1)))
        else:
            e("v_fmac_f32 %s, %s, %s" % (v(AC + 2 * k), v(OO + i), v(U)))
            e("v_fmac_f32 %s, %s, %s" % (v(AC + 2 * k + 1), v(OO + i), v(U + 1)))
sacc([(sWAVE, 11)], LOC)
e("v_add_u32 v6, s%d, %s" % (sT0, v(aL32)))
e("ds_write_b128 v6, %s" % vr(AC, 4))
e("ds_write_b128 v6, %s offset:16" % vr(AC + 4, 4))
e("v_lshlrev_b32 v6, 3, v0")
e("v_add_u32 v6, 0x%x, v6" % LOC)
e("s_waitcnt lgkmcnt(0)")
e("s_barrier")
R = T
for w_ in range(4):
    e("ds_read_b64 %s, v6 offset:%d" % (vr(R + 2 * w_, 2), 2048 * w_))
e("s_waitcnt lgkmcnt(0)")
O4 = T + 8
e("v_add_f32 %s, %s, %s" % (v(O4), v(R), v(R + 2)))
e("v_add_f32 %s, %s, %s" % (v(O4 + 2), v(R + 1), v(R + 3)))
e("v_add_f32 %s, %s, %s" % (v(R + 4), v(R + 4), v(R + 6)))
e("v_add_f32 %s, %s, %s" % (v(R + 5), v(R + 5), v(R + 7)))
e("v_add_f32 %s, %s, %s" % (v(O4), v(O4), v(R + 4)))
e("v_add_f32 %s, %s, %s" % (v(O4 + 2), v(O4 + 2), v(R + 5)))
e("v_mov_b32 %s, s%d" % (v(O4 + 1), sTAG))
e("v_mov_b32 %s, s%d" % (v(O4 + 3), sTAG))
e("global_store_dwordx4 %s, %s, %s sc1" % (v(aOPW), vr(O4, 4), sp(P_WS)))
ts()
e("s_cmp_lg_u32 s%d, 0" % sWAVE)
e("s_cbranch_scc1 MW")
XR = T + 16
AD = T + 40
for k in range(1, 4):
    e("v_add_u32 %s, 0x%x, %s" % (v(AD + k), 0x40000 * k, v(aOPR)))
loads = []; tags = []
for k in range(4):
    loads.append("global_load_dwordx4 %s, %s, %s sc1" % (vr(XR + 4 * k, 4), v(aOPR) if k == 0 else v(AD + k), sp(P_WS)))
    tags += [XR + 4 * k + 1, XR + 4 * k + 3]
poll(loads, tags, T + 32, T + 33)
ts()
Y0, Y1 = T + 32, T + 33
e("v_add_f32 %s, %s, %s" % (v(Y0), v(XR), v(XR + 4)))
e("v_add_f32 %s, %s, %s" % (v(Y1), v(XR + 2), v(XR + 6)))
e("v_add_f32 %s, %s, %s" % (v(XR + 8), v(XR + 8), v(XR + 12)))
e("v_add_f32 %s, %s, %s" % (v(XR + 10), v(XR + 10), v(XR + 14)))
e("v_add_f32 %s, %s, %s" % (v(Y0), v(Y0), v(XR + 8)))
e("v_add_f32 %s, %s, %s" % (v(Y1), v(Y1), v(XR + 10)))
allreduce("add", [Y0, Y1], [T + 34, T + 35])
round_bf16_pair(Y0, Y1, T + 34)
e("v_add_f32 %s, %s, %s" % (v(Y0), v(Y0), v(vXR)))
e("v_add_f32 %s, %s, %s" % (v(Y1), v(Y1), v(vXR + 1)))
e("v_cvt_pk_bf16_f32 %s, %s, %s" % (v(T + 36), v(Y0), v(Y1)))
e("v_mov_b32 %s, s%d" % (v(T + 37), sTAG))
mask_begin(0xffffffff)
e("global_store_dwordx2 %s, %s, %s sc1" % (v(aXW), vr(T + 36, 2), sp(P_WS)))
mask_end()
e("v_lshlrev_b32 %s, 16, %s" % (v(vXR), v(T + 36)))
e("v_and_b32 %s, 0xffff0000, %s" % (v(vXR + 1), v(T + 36)))
ts()
G0 = T + 8
poll(["global_load_dwordx4 %s, %s, %s sc1" % (vr(G0, 4), v(aX1R), sp(P_WS)),
      "global_load_dwordx4 %s, %s, %s offset:16 sc1" % (vr(G0 + 4, 4), v(aX1R), sp(P_WS))],
     [G0 + 1, G0 + 3, G0 + 5, G0 + 7], T + 18, T + 19)
ts()
for i in range(4):
    e("v_lshlrev_b32 %s, 16, %s" % (v(XV + 2 * i), v(G0 + 2 * i)))
    e("v_and_b32 %s, 0xffff0000, %s" % (v(XV + 2 * i + 1), v(G0 + 2 * i)))
H0, H1 = T + 18, T + 19
e("v_mov_b32 %s, %s" % (v(H0), v(vXR)))
e("v_mov_b32 %s, %s" % (v(H1), v(vXR + 1)))
layernorm(XV, [H0, H1], T + 24)
layernorm(XV, [H0, H1], T + 24, only_extra=True)
e("v_mov_b32 v6, 0x%x" % LHB)
mask_begin(1)
e("ds_write_b64 v6, %s" % vr(H0, 2))
mask_end()
e("s_waitcnt lgkmcnt(0)")
e("s_barrier")
e("s_branch MG")
lab("MW")
e("v_mov_b32 v6, 0x%x" % LHB)
e("s_barrier")
e("ds_read_b64 %s, v6" % vr(H0, 2))
e("s_waitcnt lgkmcnt(0)")
lab("MG")
ts()
Ya, Yb = T + 22, T + 23
a, b, t0, t1, t2 = T + 24, T + 25, T + 26, T + 27, T + 28
for k in range(7):
    e("v_mul_f32 %s, %s, %s" % (v(a), v(H0), v(vW1 + k)))
    e("v_mul_f32 %s, %s, %s" % (v(b), v(H1), v(vW1 + k)))
    round_bf16_pair(a, b, t2)
    e("v_add_f32 %s, %s, %s" % (v(a), v(a), v(vB1 + k)))
    e("v_add_f32 %s, %s, %s" % (v(b), v(b), v(vB1 + k)))
    round_bf16_pair(a, b, t2)
    e("v_mul_f32 %s, %s, %s" % (v(t0), v(a), v(a)))
    e("v_mul_f32 %s, %s, %s" % (v(t1), v(b), v(b)))
    e("v_mov_b32 %s, s%d" % (v(t2), sC3))
    e("v_fma_f32 %s, %s, s%d, %s" % (v(t0), v(t0), sC4, v(t2)))
    e("v_fma_f32 %s, %s, s%d, %s" % (v(t1), v(t1), sC4, v(t2)))
    e("v_mul_f32 %s, %s, %s" % (v(t0), v(t0), v(a)))
    e("v_mul_f32 %s, %s, %s" % (v(t1), v(t1), v(b)))
    e("v_exp_f32 %s, %s" % (v(t0), v(t0)))
    e("v_exp_f32 %s, %s" % (v(t1), v(t1)))
    nop(1)
    e("v_add_f32 %s, 1.0, %s" % (v(t0), v(t0)))
    e("v_add_f32 %s, 1.0, %s" % (v(t1), v(t1)))
    e("v_rcp_f32 %s, %s" % (v(t0), v(t0)))
    e("v_rcp_f32 %s, %s" % (v(t1), v(t1)))
    nop(1)
    e("v_mul_f32 %s, %s, %s" % (v(a), v(a), v(t0)))
    e("v_mul_f32 %s, %s, %s" % (v(b), v(b), v(t1)))
    round_bf16_pair(a, b, t2)
    if k == 0:
        e("v_mul_f32 %s, %s, %s" % (v(Ya), v(a), v(vW2 + k)))
        e("v_mul_f32 %s, %s, %s" % (v(Yb), v(b), v(vW2 + k)))
    else:
        e("v_fmac_f32 %s, %s, %s" % (v(Ya), v(a), v(vW2 + k)))
        e("v_fmac_f32 %s, %s, %s" % (v(Yb), v(b), v(vW2 + k)))
allreduce("add", [Ya, Yb], [T + 24, T + 25])
sacc([(sWAVE, 3)], LMC)
e("v_mov_b32 v6, s%d" % sT0)
mask_begin(1)
e("ds_write_b64 v6, %s" % vr(Ya, 2))
mask_end()
e("s_waitcnt lgkmcnt(0)")
e("s_barrier")
e("s_cmp_lg_u32 s%d, 0" % sWAVE)
e("s_cbranch_scc1 MSKIP")
e("v_mov_b32 v6, 0x%x" % LMC)
e("ds_read_b128 %s, v6" % vr(T + 24, 4))
e("ds_read_b128 %s, v6 offset:16" % vr(T + 28, 4))
e("s_waitcnt lgkmcnt(0)")
e("v_add_f32 %s, %s, %s" % (v(Ya), v(T + 24), v(T + 26)))
e("v_add_f32 %s, %s, %s" % (v(Yb), v(T + 25), v(T + 27)))
e("v_add_f32 %s, %s, %s" % (v(T + 28), v(T + 28), v(T + 30)))
e("v_add_f32 %s, %s, %s" % (v(T + 29), v(T + 29), v(T + 31)))
e("v_add_f32 %s, %s, %s" % (v(Ya), v(Ya), v(T + 28)))
e("v_add_f32 %s, %s, %s" % (v(Yb), v(Yb), v(T + 29)))
round_bf16_pair(Ya, Yb, T + 24)
e("v_add_f32 %s, %s, %s" % (v(Ya), v(Ya), v(vB2)))
e("v_add_f32 %s, %s, %s" % (v(Yb), v(Yb), v(vB2)))
round_bf16_pair(Ya, Yb, T + 24)
e("v_add_f32 %s, %s, %s" % (v(Ya), v(Ya), v(vXR)))
e("v_add_f32 %s, %s, %s" % (v(Yb), v(Yb), v(vXR + 1)))
e("v_cvt_pk_bf16_f32 %s, %s, %s" % (v(T + 26), v(Ya), v(Yb)))
e("v_mov_b32 %s, s%d" % (v(T + 27), sTAG))
e("s_cmp_lg_u32 s%d, 0" % sLAY)
e("s_cbranch_scc1 FINAL")
e("v_add_u32 v6, 0x%x, %s" % (X2_OFF - X1_OFF, v(aXW)))
mask_begin(0xffffffff)
e("global_store_dwordx2 v6, %s, %s sc1" % (vr(T + 26, 2), sp(P_WS)))
mask_end()
e("v_lshlrev_b32 %s, 16, %s" % (v(vXR), v(T + 26)))
e("v_and_b32 %s, 0xffff0000, %s" % (v(vXR + 1), v(T + 26)))
e("s_branch MDONE")
lab("FINAL")
e("s_lshl_b32 s%d, s%d, 2" % (sT0, sPI))
e("v_mov_b32 v6, s%d" % sT0)
mask_begin(1)
e("global_store_dword v6, %s, %s" % (v(T + 26), sp(P_OUT)))
e("s_cmp_lg_u32 s2, 0")
e("s_cbranch_scc1 NOEP")
e("v_mov_b32 v6, 0")
e("global_store_dword v6, %s, %s" % (v(T + 27), sp(P_WS)))
lab("NOEP")
mask_end()
lab("MDONE")
ts()
lab("MSKIP")
e("s_add_u32 s%d, s%d, 1" % (sTAG, sTAG))
e("s_add_u32 s%d, s%d, 1" % (sLAY, sLAY))
e("s_cmp_lt_u32 s%d, 2" % sLAY)
e("s_cbranch_scc1 LAYER")

assert ts_count[0] <= NTS, ts_count[0]
if TS == 9999:
    e("s_cmp_lg_u32 s%d, 0" % sWAVE)
    e("s_cbranch_scc1 END")
    mask_begin(1)
    e("s_lshl_b32 s%d, s2, 7" % sT0)
    e("s_add_u32 s%d, s%d, 0x2000000" % (sT0, sT0))
    e("v_mov_b32 v6, s%d" % sT0)
    e("v_mov_b32 v7, s%d" % (sTSB + 2 * NTS))
    e("global_store_dword v6, v7, %s" % sp(P_WS))
    idx = 1
    for lay in range(2):
        for i in range(ts_count[0]):
            e("v_mov_b32 v7, s%d" % (sTSB + lay * NTS + i))
            e("global_store_dword v6, v7, %s offset:%d" % (sp(P_WS), 4 * idx))
            idx += 1
    mask_end()
e("s_branch END")

lab("LOADER")
e("s_sub_u32 s%d, s%d, 4" % (sWAVE, sWAVE))
e("v_lshrrev_b32 v3, 1, %s" % v(vL))
e("v_lshlrev_b32 v3, 13, v3")
e("v_and_b32 v4, 1, %s" % v(vL))
e("v_lshl_add_u32 v3, v4, 4, v3")
sacc([(sWAVE, 20), (sG, 10), (sC, 5)], 0)
e("v_add_u32 v3, s%d, v3" % sT0)
e("s_lshl_b32 s%d, s%d, 12" % (sT2, sWAVE))
for i in range(4):
    e("s_add_u32 s%d, s%d, 0x%x" % (sT3, sT2, LWQ + 1024 * i))
    e("s_mov_b32 m0, s%d" % sT3)
    nop(1)
    e("global_load_lds_dwordx4 v3, %s nt" % sp(P_WQ))
    e("v_add_u32 v3, 0x40000, v3")
e("s_waitcnt vmcnt(0)")
e("s_barrier")
e("v_and_b32 v3, 15, %s" % v(vL))
e("v_lshrrev_b32 v4, 4, %s" % v(vL))
e("v_lshrrev_b32 v5, 1, v3")
e("v_xor_b32 v6, v5, v4")
e("v_xor_b32 v7, 4, v6")
e("v_and_b32 v5, 1, v3")
e("v_lshl_add_u32 v6, v6, 1, v5")
e("v_lshl_add_u32 v7, v7, 1, v5")
e("v_lshlrev_b32 v6, 4, v6")
e("v_lshlrev_b32 v7, 4, v7")
e("v_lshl_add_u32 v6, v4, 8, v6")
e("v_lshl_add_u32 v7, v4, 8, v7")
sacc([(sG, 24), (sC, 15), (sWAVE, 13)], W0 * 256)
e("v_add_u32 v6, s%d, v6" % sT0)
e("v_add_u32 v7, s%d, v7" % sT0)
e("v_add_u32 v7, 0x400, v7")
e("s_lshl_b32 s%d, s%d, 13" % (sT2, sWAVE))
for i in range(8):
    e("s_add_u32 s%d, s%d, 0x%x" % (sT3, sT2, LV + 1024 * i))
    e("s_mov_b32 m0, s%d" % sT3)
    nop(1)
    e("global_load_lds_dwordx4 %s, %s nt" % ("v6" if i % 2 == 0 else "v7", sp(P_V)))
    if i % 2 == 0:
        e("v_add_u32 v6, 0x800, v6")
    else:
        e("v_add_u32 v7, 0x800, v7")
sacc([(sG, 19), (sC, 14), (sWAVE, 12)], 0)
e("v_add_u32 v6, s%d, %s" % (sT0, v(aL16)))
e("s_lshl_b32 s%d, s%d, 12" % (sT1, sWAVE))
for i in range(4):
    e("s_add_u32 s%d, s%d, 0x%x" % (sT3, sT1, LWO + 1024 * i))
    e("s_mov_b32 m0, s%d" % sT3)
    nop(1)
    e("global_load_lds_dwordx4 v6, %s nt" % sp(P_WO))
    e("v_add_u32 v6, 0x400, v6")
e("s_lshl_b32 s%d, s%d, 10" % (sT1, sWAVE))
e("v_add_u32 v6, s%d, %s" % (sT1, v(aL16)))
e("s_mov_b64 %s, exec" % sp(sEX))
e("s_cmp_lg_u32 s%d, 3" % sWAVE)
e("s_cbranch_scc1 LD_FULL")
e("s_mov_b32 exec_hi, 0")
lab("LD_FULL")
for base, ptr in ((LW1, P_W1), (LB1, P_B1), (LW2, P_W2)):
    e("s_add_u32 s%d, s%d, 0x%x" % (sT3, sT1, base))
    e("s_mov_b32 m0, s%d" % sT3)
    nop(1)
    e("global_load_lds_dwordx4 v6, %s" % sp(ptr))
e("s_mov_b64 exec, %s" % sp(sEX))
def lts(i):
    if TS != 9999: return
    e("s_memrealtime s[98:99]")
    e("s_waitcnt lgkmcnt(0)")
    e("s_mov_b32 s%d, s98" % (60 + i))
lts(0)
e("s_barrier")
e("s_waitcnt vmcnt(7)")
lts(1)
e("s_barrier")
e("s_waitcnt vmcnt(0)")
lts(2)
e("s_barrier")
if TS == 9999:
    e("s_cmp_lg_u32 s%d, 0" % sWAVE)
    e("s_cbranch_scc1 END")
    mask_begin(1)
    e("s_lshl_b32 s%d, s2, 7" % sT0)
    e("s_add_u32 s%d, s%d, 0x2000000" % (sT0, sT0))
    e("v_mov_b32 v6, s%d" % sT0)
    for i in range(3):
        e("v_mov_b32 v7, s%d" % (60 + i))
        e("global_store_dword v6, v7, %s offset:%d" % (sp(P_WS), 4 * (25 + i)))
    mask_end()
lab("END")
e("s_endpgm")

L.append('.section .rodata,"a"')
L.append(".p2align 6")
L.append(".amdhsa_kernel %s_kernel" % NAME)
L.append("  .amdhsa_next_free_vgpr 256")
L.append("  .amdhsa_next_free_sgpr 102")
L.append("  .amdhsa_accum_offset 256")
L.append("  .amdhsa_group_segment_fixed_size 0")
L.append("  .amdhsa_kernarg_size 104")
L.append("  .amdhsa_user_sgpr_count 2")
L.append("  .amdhsa_user_sgpr_kernarg_segment_ptr 1")
L.append("  .amdhsa_system_sgpr_workgroup_id_x 1")
L.append("  .amdhsa_float_denorm_mode_32 3")
L.append(".end_amdhsa_kernel")
open(OUT, "w").write("\n".join(L) + "\n")
print("wrote", OUT, "lines", len(L), "ts", ts_count[0])
```

```python
import sys, struct

NAME = "interleave_layers__sliding_block_cached__mixer_token_mlp__decode"
TS = int(sys.argv[2]) if len(sys.argv) > 2 else 0
OUT = sys.argv[1] if len(sys.argv) > 1 else "cdna_kernels/%s.s" % NAME

L = []
def e(s): L.append("  " + s)
def lab(s): L.append(s + ":")
def nop(n):
    while n > 0:
        k = min(n, 16)
        e("s_nop %d" % (k - 1))
        n -= k
def f2u(x): return struct.unpack("<I", struct.pack("<f", x))[0]
def fh(x): return "0x%08x" % f2u(x)

QS_OFF = 0x1000
ST_OFF = 0x8000
X1_OFF = 0x10000
X2_OFF = 0x20000
PO_OFF = 0x100000
OP_OFF = 0x200000
LV = 0
LWO = 32768
LW1 = 49152
LB1 = LW1 + 3584
LW2 = LB1 + 3584
LSS = 59904
LMC = 60160
LHB = 60288
LQ = 60416
LH = 61440
LSC = 63488
LOC = LSC + 8192
LWQ = LOC + 8192
LDS_TOTAL = LWQ + 16384

W0 = 65536 - 4096
LOG2E = 1.4426950408889634
SCALE = 128.0 ** -0.5

sWAVE = 4; sG = 5; sC = 6; sTAG = 7
sT0, sT1, sT2, sT3 = 8, 9, 10, 11
sCNT = 12; sPIV = 13
sEX = 14
P_X, P_K, P_V, P_WQ, P_WO, P_BX, P_W1, P_B1, P_W2, P_B2, P_OUT, P_DBG, P_WS = [16 + 2 * i for i in range(13)]
sLAY = 42; sPI = 43
sC1, sC2, sC3, sC4 = 44, 45, 46, 47
sTSB = 50
def sp(i): return "s[%d:%d]" % (i, i + 1)

vL = 1
vWQ = 16; vK = 32; vVF = 64; vWO = 96
vW1 = 112; vB1 = 119; vW2 = 126; vB2 = 133
vXR = 134
aQS = 136; aPOW = 137; aSTW = 138; aSTR = 139; aPOR = 140; aOPW = 141; aOPR = 142
aX1R = 143; aXW = 144; aQW = 145; aVT = 146; aSCW = 147; aSCR = 148; aL16 = 149
aQF = 150; aL32 = 151
T = 152
def v(i): return "v%d" % i
def vr(i, n): return "v[%d:%d]" % (i, i + n - 1)

NTS = 13
ts_count = [0]
def ts():
    if not TS: return
    i = ts_count[0]; ts_count[0] += 1
    e("s_memtime s[98:99]" if TS != 9999 else "s_memrealtime s[98:99]")
    e("s_waitcnt lgkmcnt(0)")
    e("s_cmp_eq_u32 s%d, 0" % sLAY)
    e("s_cselect_b32 s%d, s98, s%d" % (sTSB + i, sTSB + i))
    e("s_cselect_b32 s%d, s%d, s98" % (sTSB + NTS + i, sTSB + NTS + i))

DPPM = "row_mask:0xf bank_mask:0xf"

def allreduce(op, regs, tmps, rors=(1, 2, 4, 8)):
    ins = "v_add_f32" if op == "add" else "v_max_f32"
    n = len(regs)
    pad = max(0, 2 - (n - 1))
    nop(2)
    for r in rors:
        for x in regs:
            e("%s_dpp %s, %s, %s row_ror:%d %s" % (ins, v(x), v(x), v(x), r, DPPM))
        nop(pad)
    for sw in ("v_permlane16_swap_b32", "v_permlane32_swap_b32"):
        for x, t in zip(regs, tmps):
            e("v_mov_b32 %s, %s" % (v(t), v(x)))
        nop(pad)
        for x, t in zip(regs, tmps):
            e("%s %s, %s" % (sw, v(x), v(t)))
        nop(1)
        for x, t in zip(regs, tmps):
            e("%s %s, %s, %s" % (ins, v(x), v(x), v(t)))
        nop(pad)

def round_bf16_pair(a, b, tmp):
    e("v_cvt_pk_bf16_f32 %s, %s, %s" % (v(tmp), v(a), v(b)))
    e("v_lshlrev_b32 %s, 16, %s" % (v(a), v(tmp)))
    e("v_and_b32 %s, 0xffff0000, %s" % (v(b), v(tmp)))

def layernorm(X, extra, tb, only_extra=False):
    s, q, m, r, u0, t, t2 = tb, tb + 1, tb + 2, tb + 3, tb + 4, tb + 5, tb + 6
    nop(1)
    e("v_readfirstlane_b32 s%d, %s" % (sPIV, v(X)))
    nop(2)
    e("v_subrev_f32 %s, s%d, %s" % (v(s), sPIV, v(X)))
    e("v_mul_f32 %s, %s, %s" % (v(q), v(s), v(s)))
    for i in range(1, 8):
        e("v_subrev_f32 %s, s%d, %s" % (v(u0), sPIV, v(X + i)))
        e("v_add_f32 %s, %s, %s" % (v(s), v(s), v(u0)))
        e("v_fmac_f32 %s, %s, %s" % (v(q), v(u0), v(u0)))
    allreduce("add", [s, q], [t, t2])
    e("v_mul_f32 %s, %s, %s" % (v(s), fh(1.0 / 512), v(s)))
    e("v_mul_f32 %s, %s, %s" % (v(q), fh(1.0 / 512), v(q)))
    e("v_fma_f32 %s, -%s, %s, %s" % (v(q), v(s), v(s), v(q)))
    e("v_max_f32 %s, 0, %s" % (v(q), v(q)))
    e("v_add_f32 %s, s%d, %s" % (v(m), sPIV, v(s)))
    round_bf16_pair(m, q, t)
    e("v_add_f32 %s, %s, %s" % (v(q), fh(1e-5), v(q)))
    e("v_cvt_pk_bf16_f32 %s, %s, %s" % (v(t), v(q), v(q)))
    e("v_lshlrev_b32 %s, 16, %s" % (v(q), v(t)))
    e("v_sqrt_f32 %s, %s" % (v(q), v(q)))
    nop(1)
    e("v_cvt_pk_bf16_f32 %s, %s, %s" % (v(t), v(q), v(q)))
    e("v_lshlrev_b32 %s, 16, %s" % (v(q), v(t)))
    e("v_rcp_f32 %s, %s" % (v(r), v(q)))
    regs = ([] if only_extra else [X + i for i in range(8)]) + list(extra)
    for i in range(0, len(regs), 2):
        a, b = regs[i], regs[i + 1]
        e("v_sub_f32 %s, %s, %s" % (v(a), v(a), v(m)))
        e("v_sub_f32 %s, %s, %s" % (v(b), v(b), v(m)))
        round_bf16_pair(a, b, t)
        e("v_mul_f32 %s, %s, %s" % (v(a), v(a), v(r)))
        e("v_mul_f32 %s, %s, %s" % (v(b), v(b), v(r)))
        round_bf16_pair(a, b, t)

poll_id = [0]
def poll(loads, tags, tmin, tmax):
    pid = poll_id[0]; poll_id[0] += 1
    e("s_mov_b32 s%d, 0x100000" % sCNT)
    lab("POLL%d" % pid)
    for ld in loads:
        e(ld)
    e("s_waitcnt vmcnt(0)")
    tg = list(tags)
    first = tg[:3] if len(tg) >= 3 else tg[:2]
    rest = tg[len(first):]
    if len(first) == 3:
        e("v_min3_u32 %s, %s, %s, %s" % (v(tmin), v(first[0]), v(first[1]), v(first[2])))
        e("v_max3_u32 %s, %s, %s, %s" % (v(tmax), v(first[0]), v(first[1]), v(first[2])))
    else:
        e("v_min_u32 %s, %s, %s" % (v(tmin), v(first[0]), v(first[1])))
        e("v_max_u32 %s, %s, %s" % (v(tmax), v(first[0]), v(first[1])))
    while rest:
        if len(rest) >= 2:
            e("v_min3_u32 %s, %s, %s, %s" % (v(tmin), v(tmin), v(rest[0]), v(rest[1])))
            e("v_max3_u32 %s, %s, %s, %s" % (v(tmax), v(tmax), v(rest[0]), v(rest[1])))
            rest = rest[2:]
        else:
            e("v_min_u32 %s, %s, %s" % (v(tmin), v(tmin), v(rest[0])))
            e("v_max_u32 %s, %s, %s" % (v(tmax), v(tmax), v(rest[0])))
            rest = rest[1:]
    e("v_cmp_ne_u32 vcc, s%d, %s" % (sTAG, v(tmin)))
    e("v_cmp_ne_u32 %s, s%d, %s" % (sp(sT0), sTAG, v(tmax)))
    nop(1)
    e("s_or_b64 vcc, vcc, %s" % sp(sT0))
    e("s_cmp_eq_u64 vcc, 0")
    e("s_cbranch_scc1 POLLX%d" % pid)
    e("s_sub_u32 s%d, s%d, 1" % (sCNT, sCNT))
    e("s_cbranch_scc0 POLL%d" % pid)
    lab("POLLX%d" % pid)

def mask_begin(m):
    e("s_mov_b64 %s, exec" % sp(sEX))
    if m == 0xffffffff:
        e("s_mov_b32 exec_hi, 0")
    else:
        e("s_mov_b64 exec, 0x%x" % m)
def mask_end():
    e("s_mov_b64 exec, %s" % sp(sEX))

def sacc(terms, const):
    first = True
    for reg, sh in terms:
        if first:
            e("s_lshl_b32 s%d, s%d, %d" % (sT0, reg, sh)); first = False
        else:
            e("s_lshl_b32 s%d, s%d, %d" % (sT1, reg, sh))
            e("s_add_u32 s%d, s%d, s%d" % (sT0, sT0, sT1))
    if const:
        e("s_add_u32 s%d, s%d, 0x%x" % (sT0, sT0, const))

hdr = open("cdna_kernels/%s.s.ref" % NAME).read().split("\n")
for ln in hdr:
    if ln.startswith("; @launch"):
        L.append("; @launch grid=(256,1,1) block=(512,1,1) lds=%d" % LDS_TOTAL)
        break
    L.append(ln)
L.append('.amdgcn_target "amdgcn-amd-amdhsa--gfx950"')
L.append(".text")
L.append(".globl %s_kernel" % NAME)
L.append(".p2align 8")
L.append(".type %s_kernel,@function" % NAME)
lab("%s_kernel" % NAME)

e("s_cmp_ge_u32 s2, 256")
e("s_cbranch_scc1 END")
e("s_load_dwordx16 s[16:31], s[0:1], 0")
e("s_load_dwordx8 s[32:39], s[0:1], 64")
e("s_load_dwordx2 s[40:41], s[0:1], 96")
e("v_and_b32 %s, 63, v0" % v(vL))
e("v_lshrrev_b32 v2, 6, v0")
e("s_and_b32 s%d, s2, 7" % sG)
e("s_lshr_b32 s%d, s2, 3" % sC)
e("v_readfirstlane_b32 s%d, v2" % sWAVE)
e("v_lshlrev_b32 %s, 4, %s" % (v(aL16), v(vL)))
e("v_lshlrev_b32 %s, 5, %s" % (v(aL32), v(vL)))
e("s_mov_b32 s%d, 0" % sLAY)
e("s_lshl_b32 s%d, s%d, 5" % (sPI, sG))
e("s_add_u32 s%d, s%d, s%d" % (sPI, sPI, sC))
e("s_waitcnt lgkmcnt(0)")
e("s_cmp_ge_u32 s%d, 4" % sWAVE)
e("s_cbranch_scc1 LOADER")
e("s_load_dword s%d, %s, 0" % (sTAG, sp(P_WS)))

XV = T
XL = T + 8
NTS_PRE = 0
if TS:
    e("s_memtime s[98:99]" if TS != 9999 else "s_memrealtime s[98:99]")
    e("s_waitcnt lgkmcnt(0)")
    e("s_mov_b32 s%d, s98" % (sTSB + 2 * NTS))
e("s_cmp_lg_u32 s%d, 0" % sWAVE)
e("s_cbranch_scc1 NOX")
e("global_load_dwordx4 %s, %s, %s" % (vr(XL, 4), v(aL16), sp(P_X)))
lab("NOX")
sacc([(sG, 24), (sC, 15), (sWAVE, 13)], W0 * 256)
e("v_and_b32 v3, 15, %s" % v(vL))
e("v_lshrrev_b32 v4, 4, %s" % v(vL))
e("v_lshlrev_b32 v2, 8, v3")
e("v_lshl_add_u32 v2, v4, 4, v2")
e("v_add_u32 v2, s%d, v2" % sT0)
e("v_add_u32 v5, 0x1000, v2")
for Tt in range(2):
    for s in range(4):
        e("global_load_dwordx4 %s, %s, %s offset:%d" % (vr(vK + Tt * 16 + s * 4, 4), "v2" if Tt == 0 else "v5", sp(P_K), s * 64) + " nt")
e("v_mov_b32 v6, 0")
e("global_load_ushort %s, v6, %s" % (v(vB2), sp(P_B2)))
e("s_lshl_b32 s%d, s%d, 2" % (sT0, sPI))
e("v_mov_b32 v6, s%d" % sT0)
e("global_load_dword %s, v6, %s" % (v(vXR), sp(P_X)))

sacc([(sG, 11)], QS_OFF)
e("v_add_u32 %s, s%d, %s" % (v(aQS), sT0, v(aL32)))
sacc([(sG, 11), (sC, 6), (sWAVE, 4)], QS_OFF)
e("v_mov_b32 %s, s%d" % (v(aQW), sT0))
e("v_and_b32 v6, 3, v3")
e("v_lshlrev_b32 v6, 8, v6")
e("v_lshl_add_u32 v6, v4, 4, v6")
e("v_add_u32 %s, 0x%x, v6" % (v(aQF), LQ))
sacc([(sG, 17), (sC, 12)], PO_OFF)
e("v_lshlrev_b32 v6, 4, v0")
e("v_add_u32 %s, s%d, v6" % (v(aPOW), sT0))
sacc([(2, 12)], OP_OFF)
e("v_add_u32 %s, s%d, v6" % (v(aOPW), sT0))
sacc([(sG, 11), (sC, 6), (sWAVE, 4)], ST_OFF)
e("v_mov_b32 %s, s%d" % (v(aSTW), sT0))
e("s_lshr_b32 s%d, s%d, 3" % (sT2, sC))
sacc([(sG, 11), (sT2, 4)], ST_OFF)
e("v_lshrrev_b32 v6, 1, %s" % v(vL))
e("v_lshlrev_b32 v7, 6, v6")
e("v_add_u32 %s, s%d, v7" % (v(aSTR), sT0))
sacc([(sG, 17), (sC, 7), (sWAVE, 5)], PO_OFF)
e("v_lshlrev_b32 v7, 12, v6")
e("v_and_b32 v6, 1, %s" % v(vL))
e("v_lshl_add_u32 v7, v6, 4, v7")
e("v_add_u32 %s, s%d, v7" % (v(aPOR), sT0))
sacc([(sPI, 4)], OP_OFF)
e("v_lshlrev_b32 v6, 12, %s" % v(vL))
e("v_add_u32 %s, s%d, v6" % (v(aOPR), sT0))
e("s_and_b32 s%d, s2, 31" % sT2)
sacc([(sT2, 11)], X1_OFF)
e("v_add_u32 %s, s%d, %s" % (v(aX1R), sT0, v(aL32)))
sacc([(sPI, 3)], X1_OFF)
e("v_lshlrev_b32 v6, 11, %s" % v(vL))
e("v_add_u32 %s, s%d, v6" % (v(aXW), sT0))
e("v_lshrrev_b32 v6, 2, v3")
e("v_lshl_add_u32 v6, v4, 2, v6")
e("v_lshlrev_b32 v7, 8, v6")
e("v_and_b32 v6, 7, v6")
e("v_lshl_add_u32 v7, v6, 5, v7")
e("v_and_b32 v6, 3, %s" % v(vL))
e("v_lshl_add_u32 v7, v6, 3, v7")
e("s_lshl_b32 s%d, s%d, 13" % (sT0, sWAVE))
e("v_add_u32 %s, s%d, v7" % (v(aVT), sT0))
sacc([(sWAVE, 11)], LSC)
e("v_lshlrev_b32 v6, 4, v3")
e("v_add_u32 %s, s%d, v6" % (v(aSCW), sT0))
sacc([(sWAVE, 2)], LSC)
e("v_add_u32 %s, s%d, %s" % (v(aSCR), sT0, v(aL32)))
e("s_mov_b32 s%d, %s" % (sC1, fh(LOG2E)))
e("s_mov_b32 s%d, %s" % (sC2, fh(SCALE)))
GC0 = -2.0 * 0.7978845608028654 * LOG2E
GC1 = GC0 * 0.044715
e("s_mov_b32 s%d, %s" % (sC3, fh(GC0)))
e("s_mov_b32 s%d, %s" % (sC4, fh(GC1)))
e("s_waitcnt lgkmcnt(0)")
e("s_add_u32 s%d, s%d, 1" % (sTAG, sTAG))

lab("LAYER")
e("s_cmp_lg_u32 s%d, 0" % sWAVE)
e("s_cbranch_scc1 QW")
e("s_cmp_lg_u32 s%d, 0" % sLAY)
e("s_cbranch_scc1 QPOLL")
e("s_waitcnt vmcnt(10)")
for i in range(4):
    e("v_lshlrev_b32 %s, 16, %s" % (v(XV + 2 * i), v(XL + i)))
    e("v_and_b32 %s, 0xffff0000, %s" % (v(XV + 2 * i + 1), v(XL + i)))
e("s_branch QLN")
lab("QPOLL")
G0 = T + 8
e("v_add_u32 v6, 0x%x, %s" % (X2_OFF - X1_OFF, v(aX1R)))
e("s_sub_u32 s%d, s%d, 1" % (sTAG, sTAG))
poll(["global_load_dwordx4 %s, v6, %s sc1" % (vr(G0, 4), sp(P_WS)),
      "global_load_dwordx4 %s, v6, %s offset:16 sc1" % (vr(G0 + 4, 4), sp(P_WS))],
     [G0 + 1, G0 + 3, G0 + 5, G0 + 7], T + 16, T + 17)
e("s_add_u32 s%d, s%d, 1" % (sTAG, sTAG))
for i in range(4):
    e("v_lshlrev_b32 %s, 16, %s" % (v(XV + 2 * i), v(G0 + 2 * i)))
    e("v_and_b32 %s, 0xffff0000, %s" % (v(XV + 2 * i + 1), v(G0 + 2 * i)))
lab("QLN")
ts()
layernorm(XV, [], T + 16)
e("v_add_u32 v6, 0x%x, %s" % (LH, v(aL32)))
e("ds_write_b128 v6, %s" % vr(XV, 4))
e("ds_write_b128 v6, %s offset:16" % vr(XV + 4, 4))
e("s_waitcnt lgkmcnt(0)")
e("s_barrier")
e("s_branch QG")
lab("QW")
e("v_add_u32 v6, 0x%x, %s" % (LH, v(aL32)))
e("s_barrier")
e("ds_read_b128 %s, v6" % vr(XV, 4))
e("ds_read_b128 %s, v6 offset:16" % vr(XV + 4, 4))
lab("QG")
e("s_cmp_lg_u32 s%d, 0" % sLAY)
e("s_cbranch_scc1 QG2")
sacc([(sWAVE, 3)], LWQ)
e("v_lshlrev_b32 v6, 8, %s" % v(vL))
e("v_add_u32 v6, s%d, v6" % sT0)
for i in range(8):
    e("ds_read_b64 %s, v6 offset:%d" % (vr(vWQ + 2 * i, 2), 32 * i))
lab("QG2")
e("s_waitcnt lgkmcnt(0)")
A = T + 24
U = T + 28
for i in range(8):
    for hlf in range(2):
        w = vWQ + 2 * i + hlf
        e("v_lshlrev_b32 %s, 16, %s" % (v(U), v(w)))
        e("v_and_b32 %s, 0xffff0000, %s" % (v(U + 1), v(w)))
        if i == 0:
            e("v_mul_f32 %s, %s, %s" % (v(A + 2 * hlf), v(XV), v(U)))
            e("v_mul_f32 %s, %s, %s" % (v(A + 2 * hlf + 1), v(XV), v(U + 1)))
        else:
            e("v_fmac_f32 %s, %s, %s" % (v(A + 2 * hlf), v(XV + i), v(U)))
            e("v_fmac_f32 %s, %s, %s" % (v(A + 2 * hlf + 1), v(XV + i), v(U + 1)))
allreduce("add", [A, A + 1, A + 2, A + 3], [U, U + 1, U + 2, U + 3])
e("v_cvt_pk_bf16_f32 %s, %s, %s" % (v(U), v(A), v(A + 1)))
e("v_mov_b32 %s, s%d" % (v(U + 1), sTAG))
e("v_cvt_pk_bf16_f32 %s, %s, %s" % (v(U + 2), v(A + 2), v(A + 3)))
e("v_mov_b32 %s, s%d" % (v(U + 3), sTAG))
mask_begin(1)
e("global_store_dwordx4 %s, %s, %s sc1" % (v(aQW), vr(U, 4), sp(P_WS)))
mask_end()
ts()
e("s_cmp_lg_u32 s%d, 0" % sWAVE)
e("s_cbranch_scc1 SW")
G0 = T
poll(["global_load_dwordx4 %s, %s, %s sc1" % (vr(G0, 4), v(aQS), sp(P_WS)),
      "global_load_dwordx4 %s, %s, %s offset:16 sc1" % (vr(G0 + 4, 4), v(aQS), sp(P_WS))],
     [G0 + 1, G0 + 3, G0 + 5, G0 + 7], T + 8, T + 9)
ts()
e("v_mov_b32 %s, %s" % (v(G0 + 1), v(G0 + 2)))
e("v_mov_b32 %s, %s" % (v(G0 + 2), v(G0 + 4)))
e("v_mov_b32 %s, %s" % (v(G0 + 3), v(G0 + 6)))
e("v_add_u32 v6, 0x%x, %s" % (LQ, v(aL16)))
e("ds_write_b128 v6, %s" % vr(G0, 4))
e("s_waitcnt lgkmcnt(0)")
lab("SW")
e("s_barrier")
QL = T
for s in range(4):
    e("ds_read_b128 %s, %s offset:%d" % (vr(QL + 4 * s, 4), v(aQF), 64 * s))
e("s_waitcnt vmcnt(0) lgkmcnt(0)")
SC0 = T + 32
for s in range(4):
    for Tt in range(2):
        c = "0" if s == 0 else vr(SC0 + 4 * Tt, 4)
        e("v_mfma_f32_16x16x32_bf16 %s, %s, %s, %s" % (vr(SC0 + 4 * Tt, 4), vr(vK + Tt * 16 + s * 4, 4), vr(QL + 4 * s, 4), c))
nop(8)
tmp = T + 40
for i in range(0, 8, 2):
    round_bf16_pair(SC0 + i, SC0 + i + 1, tmp)
    e("v_mul_f32 %s, s%d, %s" % (v(SC0 + i), sC2, v(SC0 + i)))
    e("v_mul_f32 %s, s%d, %s" % (v(SC0 + i + 1), sC2, v(SC0 + i + 1)))
    round_bf16_pair(SC0 + i, SC0 + i + 1, tmp)
M = T + 41
e("v_max3_f32 %s, %s, %s, %s" % (v(M), v(SC0), v(SC0 + 1), v(SC0 + 2)))
e("v_max3_f32 %s, %s, %s, %s" % (v(M), v(M), v(SC0 + 3), v(SC0 + 4)))
e("v_max3_f32 %s, %s, %s, %s" % (v(M), v(M), v(SC0 + 5), v(SC0 + 6)))
e("v_max_f32 %s, %s, %s" % (v(M), v(M), v(SC0 + 7)))
allreduce("max", [M], [tmp], rors=())
MM = T + 42
e("v_mul_f32 %s, s%d, %s" % (v(MM), sC1, v(M)))
for i in range(8):
    e("v_fma_f32 %s, %s, s%d, -%s" % (v(SC0 + i), v(SC0 + i), sC1, v(MM)))
for i in range(8):
    e("v_exp_f32 %s, %s" % (v(SC0 + i), v(SC0 + i)))
nop(1)
PA = T + 44
for i in range(4):
    e("v_cvt_pk_bf16_f32 %s, %s, %s" % (v(PA + i), v(SC0 + 2 * i), v(SC0 + 2 * i + 1)))
e("s_cmp_lg_u32 s%d, 0" % sLAY)
e("s_cbranch_scc1 SV")
e("s_barrier")
for Td in range(8):
    e("v_xor_b32 v6, 0x%x, %s" % (Td << 5, v(aVT)))
    e("ds_read_b64_tr_b16 %s, v6" % vr(vVF + 4 * Td, 2))
    e("ds_read_b64_tr_b16 %s, v6 offset:4096" % vr(vVF + 4 * Td + 2, 2))
e("s_waitcnt lgkmcnt(0)")
lab("SV")
ts()
D0 = T + 48
for Td in range(8):
    e("v_mfma_f32_16x16x32_bf16 %s, %s, %s, 0" % (vr(D0 + 4 * Td, 4), vr(PA, 4), vr(vVF + 4 * Td, 4)))
LS = T + 43
e("v_add_f32 %s, %s, %s" % (v(LS), v(SC0), v(SC0 + 1)))
for i in range(2, 8):
    e("v_add_f32 %s, %s, %s" % (v(LS), v(LS), v(SC0 + i)))
allreduce("add", [LS], [tmp], rors=())
sacc([(sWAVE, 5)], LSS)
e("v_lshlrev_b32 v6, 3, %s" % v(vL))
e("v_add_u32 v6, s%d, v6" % sT0)
e("v_mov_b32 %s, %s" % (v(T + 40), v(M)))
e("v_mov_b32 %s, %s" % (v(T + 41), v(LS)))
e("s_mov_b64 %s, exec" % sp(sEX))
e("s_mov_b64 exec, 15")
e("ds_write_b64 v6, %s" % vr(T + 40, 2))
e("s_mov_b64 exec, 0xffff")
for Td in range(8):
    e("ds_write_b128 %s, %s offset:%d" % (v(aSCW), vr(D0 + 4 * Td, 4), Td * 256))
e("s_mov_b64 exec, %s" % sp(sEX))
e("s_waitcnt lgkmcnt(0)")
e("s_barrier")
R = T
e("ds_read2_b32 %s, %s offset0:0 offset1:4" % (vr(R, 2), v(aSCR)))
for w_ in range(1, 4):
    e("v_add_u32 v6, 0x%x, %s" % (2048 * w_, v(aSCR)))
    e("ds_read2_b32 %s, v6 offset0:0 offset1:4" % vr(R + 2 * w_, 2))
sacc([(sWAVE, 3)], LSS)
e("v_mov_b32 v6, s%d" % sT0)
for w_ in range(4):
    e("ds_read_b64 %s, v6 offset:%d" % (vr(R + 8 + 2 * w_, 2), 32 * w_))
e("s_waitcnt lgkmcnt(0)")
MC, E0, LC, O0, O1 = T + 16, T + 17, T + 22, T + 24, T + 26
e("v_max3_f32 %s, %s, %s, %s" % (v(MC), v(R + 8), v(R + 10), v(R + 12)))
e("v_max_f32 %s, %s, %s" % (v(MC), v(MC), v(R + 14)))
for w_ in range(4):
    e("v_sub_f32 %s, %s, %s" % (v(E0 + w_), v(R + 8 + 2 * w_), v(MC)))
    e("v_mul_f32 %s, s%d, %s" % (v(E0 + w_), sC1, v(E0 + w_)))
for w_ in range(4):
    e("v_exp_f32 %s, %s" % (v(E0 + w_), v(E0 + w_)))
nop(1)
e("v_mul_f32 %s, %s, %s" % (v(LC), v(E0), v(R + 9)))
e("v_mul_f32 %s, %s, %s" % (v(O0), v(E0), v(R)))
e("v_mul_f32 %s, %s, %s" % (v(O1), v(E0), v(R + 1)))
for w_ in range(1, 4):
    e("v_fmac_f32 %s, %s, %s" % (v(LC), v(E0 + w_), v(R + 9 + 2 * w_)))
    e("v_fmac_f32 %s, %s, %s" % (v(O0), v(E0 + w_), v(R + 2 * w_)))
    e("v_fmac_f32 %s, %s, %s" % (v(O1), v(E0 + w_), v(R + 2 * w_ + 1)))
e("v_mov_b32 %s, s%d" % (v(O0 + 1), sTAG))
e("v_mov_b32 %s, s%d" % (v(O1 + 1), sTAG))
e("global_store_dwordx4 %s, %s, %s sc1" % (v(aPOW), vr(O0, 4), sp(P_WS)))
S4 = T + 28
e("v_mov_b32 %s, %s" % (v(S4), v(MC)))
e("v_mov_b32 %s, s%d" % (v(S4 + 1), sTAG))
e("v_mov_b32 %s, %s" % (v(S4 + 2), v(LC)))
e("v_mov_b32 %s, s%d" % (v(S4 + 3), sTAG))
mask_begin(1)
e("global_store_dwordx4 %s, %s, %s sc1" % (v(aSTW), vr(S4, 4), sp(P_WS)))
mask_end()
ts()
e("s_cmp_lg_u32 s%d, 0" % sLAY)
e("s_cbranch_scc1 OPH")
sacc([(sWAVE, 12)], LWO)
e("v_add_u32 v6, s%d, %s" % (sT0, v(aL16)))
for i in range(4):
    e("ds_read_b128 %s, v6 offset:%d" % (vr(vWO + 4 * i, 4), 1024 * i))
e("v_lshlrev_b32 v6, 1, v0")
for k in range(7):
    e("ds_read_u16 %s, v6 offset:%d" % (v(vW1 + k), LW1 + 512 * k))
    e("ds_read_u16 %s, v6 offset:%d" % (v(vB1 + k), LB1 + 512 * k))
    e("ds_read_u16 %s, v6 offset:%d" % (v(vW2 + k), LW2 + 512 * k))
e("s_waitcnt lgkmcnt(0)")
for k in range(7):
    for b in (vW1, vB1, vW2):
        e("v_lshlrev_b32 %s, 16, %s" % (v(b + k), v(b + k)))
e("v_lshlrev_b32 %s, 16, %s" % (v(vB2), v(vB2)))
e("v_and_b32 %s, 0xffff0000, %s" % (v(vXR + 1), v(vXR)))
e("v_lshlrev_b32 %s, 16, %s" % (v(vXR), v(vXR)))
lab("OPH")
SR, PR = T, T + 4
poll(["global_load_dwordx4 %s, %s, %s sc1" % (vr(SR, 4), v(aSTR), sp(P_WS)),
      "global_load_dwordx4 %s, %s, %s sc1" % (vr(PR, 4), v(aPOR), sp(P_WS))],
     [SR + 1, SR + 3, PR + 1, PR + 3], T + 8, T + 9)
ts()
Mx = T + 8
e("v_mov_b32 %s, %s" % (v(Mx), v(SR)))
allreduce("max", [Mx], [T + 9], rors=(2, 4, 8))
Ee = T + 10
e("v_sub_f32 %s, %s, %s" % (v(Ee), v(SR), v(Mx)))
e("v_mul_f32 %s, s%d, %s" % (v(Ee), sC1, v(Ee)))
e("v_exp_f32 %s, %s" % (v(Ee), v(Ee)))
nop(1)
A0, A1, A2 = T + 12, T + 13, T + 14
e("v_mul_f32 %s, %s, %s" % (v(A0), v(Ee), v(SR + 2)))
e("v_mul_f32 %s, %s, %s" % (v(A1), v(Ee), v(PR)))
e("v_mul_f32 %s, %s, %s" % (v(A2), v(Ee), v(PR + 2)))
allreduce("add", [A0, A1, A2], [T + 16, T + 17, T + 18], rors=(2, 4, 8))
e("v_rcp_f32 %s, %s" % (v(A0), v(A0)))
nop(1)
e("v_mul_f32 %s, %s, %s" % (v(A1), v(A1), v(A0)))
e("v_mul_f32 %s, %s, %s" % (v(A2), v(A2), v(A0)))
round_bf16_pair(A1, A2, T + 16)
OO = T + 20
nop(2)
e("v_mov_b32_dpp %s, %s quad_perm:[0,0,2,2] %s" % (v(OO), v(A1), DPPM))
e("v_mov_b32_dpp %s, %s quad_perm:[0,0,2,2] %s" % (v(OO + 1), v(A2), DPPM))
e("v_mov_b32_dpp %s, %s quad_perm:[1,1,3,3] %s" % (v(OO + 2), v(A1), DPPM))
e("v_mov_b32_dpp %s, %s quad_perm:[1,1,3,3] %s" % (v(OO + 3), v(A2), DPPM))
AC = T + 24
U = T + 32
for i in range(4):
    for k in range(4):
        w = vWO + 4 * i + k
        e("v_lshlrev_b32 %s, 16, %s" % (v(U), v(w)))
        e("v_and_b32 %s, 0xffff0000, %s" % (v(U + 1), v(w)))
        if i == 0:
            e("v_mul_f32 %s, %s, %s" % (v(AC + 2 * k), v(OO), v(U)))
            e("v_mul_f32 %s, %s, %s" % (v(AC + 2 * k + 1), v(OO), v(U + 1)))
        else:
            e("v_fmac_f32 %s, %s, %s" % (v(AC + 2 * k), v(OO + i), v(U)))
            e("v_fmac_f32 %s, %s, %s" % (v(AC + 2 * k + 1), v(OO + i), v(U + 1)))
sacc([(sWAVE, 11)], LOC)
e("v_add_u32 v6, s%d, %s" % (sT0, v(aL32)))
e("ds_write_b128 v6, %s" % vr(AC, 4))
e("ds_write_b128 v6, %s offset:16" % vr(AC + 4, 4))
e("v_lshlrev_b32 v6, 3, v0")
e("v_add_u32 v6, 0x%x, v6" % LOC)
e("s_waitcnt lgkmcnt(0)")
e("s_barrier")
R = T
for w_ in range(4):
    e("ds_read_b64 %s, v6 offset:%d" % (vr(R + 2 * w_, 2), 2048 * w_))
e("s_waitcnt lgkmcnt(0)")
O4 = T + 8
e("v_add_f32 %s, %s, %s" % (v(O4), v(R), v(R + 2)))
e("v_add_f32 %s, %s, %s" % (v(O4 + 2), v(R + 1), v(R + 3)))
e("v_add_f32 %s, %s, %s" % (v(R + 4), v(R + 4), v(R + 6)))
e("v_add_f32 %s, %s, %s" % (v(R + 5), v(R + 5), v(R + 7)))
e("v_add_f32 %s, %s, %s" % (v(O4), v(O4), v(R + 4)))
e("v_add_f32 %s, %s, %s" % (v(O4 + 2), v(O4 + 2), v(R + 5)))
e("v_mov_b32 %s, s%d" % (v(O4 + 1), sTAG))
e("v_mov_b32 %s, s%d" % (v(O4 + 3), sTAG))
e("global_store_dwordx4 %s, %s, %s sc1" % (v(aOPW), vr(O4, 4), sp(P_WS)))
ts()
e("s_cmp_lg_u32 s%d, 0" % sWAVE)
e("s_cbranch_scc1 MW")
XR = T + 16
AD = T + 40
for k in range(1, 4):
    e("v_add_u32 %s, 0x%x, %s" % (v(AD + k), 0x40000 * k, v(aOPR)))
loads = []; tags = []
for k in range(4):
    loads.append("global_load_dwordx4 %s, %s, %s sc1" % (vr(XR + 4 * k, 4), v(aOPR) if k == 0 else v(AD + k), sp(P_WS)))
    tags += [XR + 4 * k + 1, XR + 4 * k + 3]
poll(loads, tags, T + 32, T + 33)
ts()
Y0, Y1 = T + 32, T + 33
e("v_add_f32 %s, %s, %s" % (v(Y0), v(XR), v(XR + 4)))
e("v_add_f32 %s, %s, %s" % (v(Y1), v(XR + 2), v(XR + 6)))
e("v_add_f32 %s, %s, %s" % (v(XR + 8), v(XR + 8), v(XR + 12)))
e("v_add_f32 %s, %s, %s" % (v(XR + 10), v(XR + 10), v(XR + 14)))
e("v_add_f32 %s, %s, %s" % (v(Y0), v(Y0), v(XR + 8)))
e("v_add_f32 %s, %s, %s" % (v(Y1), v(Y1), v(XR + 10)))
allreduce("add", [Y0, Y1], [T + 34, T + 35])
round_bf16_pair(Y0, Y1, T + 34)
e("v_add_f32 %s, %s, %s" % (v(Y0), v(Y0), v(vXR)))
e("v_add_f32 %s, %s, %s" % (v(Y1), v(Y1), v(vXR + 1)))
e("v_cvt_pk_bf16_f32 %s, %s, %s" % (v(T + 36), v(Y0), v(Y1)))
e("v_mov_b32 %s, s%d" % (v(T + 37), sTAG))
mask_begin(0xffffffff)
e("global_store_dwordx2 %s, %s, %s sc1" % (v(aXW), vr(T + 36, 2), sp(P_WS)))
mask_end()
e("v_lshlrev_b32 %s, 16, %s" % (v(vXR), v(T + 36)))
e("v_and_b32 %s, 0xffff0000, %s" % (v(vXR + 1), v(T + 36)))
ts()
G0 = T + 8
poll(["global_load_dwordx4 %s, %s, %s sc1" % (vr(G0, 4), v(aX1R), sp(P_WS)),
      "global_load_dwordx4 %s, %s, %s offset:16 sc1" % (vr(G0 + 4, 4), v(aX1R), sp(P_WS))],
     [G0 + 1, G0 + 3, G0 + 5, G0 + 7], T + 18, T + 19)
ts()
for i in range(4):
    e("v_lshlrev_b32 %s, 16, %s" % (v(XV + 2 * i), v(G0 + 2 * i)))
    e("v_and_b32 %s, 0xffff0000, %s" % (v(XV + 2 * i + 1), v(G0 + 2 * i)))
H0, H1 = T + 18, T + 19
e("v_mov_b32 %s, %s" % (v(H0), v(vXR)))
e("v_mov_b32 %s, %s" % (v(H1), v(vXR + 1)))
layernorm(XV, [H0, H1], T + 24)
layernorm(XV, [H0, H1], T + 24, only_extra=True)
e("v_mov_b32 v6, 0x%x" % LHB)
mask_begin(1)
e("ds_write_b64 v6, %s" % vr(H0, 2))
mask_end()
e("s_waitcnt lgkmcnt(0)")
e("s_barrier")
e("s_branch MG")
lab("MW")
e("v_mov_b32 v6, 0x%x" % LHB)
e("s_barrier")
e("ds_read_b64 %s, v6" % vr(H0, 2))
e("s_waitcnt lgkmcnt(0)")
lab("MG")
ts()
Ya, Yb = T + 22, T + 23
a, b, t0, t1, t2 = T + 24, T + 25, T + 26, T + 27, T + 28
for k in range(7):
    e("v_mul_f32 %s, %s, %s" % (v(a), v(H0), v(vW1 + k)))
    e("v_mul_f32 %s, %s, %s" % (v(b), v(H1), v(vW1 + k)))
    round_bf16_pair(a, b, t2)
    e("v_add_f32 %s, %s, %s" % (v(a), v(a), v(vB1 + k)))
    e("v_add_f32 %s, %s, %s" % (v(b), v(b), v(vB1 + k)))
    round_bf16_pair(a, b, t2)
    e("v_mul_f32 %s, %s, %s" % (v(t0), v(a), v(a)))
    e("v_mul_f32 %s, %s, %s" % (v(t1), v(b), v(b)))
    e("v_mov_b32 %s, s%d" % (v(t2), sC3))
    e("v_fma_f32 %s, %s, s%d, %s" % (v(t0), v(t0), sC4, v(t2)))
    e("v_fma_f32 %s, %s, s%d, %s" % (v(t1), v(t1), sC4, v(t2)))
    e("v_mul_f32 %s, %s, %s" % (v(t0), v(t0), v(a)))
    e("v_mul_f32 %s, %s, %s" % (v(t1), v(t1), v(b)))
    e("v_exp_f32 %s, %s" % (v(t0), v(t0)))
    e("v_exp_f32 %s, %s" % (v(t1), v(t1)))
    nop(1)
    e("v_add_f32 %s, 1.0, %s" % (v(t0), v(t0)))
    e("v_add_f32 %s, 1.0, %s" % (v(t1), v(t1)))
    e("v_rcp_f32 %s, %s" % (v(t0), v(t0)))
    e("v_rcp_f32 %s, %s" % (v(t1), v(t1)))
    nop(1)
    e("v_mul_f32 %s, %s, %s" % (v(a), v(a), v(t0)))
    e("v_mul_f32 %s, %s, %s" % (v(b), v(b), v(t1)))
    round_bf16_pair(a, b, t2)
    if k == 0:
        e("v_mul_f32 %s, %s, %s" % (v(Ya), v(a), v(vW2 + k)))
        e("v_mul_f32 %s, %s, %s" % (v(Yb), v(b), v(vW2 + k)))
    else:
        e("v_fmac_f32 %s, %s, %s" % (v(Ya), v(a), v(vW2 + k)))
        e("v_fmac_f32 %s, %s, %s" % (v(Yb), v(b), v(vW2 + k)))
allreduce("add", [Ya, Yb], [T + 24, T + 25])
sacc([(sWAVE, 3)], LMC)
e("v_mov_b32 v6, s%d" % sT0)
mask_begin(1)
e("ds_write_b64 v6, %s" % vr(Ya, 2))
mask_end()
e("s_waitcnt lgkmcnt(0)")
e("s_barrier")
e("s_cmp_lg_u32 s%d, 0" % sWAVE)
e("s_cbranch_scc1 MSKIP")
e("v_mov_b32 v6, 0x%x" % LMC)
e("ds_read_b128 %s, v6" % vr(T + 24, 4))
e("ds_read_b128 %s, v6 offset:16" % vr(T + 28, 4))
e("s_waitcnt lgkmcnt(0)")
e("v_add_f32 %s, %s, %s" % (v(Ya), v(T + 24), v(T + 26)))
e("v_add_f32 %s, %s, %s" % (v(Yb), v(T + 25), v(T + 27)))
e("v_add_f32 %s, %s, %s" % (v(T + 28), v(T + 28), v(T + 30)))
e("v_add_f32 %s, %s, %s" % (v(T + 29), v(T + 29), v(T + 31)))
e("v_add_f32 %s, %s, %s" % (v(Ya), v(Ya), v(T + 28)))
e("v_add_f32 %s, %s, %s" % (v(Yb), v(Yb), v(T + 29)))
round_bf16_pair(Ya, Yb, T + 24)
e("v_add_f32 %s, %s, %s" % (v(Ya), v(Ya), v(vB2)))
e("v_add_f32 %s, %s, %s" % (v(Yb), v(Yb), v(vB2)))
round_bf16_pair(Ya, Yb, T + 24)
e("v_add_f32 %s, %s, %s" % (v(Ya), v(Ya), v(vXR)))
e("v_add_f32 %s, %s, %s" % (v(Yb), v(Yb), v(vXR + 1)))
e("v_cvt_pk_bf16_f32 %s, %s, %s" % (v(T + 26), v(Ya), v(Yb)))
e("v_mov_b32 %s, s%d" % (v(T + 27), sTAG))
e("s_cmp_lg_u32 s%d, 0" % sLAY)
e("s_cbranch_scc1 FINAL")
e("v_add_u32 v6, 0x%x, %s" % (X2_OFF - X1_OFF, v(aXW)))
mask_begin(0xffffffff)
e("global_store_dwordx2 v6, %s, %s sc1" % (vr(T + 26, 2), sp(P_WS)))
mask_end()
e("v_lshlrev_b32 %s, 16, %s" % (v(vXR), v(T + 26)))
e("v_and_b32 %s, 0xffff0000, %s" % (v(vXR + 1), v(T + 26)))
e("s_branch MDONE")
lab("FINAL")
e("s_lshl_b32 s%d, s%d, 2" % (sT0, sPI))
e("v_mov_b32 v6, s%d" % sT0)
mask_begin(1)
e("global_store_dword v6, %s, %s" % (v(T + 26), sp(P_OUT)))
e("s_cmp_lg_u32 s2, 0")
e("s_cbranch_scc1 NOEP")
e("v_mov_b32 v6, 0")
e("global_store_dword v6, %s, %s" % (v(T + 27), sp(P_WS)))
lab("NOEP")
mask_end()
lab("MDONE")
ts()
lab("MSKIP")
e("s_add_u32 s%d, s%d, 1" % (sTAG, sTAG))
e("s_add_u32 s%d, s%d, 1" % (sLAY, sLAY))
e("s_cmp_lt_u32 s%d, 2" % sLAY)
e("s_cbranch_scc1 LAYER")

assert ts_count[0] <= NTS, ts_count[0]
if TS == 9999:
    e("s_cmp_lg_u32 s%d, 0" % sWAVE)
    e("s_cbranch_scc1 END")
    mask_begin(1)
    e("s_lshl_b32 s%d, s2, 7" % sT0)
    e("s_add_u32 s%d, s%d, 0x2000000" % (sT0, sT0))
    e("v_mov_b32 v6, s%d" % sT0)
    e("v_mov_b32 v7, s%d" % (sTSB + 2 * NTS))
    e("global_store_dword v6, v7, %s" % sp(P_WS))
    idx = 1
    for lay in range(2):
        for i in range(ts_count[0]):
            e("v_mov_b32 v7, s%d" % (sTSB + lay * NTS + i))
            e("global_store_dword v6, v7, %s offset:%d" % (sp(P_WS), 4 * idx))
            idx += 1
    mask_end()
if TS == 1:
    e("s_cmp_lg_u32 s%d, 0" % sWAVE)
    e("s_cbranch_scc1 END")
    e("s_cmp_lg_u32 s2, 0")
    e("s_cbranch_scc1 END")
    mask_begin(1)
    e("v_mov_b32 v6, 0")
    sel = [0, 1, 2, 4, 5, 6, 7, 9, 11] + [NTS + i for i in (0, 2, 4, 5, 7, 9, 11)]
    for idx, i in enumerate(sel):
        e("s_sub_u32 s%d, s%d, s%d" % (sT0, sTSB + i, sTSB + 2 * NTS))
        e("v_mov_b32 v7, s%d" % sT0)
        e("global_store_dword v6, v7, %s offset:%d" % (sp(P_DBG), 4 * idx))
    mask_end()
e("s_branch END")

lab("LOADER")
e("s_sub_u32 s%d, s%d, 4" % (sWAVE, sWAVE))
e("v_lshrrev_b32 v3, 1, %s" % v(vL))
e("v_lshlrev_b32 v3, 13, v3")
e("v_and_b32 v4, 1, %s" % v(vL))
e("v_lshl_add_u32 v3, v4, 4, v3")
sacc([(sWAVE, 20), (sG, 10), (sC, 5)], 0)
e("v_add_u32 v3, s%d, v3" % sT0)
e("s_lshl_b32 s%d, s%d, 12" % (sT2, sWAVE))
for i in range(4):
    e("s_add_u32 s%d, s%d, 0x%x" % (sT3, sT2, LWQ + 1024 * i))
    e("s_mov_b32 m0, s%d" % sT3)
    nop(1)
    e("global_load_lds_dwordx4 v3, %s nt" % sp(P_WQ))
    e("v_add_u32 v3, 0x40000, v3")
e("s_waitcnt vmcnt(0)")
e("s_barrier")
e("v_and_b32 v3, 15, %s" % v(vL))
e("v_lshrrev_b32 v4, 4, %s" % v(vL))
e("v_lshrrev_b32 v5, 1, v3")
e("v_xor_b32 v6, v5, v4")
e("v_xor_b32 v7, 4, v6")
e("v_and_b32 v5, 1, v3")
e("v_lshl_add_u32 v6, v6, 1, v5")
e("v_lshl_add_u32 v7, v7, 1, v5")
e("v_lshlrev_b32 v6, 4, v6")
e("v_lshlrev_b32 v7, 4, v7")
e("v_lshl_add_u32 v6, v4, 8, v6")
e("v_lshl_add_u32 v7, v4, 8, v7")
sacc([(sG, 24), (sC, 15), (sWAVE, 13)], W0 * 256)
e("v_add_u32 v6, s%d, v6" % sT0)
e("v_add_u32 v7, s%d, v7" % sT0)
e("v_add_u32 v7, 0x400, v7")
e("s_lshl_b32 s%d, s%d, 13" % (sT2, sWAVE))
for i in range(8):
    e("s_add_u32 s%d, s%d, 0x%x" % (sT3, sT2, LV + 1024 * i))
    e("s_mov_b32 m0, s%d" % sT3)
    nop(1)
    e("global_load_lds_dwordx4 %s, %s nt" % ("v6" if i % 2 == 0 else "v7", sp(P_V)))
    if i % 2 == 0:
        e("v_add_u32 v6, 0x800, v6")
    else:
        e("v_add_u32 v7, 0x800, v7")
sacc([(sG, 19), (sC, 14), (sWAVE, 12)], 0)
e("v_add_u32 v6, s%d, %s" % (sT0, v(aL16)))
e("s_lshl_b32 s%d, s%d, 12" % (sT1, sWAVE))
for i in range(4):
    e("s_add_u32 s%d, s%d, 0x%x" % (sT3, sT1, LWO + 1024 * i))
    e("s_mov_b32 m0, s%d" % sT3)
    nop(1)
    e("global_load_lds_dwordx4 v6, %s nt" % sp(P_WO))
    e("v_add_u32 v6, 0x400, v6")
e("s_lshl_b32 s%d, s%d, 10" % (sT1, sWAVE))
e("v_add_u32 v6, s%d, %s" % (sT1, v(aL16)))
e("s_mov_b64 %s, exec" % sp(sEX))
e("s_cmp_lg_u32 s%d, 3" % sWAVE)
e("s_cbranch_scc1 LD_FULL")
e("s_mov_b32 exec_hi, 0")
lab("LD_FULL")
for base, ptr in ((LW1, P_W1), (LB1, P_B1), (LW2, P_W2)):
    e("s_add_u32 s%d, s%d, 0x%x" % (sT3, sT1, base))
    e("s_mov_b32 m0, s%d" % sT3)
    nop(1)
    e("global_load_lds_dwordx4 v6, %s" % sp(ptr))
e("s_mov_b64 exec, %s" % sp(sEX))
def lts(i):
    if TS != 9999: return
    e("s_memrealtime s[98:99]")
    e("s_waitcnt lgkmcnt(0)")
    e("s_mov_b32 s%d, s98" % (60 + i))
lts(0)
e("s_barrier")
e("s_waitcnt vmcnt(7)")
lts(1)
e("s_barrier")
e("s_waitcnt vmcnt(0)")
lts(2)
e("s_barrier")
if TS == 9999:
    e("s_cmp_lg_u32 s%d, 0" % sWAVE)
    e("s_cbranch_scc1 END")
    mask_begin(1)
    e("s_lshl_b32 s%d, s2, 7" % sT0)
    e("s_add_u32 s%d, s%d, 0x2000000" % (sT0, sT0))
    e("v_mov_b32 v6, s%d" % sT0)
    for i in range(3):
        e("v_mov_b32 v7, s%d" % (60 + i))
        e("global_store_dword v6, v7, %s offset:%d" % (sp(P_WS), 4 * (25 + i)))
    mask_end()
lab("END")
e("s_endpgm")

L.append('.section .rodata,"a"')
L.append(".p2align 6")
L.append(".amdhsa_kernel %s_kernel" % NAME)
L.append("  .amdhsa_next_free_vgpr 256")
L.append("  .amdhsa_next_free_sgpr 102")
L.append("  .amdhsa_accum_offset 256")
L.append("  .amdhsa_group_segment_fixed_size 0")
L.append("  .amdhsa_kernarg_size 104")
L.append("  .amdhsa_user_sgpr_count 2")
L.append("  .amdhsa_user_sgpr_kernarg_segment_ptr 1")
L.append("  .amdhsa_system_sgpr_workgroup_id_x 1")
L.append("  .amdhsa_float_denorm_mode_32 3")
L.append(".end_amdhsa_kernel")
open(OUT, "w").write("\n".join(L) + "\n")
print("wrote", OUT, "lines", len(L), "ts", ts_count[0])
```

```python
import sys, struct

NAME = "interleave_layers__sliding_block_cached__mixer_token_mlp__decode"
TS = int(sys.argv[2]) if len(sys.argv) > 2 else 0
OUT = sys.argv[1] if len(sys.argv) > 1 else "cdna_kernels/%s.s" % NAME

L = []
def e(s): L.append("  " + s)
def lab(s): L.append(s + ":")
def nop(n):
    while n > 0:
        k = min(n, 16)
        e("s_nop %d" % (k - 1))
        n -= k
def f2u(x): return struct.unpack("<I", struct.pack("<f", x))[0]
def fh(x): return "0x%08x" % f2u(x)

QS_OFF = 0x1000
ST_OFF = 0x8000
XID_OFF = 0xc000
X1_OFF = 0x10000
X2_OFF = 0x20000
PO_OFF = 0x100000
OP_OFF = 0x200000
LV = 0
LWO = 32768
LW1 = 49152
LB1 = LW1 + 3584
LW2 = LB1 + 3584
LSS = 59904
LMC = 60160
LHB = 60288
LFL = 60352
LQ = 60416
LH = 61440
LSC = 63488
LOC = LSC + 8192
LWQ = LOC + 8192
LDS_TOTAL = LWQ + 16384

W0 = 65536 - 4096
LOG2E = 1.4426950408889634
SCALE = 128.0 ** -0.5

sWAVE = 4; sG = 5; sC = 6; sTAG = 7
sT0, sT1, sT2, sT3 = 8, 9, 10, 11
sCNT = 12
sEX = 14
P_X, P_K, P_V, P_WQ, P_WO, P_BX, P_W1, P_B1, P_W2, P_B2, P_OUT, P_DBG, P_WS = [16 + 2 * i for i in range(13)]
sLAY = 42; sPI = 43
sC1 = 44; sC2 = 46; sC3 = 48; sC4 = 50
sFAST = 13; sLAY2 = 94; sPIV = 52; sNPIV = 54; sWS2 = 90; sPB = 92
SDELTA = 0x400000
sTSB = 56
def sp(i): return "s[%d:%d]" % (i, i + 1)

vL = 1
vWQF = 16; vK = 48; vVF = 80; vWOF = 112
vW1 = 144; vB1 = 152; vW2 = 160; vB2 = 168
vXR = 170
aQS = 172; aPOW = 173; aSTW = 174; aSTR = 175; aPOR = 176; aOPW = 177; aOPR = 178
aX1R = 179; aXW = 180; aQW = 181; aVT = 182; aSCW = 183; aSCR = 184; aL16 = 185
aQF = 186; aL32 = 187
cC3 = 188
T = 192
def v(i): return "v%d" % i
def vr(i, n): return "v[%d:%d]" % (i, i + n - 1)
def vp(i): return vr(i, 2)

NTS = 13
ts_count = [0]
def ts():
    if not TS: return
    i = ts_count[0]; ts_count[0] += 1
    e("s_memtime s[98:99]" if TS != 9999 else "s_memrealtime s[98:99]")
    e("s_waitcnt lgkmcnt(0)")
    e("s_cmp_eq_u32 s%d, 0" % sLAY)
    e("s_cselect_b32 s%d, s98, s%d" % (sTSB + i, sTSB + i))
    e("s_cselect_b32 s%d, s%d, s98" % (sTSB + NTS + i, sTSB + NTS + i))

DPPM = "row_mask:0xf bank_mask:0xf"

def allreduce(op, regs, tmps, rors=(1, 2, 4, 8)):
    ins = "v_add_f32" if op == "add" else "v_max_f32"
    n = len(regs)
    pad = max(0, 2 - (n - 1))
    nop(2)
    for r in rors:
        for x in regs:
            e("%s_dpp %s, %s, %s row_ror:%d %s" % (ins, v(x), v(x), v(x), r, DPPM))
        nop(pad)
    for sw in ("v_permlane16_swap_b32", "v_permlane32_swap_b32"):
        for x, t in zip(regs, tmps):
            e("v_mov_b32 %s, %s" % (v(t), v(x)))
        nop(pad)
        for x, t in zip(regs, tmps):
            e("%s %s, %s" % (sw, v(x), v(t)))
        nop(1)
        for x, t in zip(regs, tmps):
            e("%s %s, %s, %s" % (ins, v(x), v(x), v(t)))
        nop(pad)

def round_bf16_pair(a, b, tmp):
    e("v_cvt_pk_bf16_f32 %s, %s, %s" % (v(tmp), v(a), v(b)))
    e("v_lshlrev_b32 %s, 16, %s" % (v(a), v(tmp)))
    e("v_and_b32 %s, 0xffff0000, %s" % (v(b), v(tmp)))

def layernorm(X, extra, tb, only_extra=False):
    s2, q2, d2, m, r, t, t2 = tb, tb + 2, tb + 4, tb + 6, tb + 8, tb + 7, tb + 9
    nop(1)
    e("v_readfirstlane_b32 s%d, %s" % (sPIV, v(X)))
    nop(1)
    e("s_xor_b32 s%d, s%d, 0x80000000" % (sNPIV, sPIV))
    nop(1)
    e("v_pk_add_f32 %s, %s, %s op_sel_hi:[1,0]" % (vp(s2), vp(X), sp(sNPIV)))
    e("v_pk_mul_f32 %s, %s, %s" % (vp(q2), vp(s2), vp(s2)))
    for i in range(2, 8, 2):
        e("v_pk_add_f32 %s, %s, %s op_sel_hi:[1,0]" % (vp(d2), vp(X + i), sp(sNPIV)))
        e("v_pk_add_f32 %s, %s, %s" % (vp(s2), vp(s2), vp(d2)))
        e("v_pk_fma_f32 %s, %s, %s, %s" % (vp(q2), vp(d2), vp(d2), vp(q2)))
    s, q = s2, q2
    e("v_add_f32 %s, %s, %s" % (v(s), v(s2), v(s2 + 1)))
    e("v_add_f32 %s, %s, %s" % (v(q), v(q2), v(q2 + 1)))
    allreduce("add", [s, q], [t, t2])
    e("v_mul_f32 %s, %s, %s" % (v(s), fh(1.0 / 512), v(s)))
    e("v_mul_f32 %s, %s, %s" % (v(q), fh(1.0 / 512), v(q)))
    e("v_fma_f32 %s, -%s, %s, %s" % (v(q), v(s), v(s), v(q)))
    e("v_max_f32 %s, 0, %s" % (v(q), v(q)))
    e("v_add_f32 %s, s%d, %s" % (v(m), sPIV, v(s)))
    round_bf16_pair(m, q, t)
    e("v_add_f32 %s, %s, %s" % (v(q), fh(1e-5), v(q)))
    e("v_cvt_pk_bf16_f32 %s, %s, %s" % (v(t), v(q), v(q)))
    e("v_lshlrev_b32 %s, 16, %s" % (v(q), v(t)))
    e("v_sqrt_f32 %s, %s" % (v(q), v(q)))
    e("v_xor_b32 %s, 0x80000000, %s" % (v(m), v(m)))
    e("v_cvt_pk_bf16_f32 %s, %s, %s" % (v(t), v(q), v(q)))
    e("v_lshlrev_b32 %s, 16, %s" % (v(q), v(t)))
    e("v_rcp_f32 %s, %s" % (v(r), v(q)))
    regs = ([] if only_extra else [X + i for i in range(0, 8, 2)]) + list(extra)
    for a in regs:
        e("v_pk_add_f32 %s, %s, %s op_sel_hi:[1,0]" % (vp(a), vp(a), vp(m)))
        round_bf16_pair(a, a + 1, t)
        e("v_pk_mul_f32 %s, %s, %s op_sel_hi:[1,0]" % (vp(a), vp(a), vp(r)))
        round_bf16_pair(a, a + 1, t)

poll_id = [0]
def poll(loads, tags, tmin, tmax, dual=False):
    pid = poll_id[0]; poll_id[0] += 1
    e("s_mov_b32 s%d, 0x100000" % sCNT)
    lab("POLL%d" % pid)
    if dual:
        e("s_and_b32 s%d, s%d, 7" % (sT0, sCNT))
        e("s_or_b32 s%d, s%d, s%d" % (sT0, sT0, sLAY2))
        e("s_cmp_eq_u32 s%d, 1" % sT0)
        e("s_cselect_b64 %s, %s, %s" % (sp(sPB), sp(sWS2), sp(P_WS)))
    for ld in loads:
        e(ld)
    e("s_waitcnt vmcnt(0)")
    tg = list(tags)
    first = tg[:3] if len(tg) >= 3 else tg[:2]
    rest = tg[len(first):]
    if len(first) == 3:
        e("v_min3_u32 %s, %s, %s, %s" % (v(tmin), v(first[0]), v(first[1]), v(first[2])))
        e("v_max3_u32 %s, %s, %s, %s" % (v(tmax), v(first[0]), v(first[1]), v(first[2])))
    else:
        e("v_min_u32 %s, %s, %s" % (v(tmin), v(first[0]), v(first[1])))
        e("v_max_u32 %s, %s, %s" % (v(tmax), v(first[0]), v(first[1])))
    while rest:
        if len(rest) >= 2:
            e("v_min3_u32 %s, %s, %s, %s" % (v(tmin), v(tmin), v(rest[0]), v(rest[1])))
            e("v_max3_u32 %s, %s, %s, %s" % (v(tmax), v(tmax), v(rest[0]), v(rest[1])))
            rest = rest[2:]
        else:
            e("v_min_u32 %s, %s, %s" % (v(tmin), v(tmin), v(rest[0])))
            e("v_max_u32 %s, %s, %s" % (v(tmax), v(tmax), v(rest[0])))
            rest = rest[1:]
    e("v_cmp_ne_u32 vcc, s%d, %s" % (sTAG, v(tmin)))
    e("v_cmp_ne_u32 %s, s%d, %s" % (sp(sT0), sTAG, v(tmax)))
    nop(1)
    e("s_or_b64 vcc, vcc, %s" % sp(sT0))
    e("s_cmp_eq_u64 vcc, 0")
    e("s_cbranch_scc1 POLLX%d" % pid)
    e("s_sub_u32 s%d, s%d, 1" % (sCNT, sCNT))
    e("s_cbranch_scc0 POLL%d" % pid)
    lab("POLLX%d" % pid)

def mask_begin(m):
    e("s_mov_b64 %s, exec" % sp(sEX))
    if m == 0xffffffff:
        e("s_mov_b32 exec_hi, 0")
    else:
        e("s_mov_b64 exec, 0x%x" % m)
def mask_end():
    e("s_mov_b64 exec, %s" % sp(sEX))

def sacc(terms, const):
    first = True
    for reg, sh in terms:
        if first:
            e("s_lshl_b32 s%d, s%d, %d" % (sT0, reg, sh)); first = False
        else:
            e("s_lshl_b32 s%d, s%d, %d" % (sT1, reg, sh))
            e("s_add_u32 s%d, s%d, s%d" % (sT0, sT0, sT1))
    if const:
        e("s_add_u32 s%d, s%d, 0x%x" % (sT0, sT0, const))

def gstore(addr, data):
    e("global_store_dwordx4 %s, %s, %s" % (addr, data, sp(P_WS)))
    e("global_store_dwordx4 %s, %s, %s sc1" % (addr, data, sp(sWS2)))

gst_id = [0]
def fstore(addr, data):
    i = gst_id[0]; gst_id[0] += 1
    e("s_cmp_lg_u32 s%d, 0" % sFAST)
    e("s_cbranch_scc1 GSF%d" % i)
    e("global_store_dwordx4 %s, %s, %s sc1" % (addr, data, sp(P_WS)))
    e("s_branch GSD%d" % i)
    lab("GSF%d" % i)
    e("global_store_dwordx4 %s, %s, %s" % (addr, data, sp(P_WS)))
    lab("GSD%d" % i)

def bcast_sel(reg):
    return (reg & ~1, reg & 1)

def load_mixer_weights(tidreg):
    e("v_lshlrev_b32 v6, 1, %s" % tidreg)
    for k in range(7):
        e("ds_read_u16 %s, v6 offset:%d" % (v(vW1 + k), LW1 + 512 * k))
        e("ds_read_u16 %s, v6 offset:%d" % (v(vB1 + k), LB1 + 512 * k))
        e("ds_read_u16 %s, v6 offset:%d" % (v(vW2 + k), LW2 + 512 * k))
    e("v_mov_b32 %s, 0" % v(vW1 + 7))
    e("v_mov_b32 %s, 0" % v(vB1 + 7))
    e("v_mov_b32 %s, 0" % v(vW2 + 7))
    e("v_mov_b32 %s, s%d" % (v(cC3), sC3))
    e("v_mov_b32 %s, s%d" % (v(cC3 + 1), sC3))
    e("s_waitcnt lgkmcnt(0)")
    for k in range(7):
        for b in (vW1, vB1, vW2):
            e("v_lshlrev_b32 %s, 16, %s" % (v(b + k), v(b + k)))

def mixer(H, hsel, Y):
    a, t, t2 = T + 24, T + 26, T + 28
    for k in range(0, 8, 2):
        e("v_pk_mul_f32 %s, %s, %s op_sel:[0,%d] op_sel_hi:[1,%d]" % (vp(a), vp(vW1 + k), vp(H), hsel, hsel))
        round_bf16_pair(a, a + 1, t2)
        e("v_pk_add_f32 %s, %s, %s" % (vp(a), vp(a), vp(vB1 + k)))
        round_bf16_pair(a, a + 1, t2)
        e("v_pk_mul_f32 %s, %s, %s" % (vp(t), vp(a), vp(a)))
        e("v_pk_fma_f32 %s, %s, %s, %s op_sel_hi:[1,0,1]" % (vp(t), vp(t), sp(sC4), vp(cC3)))
        e("v_pk_mul_f32 %s, %s, %s" % (vp(t), vp(t), vp(a)))
        e("v_exp_f32 %s, %s" % (v(t), v(t)))
        e("v_exp_f32 %s, %s" % (v(t + 1), v(t + 1)))
        nop(1)
        e("v_pk_add_f32 %s, %s, 1.0 op_sel_hi:[1,0]" % (vp(t), vp(t)))
        e("v_rcp_f32 %s, %s" % (v(t), v(t)))
        e("v_rcp_f32 %s, %s" % (v(t + 1), v(t + 1)))
        nop(1)
        e("v_pk_mul_f32 %s, %s, %s" % (vp(a), vp(a), vp(t)))
        round_bf16_pair(a, a + 1, t2)
        if k == 0:
            e("v_pk_mul_f32 %s, %s, %s" % (vp(Y), vp(a), vp(vW2 + k)))
        else:
            e("v_pk_fma_f32 %s, %s, %s, %s" % (vp(Y), vp(a), vp(vW2 + k), vp(Y)))
    e("v_add_f32 %s, %s, %s" % (v(Y), v(Y), v(Y + 1)))
    allreduce("add", [Y], [T + 24])

hdr = open("cdna_kernels/%s.s.ref" % NAME).read().split("\n")
for ln in hdr:
    if ln.startswith("; @launch"):
        L.append("; @launch grid=(256,1,1) block=(512,1,1) lds=%d" % LDS_TOTAL)
        break
    L.append(ln)
L.append('.amdgcn_target "amdgcn-amd-amdhsa--gfx950"')
L.append(".text")
L.append(".globl %s_kernel" % NAME)
L.append(".p2align 8")
L.append(".type %s_kernel,@function" % NAME)
lab("%s_kernel" % NAME)

e("s_cmp_ge_u32 s2, 256")
e("s_cbranch_scc1 END")
e("s_load_dwordx16 s[16:31], s[0:1], 0")
e("s_load_dwordx8 s[32:39], s[0:1], 64")
e("s_load_dwordx2 s[40:41], s[0:1], 96")
e("v_and_b32 %s, 63, v0" % v(vL))
e("v_lshrrev_b32 v2, 6, v0")
e("s_and_b32 s%d, s2, 7" % sG)
e("s_lshr_b32 s%d, s2, 3" % sC)
e("v_readfirstlane_b32 s%d, v2" % sWAVE)
e("v_lshlrev_b32 %s, 4, %s" % (v(aL16), v(vL)))
e("v_lshlrev_b32 %s, 5, %s" % (v(aL32), v(vL)))
e("s_mov_b32 s%d, 0" % sLAY)
e("s_lshl_b32 s%d, s%d, 5" % (sPI, sG))
e("s_add_u32 s%d, s%d, s%d" % (sPI, sPI, sC))
e("s_mov_b32 s%d, %s" % (sC1, fh(LOG2E)))
e("s_mov_b32 s%d, %s" % (sC2, fh(SCALE)))
GC0 = -2.0 * 0.7978845608028654 * LOG2E
GC1 = GC0 * 0.044715
e("s_mov_b32 s%d, %s" % (sC3, fh(GC0)))
e("s_mov_b32 s%d, %s" % (sC4, fh(GC1)))
e("s_waitcnt lgkmcnt(0)")
e("s_cmp_ge_u32 s%d, 4" % sWAVE)
e("s_cbranch_scc1 LOADER")
e("s_load_dword s%d, %s, 0" % (sTAG, sp(P_WS)))

XV = T
XL = T + 8
if TS:
    e("s_memtime s[98:99]" if TS != 9999 else "s_memrealtime s[98:99]")
    e("s_waitcnt lgkmcnt(0)")
    e("s_mov_b32 s%d, s98" % (sTSB + 2 * NTS))
e("s_cmp_lg_u32 s%d, 0" % sWAVE)
e("s_cbranch_scc1 NOX")
e("global_load_dwordx4 %s, %s, %s" % (vr(XL, 4), v(aL16), sp(P_X)))
lab("NOX")
sacc([(sG, 24), (sC, 15), (sWAVE, 13)], W0 * 256)
e("v_and_b32 v3, 15, %s" % v(vL))
e("v_lshrrev_b32 v4, 4, %s" % v(vL))
e("v_lshlrev_b32 v2, 8, v3")
e("v_lshl_add_u32 v2, v4, 4, v2")
e("v_add_u32 v2, s%d, v2" % sT0)
e("v_add_u32 v5, 0x1000, v2")
for Tt in range(2):
    for s in range(4):
        e("global_load_dwordx4 %s, %s, %s offset:%d nt" % (vr(vK + Tt * 16 + s * 4, 4), "v2" if Tt == 0 else "v5", sp(P_K), s * 64))
e("v_mov_b32 v6, 0")
e("global_load_ushort %s, v6, %s" % (v(vB2), sp(P_B2)))
e("s_lshl_b32 s%d, s%d, 2" % (sT0, sPI))
e("v_mov_b32 v6, s%d" % sT0)
e("global_load_dword %s, v6, %s" % (v(vXR), sp(P_X)))

sacc([(sG, 11)], QS_OFF)
e("v_add_u32 %s, s%d, %s" % (v(aQS), sT0, v(aL32)))
sacc([(sG, 11), (sC, 6), (sWAVE, 4)], QS_OFF)
e("v_mov_b32 %s, s%d" % (v(aQW), sT0))
e("v_and_b32 v6, 3, v3")
e("v_lshlrev_b32 v6, 8, v6")
e("v_lshl_add_u32 v6, v4, 4, v6")
e("v_add_u32 %s, 0x%x, v6" % (v(aQF), LQ))
sacc([(sG, 17), (sC, 12)], PO_OFF)
e("v_lshlrev_b32 v6, 4, v0")
e("v_add_u32 %s, s%d, v6" % (v(aPOW), sT0))
sacc([(2, 12)], OP_OFF)
e("v_add_u32 %s, s%d, v6" % (v(aOPW), sT0))
sacc([(sG, 11), (sC, 6), (sWAVE, 4)], ST_OFF)
e("v_mov_b32 %s, s%d" % (v(aSTW), sT0))
e("s_lshr_b32 s%d, s%d, 3" % (sT2, sC))
sacc([(sG, 11), (sT2, 4)], ST_OFF)
e("v_lshrrev_b32 v6, 1, %s" % v(vL))
e("v_lshlrev_b32 v7, 6, v6")
e("v_add_u32 %s, s%d, v7" % (v(aSTR), sT0))
sacc([(sG, 17), (sC, 7), (sWAVE, 5)], PO_OFF)
e("v_lshlrev_b32 v7, 12, v6")
e("v_and_b32 v6, 1, %s" % v(vL))
e("v_lshl_add_u32 v7, v6, 4, v7")
e("v_add_u32 %s, s%d, v7" % (v(aPOR), sT0))
sacc([(sPI, 4)], OP_OFF)
e("v_lshlrev_b32 v6, 12, %s" % v(vL))
e("v_add_u32 %s, s%d, v6" % (v(aOPR), sT0))
sacc([(sG, 11)], X1_OFF)
e("v_add_u32 %s, s%d, %s" % (v(aX1R), sT0, v(aL32)))
sacc([(sPI, 3)], X1_OFF)
e("v_lshlrev_b32 v6, 11, %s" % v(vL))
e("v_add_u32 %s, s%d, v6" % (v(aXW), sT0))
e("v_lshrrev_b32 v6, 2, v3")
e("v_lshl_add_u32 v6, v4, 2, v6")
e("v_lshlrev_b32 v7, 8, v6")
e("v_and_b32 v6, 7, v6")
e("v_lshl_add_u32 v7, v6, 5, v7")
e("v_and_b32 v6, 3, %s" % v(vL))
e("v_lshl_add_u32 v7, v6, 3, v7")
e("s_lshl_b32 s%d, s%d, 13" % (sT0, sWAVE))
e("v_add_u32 %s, s%d, v7" % (v(aVT), sT0))
sacc([(sWAVE, 11)], LSC)
e("v_lshlrev_b32 v6, 4, v3")
e("v_add_u32 %s, s%d, v6" % (v(aSCW), sT0))
sacc([(sWAVE, 2)], LSC)
e("v_add_u32 %s, s%d, %s" % (v(aSCR), sT0, v(aL32)))
e("s_add_u32 s%d, s%d, 0x%x" % (sWS2, P_WS, SDELTA))
e("s_addc_u32 s%d, s%d, 0" % (sWS2 + 1, P_WS + 1))
e("s_waitcnt lgkmcnt(0)")
e("s_add_u32 s%d, s%d, 1" % (sTAG, sTAG))

lab("LAYER")
e("s_lshl_b32 s%d, s%d, 3" % (sLAY2, sLAY))
e("s_cmp_lg_u32 s%d, 0" % sWAVE)
e("s_cbranch_scc1 QW")
e("s_cmp_lg_u32 s%d, 0" % sLAY)
e("s_cbranch_scc1 QPOLL")
e("s_waitcnt vmcnt(10)")
for i in range(4):
    e("v_lshlrev_b32 %s, 16, %s" % (v(XV + 2 * i), v(XL + i)))
    e("v_and_b32 %s, 0xffff0000, %s" % (v(XV + 2 * i + 1), v(XL + i)))
e("s_branch QLN")
lab("QPOLL")
G0 = T + 8
e("v_add_u32 v6, 0x%x, %s" % (X2_OFF - X1_OFF, v(aX1R)))
e("s_sub_u32 s%d, s%d, 1" % (sTAG, sTAG))
poll(["global_load_dwordx4 %s, v6, %s sc1" % (vr(G0, 4), sp(P_WS)),
      "global_load_dwordx4 %s, v6, %s offset:16 sc1" % (vr(G0 + 4, 4), sp(P_WS))],
     [G0 + 1, G0 + 3, G0 + 5, G0 + 7], T + 16, T + 17)
e("s_add_u32 s%d, s%d, 1" % (sTAG, sTAG))
for i in range(4):
    e("v_lshlrev_b32 %s, 16, %s" % (v(XV + 2 * i), v(G0 + 2 * i)))
    e("v_and_b32 %s, 0xffff0000, %s" % (v(XV + 2 * i + 1), v(G0 + 2 * i)))
lab("QLN")
ts()
layernorm(XV, [], T + 16)
e("v_add_u32 v6, 0x%x, %s" % (LH, v(aL32)))
e("ds_write_b128 v6, %s" % vr(XV, 4))
e("ds_write_b128 v6, %s offset:16" % vr(XV + 4, 4))
e("s_waitcnt lgkmcnt(0)")
e("s_barrier")
e("s_branch QG")
lab("QW")
e("v_add_u32 v6, 0x%x, %s" % (LH, v(aL32)))
e("s_barrier")
e("ds_read_b128 %s, v6" % vr(XV, 4))
e("ds_read_b128 %s, v6 offset:16" % vr(XV + 4, 4))
lab("QG")
e("s_cmp_lg_u32 s%d, 0" % sLAY)
e("s_cbranch_scc1 QG2")
sacc([(sWAVE, 3)], LWQ)
e("v_lshlrev_b32 v6, 8, %s" % v(vL))
e("v_add_u32 v6, s%d, v6" % sT0)
WT = T + 16
for i in range(8):
    e("ds_read_b64 %s, v6 offset:%d" % (vr(WT + 2 * i, 2), 32 * i))
e("s_waitcnt lgkmcnt(0)")
for i in range(16):
    e("v_lshlrev_b32 %s, 16, %s" % (v(vWQF + 2 * i), v(WT + i)))
    e("v_and_b32 %s, 0xffff0000, %s" % (v(vWQF + 2 * i + 1), v(WT + i)))
lab("QG2")
e("s_waitcnt lgkmcnt(0)")
A = T + 32
U = T + 36
for i in range(8):
    hb, hs = bcast_sel(XV + i)
    for hlf in range(2):
        w = vWQF + 4 * i + 2 * hlf
        if i == 0:
            e("v_pk_mul_f32 %s, %s, %s op_sel:[%d,0] op_sel_hi:[%d,1]" % (vp(A + 2 * hlf), vp(hb), vp(w), hs, hs))
        else:
            e("v_pk_fma_f32 %s, %s, %s, %s op_sel:[%d,0,0] op_sel_hi:[%d,1,1]" % (vp(A + 2 * hlf), vp(hb), vp(w), vp(A + 2 * hlf), hs, hs))
allreduce("add", [A, A + 1, A + 2, A + 3], [U, U + 1, U + 2, U + 3])
e("v_cvt_pk_bf16_f32 %s, %s, %s" % (v(U), v(A), v(A + 1)))
e("v_mov_b32 %s, s%d" % (v(U + 1), sTAG))
e("v_cvt_pk_bf16_f32 %s, %s, %s" % (v(U + 2), v(A + 2), v(A + 3)))
e("v_mov_b32 %s, s%d" % (v(U + 3), sTAG))
mask_begin(1)
e("s_cmp_lg_u32 s%d, 0" % sLAY)
e("s_cbranch_scc1 QST1")
gstore(v(aQW), vr(U, 4))
e("s_branch QST2")
lab("QST1")
fstore(v(aQW), vr(U, 4))
lab("QST2")
mask_end()
ts()
e("s_cmp_lg_u32 s%d, 0" % sWAVE)
e("s_cbranch_scc1 SW")
G0 = T
poll(["global_load_dwordx4 %s, %s, %s sc1" % (vr(G0, 4), v(aQS), sp(sPB)),
      "global_load_dwordx4 %s, %s, %s offset:16 sc1" % (vr(G0 + 4, 4), v(aQS), sp(sPB))],
     [G0 + 1, G0 + 3, G0 + 5, G0 + 7], T + 8, T + 9, dual=True)
ts()
e("v_mov_b32 %s, %s" % (v(G0 + 1), v(G0 + 2)))
e("v_mov_b32 %s, %s" % (v(G0 + 2), v(G0 + 4)))
e("v_mov_b32 %s, %s" % (v(G0 + 3), v(G0 + 6)))
e("v_add_u32 v6, 0x%x, %s" % (LQ, v(aL16)))
e("ds_write_b128 v6, %s" % vr(G0, 4))
e("s_waitcnt lgkmcnt(0)")
lab("SW")
e("s_barrier")
QL = T
for s in range(4):
    e("ds_read_b128 %s, %s offset:%d" % (vr(QL + 4 * s, 4), v(aQF), 64 * s))
e("s_waitcnt vmcnt(0) lgkmcnt(0)")
SC0 = T + 32
for s in range(4):
    for Tt in range(2):
        c = "0" if s == 0 else vr(SC0 + 4 * Tt, 4)
        e("v_mfma_f32_16x16x32_bf16 %s, %s, %s, %s" % (vr(SC0 + 4 * Tt, 4), vr(vK + Tt * 16 + s * 4, 4), vr(QL + 4 * s, 4), c))
nop(8)
tmp = T + 40
for i in range(0, 8, 2):
    round_bf16_pair(SC0 + i, SC0 + i + 1, tmp)
    e("v_pk_mul_f32 %s, %s, %s op_sel_hi:[1,0]" % (vp(SC0 + i), vp(SC0 + i), sp(sC2)))
    round_bf16_pair(SC0 + i, SC0 + i + 1, tmp)
M = T + 41
e("v_max3_f32 %s, %s, %s, %s" % (v(M), v(SC0), v(SC0 + 1), v(SC0 + 2)))
e("v_max3_f32 %s, %s, %s, %s" % (v(M), v(M), v(SC0 + 3), v(SC0 + 4)))
e("v_max3_f32 %s, %s, %s, %s" % (v(M), v(M), v(SC0 + 5), v(SC0 + 6)))
e("v_max_f32 %s, %s, %s" % (v(M), v(M), v(SC0 + 7)))
allreduce("max", [M], [tmp], rors=())
MM = T + 42
e("v_mul_f32 %s, s%d, %s" % (v(MM), sC1, v(M)))
for i in range(8):
    e("v_fma_f32 %s, %s, s%d, -%s" % (v(SC0 + i), v(SC0 + i), sC1, v(MM)))
for i in range(8):
    e("v_exp_f32 %s, %s" % (v(SC0 + i), v(SC0 + i)))
nop(1)
PA = T + 44
for i in range(4):
    e("v_cvt_pk_bf16_f32 %s, %s, %s" % (v(PA + i), v(SC0 + 2 * i), v(SC0 + 2 * i + 1)))
e("s_cmp_lg_u32 s%d, 0" % sLAY)
e("s_cbranch_scc1 SV")
e("s_barrier")
for Td in range(8):
    e("v_xor_b32 v6, 0x%x, %s" % (Td << 5, v(aVT)))
    e("ds_read_b64_tr_b16 %s, v6" % vr(vVF + 4 * Td, 2))
    e("ds_read_b64_tr_b16 %s, v6 offset:4096" % vr(vVF + 4 * Td + 2, 2))
e("s_waitcnt lgkmcnt(0)")
lab("SV")
ts()
D0 = T
for Td in range(8):
    e("v_mfma_f32_16x16x32_bf16 %s, %s, %s, 0" % (vr(D0 + 4 * Td, 4), vr(PA, 4), vr(vVF + 4 * Td, 4)))
LS = T + 43
e("v_pk_add_f32 %s, %s, %s" % (vp(SC0), vp(SC0), vp(SC0 + 2)))
e("v_pk_add_f32 %s, %s, %s" % (vp(SC0 + 4), vp(SC0 + 4), vp(SC0 + 6)))
e("v_pk_add_f32 %s, %s, %s" % (vp(SC0), vp(SC0), vp(SC0 + 4)))
e("v_add_f32 %s, %s, %s" % (v(LS), v(SC0), v(SC0 + 1)))
allreduce("add", [LS], [tmp], rors=())
sacc([(sWAVE, 5)], LSS)
e("v_lshlrev_b32 v6, 3, %s" % v(vL))
e("v_add_u32 v6, s%d, v6" % sT0)
e("v_mov_b32 %s, %s" % (v(T + 40), v(M)))
e("v_mov_b32 %s, %s" % (v(T + 41), v(LS)))
e("s_mov_b64 %s, exec" % sp(sEX))
e("s_mov_b64 exec, 15")
e("ds_write_b64 v6, %s" % vr(T + 40, 2))
e("s_mov_b64 exec, 0xffff")
for Td in range(8):
    e("ds_write_b128 %s, %s offset:%d" % (v(aSCW), vr(D0 + 4 * Td, 4), Td * 256))
e("s_mov_b64 exec, %s" % sp(sEX))
e("s_waitcnt lgkmcnt(0)")
e("s_barrier")
R = T
e("ds_read2_b32 %s, %s offset0:0 offset1:4" % (vr(R, 2), v(aSCR)))
for w_ in range(1, 4):
    e("v_add_u32 v6, 0x%x, %s" % (2048 * w_, v(aSCR)))
    e("ds_read2_b32 %s, v6 offset0:0 offset1:4" % vr(R + 2 * w_, 2))
sacc([(sWAVE, 3)], LSS)
e("v_mov_b32 v6, s%d" % sT0)
for w_ in range(4):
    e("ds_read_b64 %s, v6 offset:%d" % (vr(R + 8 + 2 * w_, 2), 32 * w_))
e("v_mov_b32 v7, 0x%x" % LFL)
e("ds_read_b32 v7, v7")
e("s_waitcnt lgkmcnt(0)")
e("v_readfirstlane_b32 s%d, v7" % sFAST)
MC, E0, LC, O0, O1 = T + 16, T + 17, T + 22, T + 24, T + 26
e("v_max3_f32 %s, %s, %s, %s" % (v(MC), v(R + 8), v(R + 10), v(R + 12)))
e("v_max_f32 %s, %s, %s" % (v(MC), v(MC), v(R + 14)))
for w_ in range(4):
    e("v_sub_f32 %s, %s, %s" % (v(E0 + w_), v(R + 8 + 2 * w_), v(MC)))
    e("v_mul_f32 %s, s%d, %s" % (v(E0 + w_), sC1, v(E0 + w_)))
for w_ in range(4):
    e("v_exp_f32 %s, %s" % (v(E0 + w_), v(E0 + w_)))
nop(1)
e("v_mul_f32 %s, %s, %s" % (v(LC), v(E0), v(R + 9)))
e("v_mul_f32 %s, %s, %s" % (v(O0), v(E0), v(R)))
e("v_mul_f32 %s, %s, %s" % (v(O1), v(E0), v(R + 1)))
for w_ in range(1, 4):
    e("v_fmac_f32 %s, %s, %s" % (v(LC), v(E0 + w_), v(R + 9 + 2 * w_)))
    e("v_fmac_f32 %s, %s, %s" % (v(O0), v(E0 + w_), v(R + 2 * w_)))
    e("v_fmac_f32 %s, %s, %s" % (v(O1), v(E0 + w_), v(R + 2 * w_ + 1)))
e("v_mov_b32 %s, s%d" % (v(O0 + 1), sTAG))
e("v_mov_b32 %s, s%d" % (v(O1 + 1), sTAG))
fstore(v(aPOW), vr(O0, 4))
S4 = T + 28
e("v_mov_b32 %s, %s" % (v(S4), v(MC)))
e("v_mov_b32 %s, s%d" % (v(S4 + 1), sTAG))
e("v_mov_b32 %s, %s" % (v(S4 + 2), v(LC)))
e("v_mov_b32 %s, s%d" % (v(S4 + 3), sTAG))
mask_begin(1)
fstore(v(aSTW), vr(S4, 4))
mask_end()
ts()
e("s_cmp_lg_u32 s%d, 0" % sLAY)
e("s_cbranch_scc1 OPH")
sacc([(sWAVE, 12)], LWO)
e("v_add_u32 v6, s%d, %s" % (sT0, v(aL16)))
WT = T + 32
for i in range(4):
    e("ds_read_b128 %s, v6 offset:%d" % (vr(WT + 4 * i, 4), 1024 * i))
e("s_waitcnt lgkmcnt(0)")
for i in range(16):
    e("v_lshlrev_b32 %s, 16, %s" % (v(vWOF + 2 * i), v(WT + i)))
    e("v_and_b32 %s, 0xffff0000, %s" % (v(vWOF + 2 * i + 1), v(WT + i)))
load_mixer_weights("v0")
e("v_lshlrev_b32 %s, 16, %s" % (v(vB2), v(vB2)))
e("v_and_b32 %s, 0xffff0000, %s" % (v(vXR + 1), v(vXR)))
e("v_lshlrev_b32 %s, 16, %s" % (v(vXR), v(vXR)))
lab("OPH")
SR, PR = T, T + 4
poll(["global_load_dwordx4 %s, %s, %s sc1" % (vr(SR, 4), v(aSTR), sp(P_WS)),
      "global_load_dwordx4 %s, %s, %s sc1" % (vr(PR, 4), v(aPOR), sp(P_WS))],
     [SR + 1, SR + 3, PR + 1, PR + 3], T + 8, T + 9)
ts()
Mx = T + 8
e("v_mov_b32 %s, %s" % (v(Mx), v(SR)))
allreduce("max", [Mx], [T + 9], rors=(2, 4, 8))
Ee = T + 10
e("v_sub_f32 %s, %s, %s" % (v(Ee), v(SR), v(Mx)))
e("v_mul_f32 %s, s%d, %s" % (v(Ee), sC1, v(Ee)))
e("v_exp_f32 %s, %s" % (v(Ee), v(Ee)))
nop(1)
A0, A1, A2 = T + 12, T + 13, T + 14
e("v_mul_f32 %s, %s, %s" % (v(A0), v(Ee), v(SR + 2)))
e("v_mul_f32 %s, %s, %s" % (v(A1), v(Ee), v(PR)))
e("v_mul_f32 %s, %s, %s" % (v(A2), v(Ee), v(PR + 2)))
allreduce("add", [A0, A1, A2], [T + 16, T + 17, T + 18], rors=(2, 4, 8))
e("v_rcp_f32 %s, %s" % (v(A0), v(A0)))
nop(1)
e("v_mul_f32 %s, %s, %s" % (v(A1), v(A1), v(A0)))
e("v_mul_f32 %s, %s, %s" % (v(A2), v(A2), v(A0)))
round_bf16_pair(A1, A2, T + 16)
OO = T + 20
nop(2)
e("v_mov_b32_dpp %s, %s quad_perm:[0,0,2,2] %s" % (v(OO), v(A1), DPPM))
e("v_mov_b32_dpp %s, %s quad_perm:[0,0,2,2] %s" % (v(OO + 1), v(A2), DPPM))
e("v_mov_b32_dpp %s, %s quad_perm:[1,1,3,3] %s" % (v(OO + 2), v(A1), DPPM))
e("v_mov_b32_dpp %s, %s quad_perm:[1,1,3,3] %s" % (v(OO + 3), v(A2), DPPM))
AC = T + 24
for i in range(4):
    ob, os_ = bcast_sel(OO + i)
    for k in range(4):
        w = vWOF + 8 * i + 2 * k
        if i == 0:
            e("v_pk_mul_f32 %s, %s, %s op_sel:[%d,0] op_sel_hi:[%d,1]" % (vp(AC + 2 * k), vp(ob), vp(w), os_, os_))
        else:
            e("v_pk_fma_f32 %s, %s, %s, %s op_sel:[%d,0,0] op_sel_hi:[%d,1,1]" % (vp(AC + 2 * k), vp(ob), vp(w), vp(AC + 2 * k), os_, os_))
sacc([(sWAVE, 11)], LOC)
e("v_add_u32 v6, s%d, %s" % (sT0, v(aL32)))
e("ds_write_b128 v6, %s" % vr(AC, 4))
e("ds_write_b128 v6, %s offset:16" % vr(AC + 4, 4))
e("v_lshlrev_b32 v6, 3, v0")
e("v_add_u32 v6, 0x%x, v6" % LOC)
e("s_waitcnt lgkmcnt(0)")
e("s_barrier")
R = T
for w_ in range(4):
    e("ds_read_b64 %s, v6 offset:%d" % (vr(R + 2 * w_, 2), 2048 * w_))
e("s_waitcnt lgkmcnt(0)")
O4 = T + 8
e("v_pk_add_f32 %s, %s, %s" % (vp(R), vp(R), vp(R + 2)))
e("v_pk_add_f32 %s, %s, %s" % (vp(R + 4), vp(R + 4), vp(R + 6)))
e("v_add_f32 %s, %s, %s" % (v(O4), v(R), v(R + 4)))
e("v_add_f32 %s, %s, %s" % (v(O4 + 2), v(R + 1), v(R + 5)))
e("v_mov_b32 %s, s%d" % (v(O4 + 1), sTAG))
e("v_mov_b32 %s, s%d" % (v(O4 + 3), sTAG))
e("global_store_dwordx4 %s, %s, %s sc1" % (v(aOPW), vr(O4, 4), sp(P_WS)))
ts()
e("s_cmp_lg_u32 s%d, 0" % sWAVE)
e("s_cbranch_scc1 MW")
XR = T + 16
AD = T + 40
for k in range(1, 4):
    e("v_add_u32 %s, 0x%x, %s" % (v(AD + k), 0x40000 * k, v(aOPR)))
loads = []; tags = []
for k in range(4):
    loads.append("global_load_dwordx4 %s, %s, %s sc1" % (vr(XR + 4 * k, 4), v(aOPR) if k == 0 else v(AD + k), sp(P_WS)))
    tags += [XR + 4 * k + 1, XR + 4 * k + 3]
poll(loads, tags, T + 32, T + 33)
ts()
Y0, Y1 = T + 32, T + 33
e("v_add_f32 %s, %s, %s" % (v(Y0), v(XR), v(XR + 4)))
e("v_add_f32 %s, %s, %s" % (v(Y1), v(XR + 2), v(XR + 6)))
e("v_add_f32 %s, %s, %s" % (v(XR + 8), v(XR + 8), v(XR + 12)))
e("v_add_f32 %s, %s, %s" % (v(XR + 10), v(XR + 10), v(XR + 14)))
e("v_add_f32 %s, %s, %s" % (v(Y0), v(Y0), v(XR + 8)))
e("v_add_f32 %s, %s, %s" % (v(Y1), v(Y1), v(XR + 10)))
allreduce("add", [Y0, Y1], [T + 34, T + 35])
round_bf16_pair(Y0, Y1, T + 34)
e("v_pk_add_f32 %s, %s, %s" % (vp(Y0), vp(Y0), vp(vXR)))
e("v_cvt_pk_bf16_f32 %s, %s, %s" % (v(T + 36), v(Y0), v(Y1)))
e("v_mov_b32 %s, s%d" % (v(T + 37), sTAG))
mask_begin(255)
e("global_store_dwordx2 %s, %s, %s sc1" % (v(aXW), vr(T + 36, 2), sp(P_WS)))
mask_end()
e("v_lshlrev_b32 %s, 16, %s" % (v(vXR), v(T + 36)))
e("v_and_b32 %s, 0xffff0000, %s" % (v(vXR + 1), v(T + 36)))
ts()
G0 = T + 8
poll(["global_load_dwordx4 %s, %s, %s sc1" % (vr(G0, 4), v(aX1R), sp(P_WS)),
      "global_load_dwordx4 %s, %s, %s offset:16 sc1" % (vr(G0 + 4, 4), v(aX1R), sp(P_WS))],
     [G0 + 1, G0 + 3, G0 + 5, G0 + 7], T + 18, T + 19)
ts()
for i in range(4):
    e("v_lshlrev_b32 %s, 16, %s" % (v(XV + 2 * i), v(G0 + 2 * i)))
    e("v_and_b32 %s, 0xffff0000, %s" % (v(XV + 2 * i + 1), v(G0 + 2 * i)))
H0 = T + 18
e("v_mov_b32 %s, %s" % (v(H0), v(vXR)))
e("v_mov_b32 %s, %s" % (v(H0 + 1), v(vXR + 1)))
layernorm(XV, [H0], T + 24)
layernorm(XV, [H0], T + 24, only_extra=True)
e("v_mov_b32 v6, 0x%x" % LHB)
mask_begin(1)
e("ds_write_b64 v6, %s" % vr(H0, 2))
mask_end()
e("s_waitcnt lgkmcnt(0)")
e("s_barrier")
e("s_branch MG")
lab("MW")
e("v_mov_b32 v6, 0x%x" % LHB)
e("s_barrier")
e("ds_read_b64 %s, v6" % vr(H0, 2))
e("s_waitcnt lgkmcnt(0)")
lab("MG")
ts()
Ya = T + 22
mixer(H0, 0, Ya)
sacc([(sWAVE, 2)], LMC)
e("v_mov_b32 v6, s%d" % sT0)
mask_begin(1)
e("ds_write_b32 v6, %s" % v(Ya))
mask_end()
e("s_waitcnt lgkmcnt(0)")
e("s_barrier")
e("s_cmp_lg_u32 s%d, 0" % sWAVE)
e("s_cbranch_scc1 MSKIP")
e("v_mov_b32 v6, 0x%x" % LMC)
e("ds_read_b128 %s, v6" % vr(T + 24, 4))
e("ds_read_b128 %s, v6 offset:16" % vr(T + 28, 4))
e("s_waitcnt lgkmcnt(0)")
Yb = Ya + 1
e("v_pk_add_f32 %s, %s, %s" % (vp(T + 24), vp(T + 24), vp(T + 26)))
e("v_pk_add_f32 %s, %s, %s" % (vp(T + 28), vp(T + 28), vp(T + 30)))
e("v_add_f32 %s, %s, %s" % (v(Ya), v(T + 24), v(T + 25)))
e("v_add_f32 %s, %s, %s" % (v(Yb), v(T + 28), v(T + 29)))
round_bf16_pair(Ya, Yb, T + 24)
e("v_add_f32 %s, %s, %s" % (v(Ya), v(Ya), v(vB2)))
e("v_add_f32 %s, %s, %s" % (v(Yb), v(Yb), v(vB2)))
round_bf16_pair(Ya, Yb, T + 24)
e("v_pk_add_f32 %s, %s, %s" % (vp(Ya), vp(Ya), vp(vXR)))
e("v_cvt_pk_bf16_f32 %s, %s, %s" % (v(T + 26), v(Ya), v(Yb)))
e("v_mov_b32 %s, s%d" % (v(T + 27), sTAG))
e("s_cmp_lg_u32 s%d, 0" % sLAY)
e("s_cbranch_scc1 FINAL")
e("v_add_u32 v6, 0x%x, %s" % (X2_OFF - X1_OFF, v(aXW)))
mask_begin(255)
e("global_store_dwordx2 v6, %s, %s sc1" % (vr(T + 26, 2), sp(P_WS)))
mask_end()
e("v_lshlrev_b32 %s, 16, %s" % (v(vXR), v(T + 26)))
e("v_and_b32 %s, 0xffff0000, %s" % (v(vXR + 1), v(T + 26)))
e("s_branch MDONE")
lab("FINAL")
e("s_lshl_b32 s%d, s%d, 2" % (sT0, sPI))
e("v_mov_b32 v6, s%d" % sT0)
mask_begin(1)
e("global_store_dword v6, %s, %s" % (v(T + 26), sp(P_OUT)))
e("s_cmp_lg_u32 s2, 0")
e("s_cbranch_scc1 NOEP")
e("v_mov_b32 v6, 0")
e("global_store_dword v6, %s, %s" % (v(T + 27), sp(P_WS)))
lab("NOEP")
mask_end()
lab("MDONE")
ts()
lab("MSKIP")
e("s_add_u32 s%d, s%d, 1" % (sTAG, sTAG))
e("s_add_u32 s%d, s%d, 1" % (sLAY, sLAY))
e("s_cmp_lt_u32 s%d, 2" % sLAY)
e("s_cbranch_scc1 LAYER")

assert ts_count[0] <= NTS, ts_count[0]
if TS == 9999:
    e("s_cmp_lg_u32 s%d, 0" % sWAVE)
    e("s_cbranch_scc1 END")
    mask_begin(1)
    e("s_lshl_b32 s%d, s2, 7" % sT0)
    e("s_add_u32 s%d, s%d, 0x2000000" % (sT0, sT0))
    e("v_mov_b32 v6, s%d" % sT0)
    e("v_mov_b32 v7, s%d" % (sTSB + 2 * NTS))
    e("global_store_dword v6, v7, %s" % sp(P_WS))
    idx = 1
    for lay in range(2):
        for i in range(ts_count[0]):
            e("v_mov_b32 v7, s%d" % (sTSB + lay * NTS + i))
            e("global_store_dword v6, v7, %s offset:%d" % (sp(P_WS), 4 * idx))
            idx += 1
    mask_end()
e("s_branch END")

lab("LOADER")
e("s_sub_u32 s%d, s%d, 4" % (sWAVE, sWAVE))
e("s_load_dword s%d, %s, 0" % (sTAG, sp(P_WS)))
e("s_getreg_b32 s%d, hwreg(HW_REG_XCC_ID)" % sPIV)
e("s_cmp_lg_u32 s%d, 3" % sWAVE)
e("s_cbranch_scc1 NOID")
sacc([(sG, 8), (sC, 3)], XID_OFF)
e("v_mov_b32 v6, s%d" % sT0)
e("v_mov_b32 %s, s%d" % (v(T), sPIV))
e("s_waitcnt lgkmcnt(0)")
e("s_add_u32 s%d, s%d, 1" % (sT0, sTAG))
e("v_mov_b32 %s, s%d" % (v(T + 1), sT0))
mask_begin(1)
e("global_store_dwordx2 v6, %s, %s sc1" % (vr(T, 2), sp(P_WS)))
mask_end()
lab("NOID")
e("s_lshl_b32 s%d, s%d, 10" % (sT1, sWAVE))
e("v_add_u32 v6, s%d, %s" % (sT1, v(aL16)))
e("s_mov_b64 %s, exec" % sp(sEX))
e("s_cmp_lg_u32 s%d, 3" % sWAVE)
e("s_cbranch_scc1 LD_FULL")
e("s_mov_b32 exec_hi, 0")
lab("LD_FULL")
for base, ptr in ((LW1, P_W1), (LB1, P_B1), (LW2, P_W2)):
    e("s_add_u32 s%d, s%d, 0x%x" % (sT3, sT1, base))
    e("s_mov_b32 m0, s%d" % sT3)
    nop(1)
    e("global_load_lds_dwordx4 v6, %s" % sp(ptr))
e("s_mov_b64 exec, %s" % sp(sEX))
e("v_lshrrev_b32 v3, 1, %s" % v(vL))
e("v_lshlrev_b32 v3, 13, v3")
e("v_and_b32 v4, 1, %s" % v(vL))
e("v_lshl_add_u32 v3, v4, 4, v3")
sacc([(sWAVE, 20), (sG, 10), (sC, 5)], 0)
e("v_add_u32 v3, s%d, v3" % sT0)
e("s_lshl_b32 s%d, s%d, 12" % (sT2, sWAVE))
for i in range(4):
    e("s_add_u32 s%d, s%d, 0x%x" % (sT3, sT2, LWQ + 1024 * i))
    e("s_mov_b32 m0, s%d" % sT3)
    nop(1)
    e("global_load_lds_dwordx4 v3, %s nt" % sp(P_WQ))
    e("v_add_u32 v3, 0x40000, v3")
e("v_and_b32 v3, 15, %s" % v(vL))
e("v_lshrrev_b32 v4, 4, %s" % v(vL))
e("v_lshrrev_b32 v5, 1, v3")
e("v_xor_b32 v6, v5, v4")
e("v_xor_b32 v7, 4, v6")
e("v_and_b32 v5, 1, v3")
e("v_lshl_add_u32 v6, v6, 1, v5")
e("v_lshl_add_u32 v7, v7, 1, v5")
e("v_lshlrev_b32 v6, 4, v6")
e("v_lshlrev_b32 v7, 4, v7")
e("v_lshl_add_u32 v6, v4, 8, v6")
e("v_lshl_add_u32 v7, v4, 8, v7")
sacc([(sG, 24), (sC, 15), (sWAVE, 13)], W0 * 256)
e("v_add_u32 v6, s%d, v6" % sT0)
e("v_add_u32 v7, s%d, v7" % sT0)
e("v_add_u32 v7, 0x400, v7")
e("s_lshl_b32 s%d, s%d, 13" % (sT2, sWAVE))
e("s_waitcnt vmcnt(4)")
for i in range(8):
    e("s_add_u32 s%d, s%d, 0x%x" % (sT3, sT2, LV + 1024 * i))
    e("s_mov_b32 m0, s%d" % sT3)
    nop(1)
    e("global_load_lds_dwordx4 %s, %s nt" % ("v6" if i % 2 == 0 else "v7", sp(P_V)))
    if i % 2 == 0:
        e("v_add_u32 v6, 0x800, v6")
    else:
        e("v_add_u32 v7, 0x800, v7")
sacc([(sG, 8)], XID_OFF)
e("v_and_b32 v9, 31, %s" % v(vL))
e("v_lshlrev_b32 v9, 3, v9")
e("v_add_u32 v9, s%d, v9" % sT0)
e("global_load_dwordx2 %s, v9, %s sc1" % (vr(T + 4, 2), sp(P_WS)))
sacc([(sG, 19), (sC, 14), (sWAVE, 12)], 0)
e("v_add_u32 v6, s%d, %s" % (sT0, v(aL16)))
e("s_lshl_b32 s%d, s%d, 12" % (sT1, sWAVE))
for i in range(4):
    e("s_add_u32 s%d, s%d, 0x%x" % (sT3, sT1, LWO + 1024 * i))
    e("s_mov_b32 m0, s%d" % sT3)
    nop(1)
    e("global_load_lds_dwordx4 v6, %s nt" % sp(P_WO))
    e("v_add_u32 v6, 0x400, v6")
e("s_waitcnt vmcnt(13) lgkmcnt(0)")
e("s_add_u32 s%d, s%d, 1" % (sTAG, sTAG))
e("s_barrier")
e("s_barrier")
e("s_waitcnt vmcnt(4)")
e("s_cmp_lg_u32 s%d, 3" % sWAVE)
e("s_cbranch_scc1 NOID2")
e("s_mov_b32 s%d, 0x100000" % sCNT)
lab("IDP")
e("v_cmp_ne_u32 vcc, s%d, %s" % (sTAG, v(T + 5)))
nop(1)
e("s_cmp_eq_u64 vcc, 0")
e("s_cbranch_scc1 IDD")
e("global_load_dwordx2 %s, v9, %s sc1" % (vr(T + 4, 2), sp(P_WS)))
e("s_waitcnt vmcnt(0)")
e("s_sub_u32 s%d, s%d, 1" % (sCNT, sCNT))
e("s_cbranch_scc0 IDP")
lab("IDD")
e("v_cmp_ne_u32 vcc, s%d, %s" % (sPIV, v(T + 4)))
nop(1)
e("s_cmp_eq_u64 vcc, 0")
e("s_cselect_b32 s%d, 1, 0" % sT3)
e("v_mov_b32 v7, s%d" % sT3)
e("v_mov_b32 v6, 0x%x" % LFL)
e("ds_write_b32 v6, v7")
e("s_waitcnt lgkmcnt(0)")
lab("NOID2")
e("s_barrier")
e("s_waitcnt vmcnt(0)")
e("s_barrier")
e("v_and_b32 v8, 255, v0")
load_mixer_weights("v8")
lab("HLOOP")
e("s_barrier")
e("v_mov_b32 v6, 0x%x" % LHB)
e("s_barrier")
e("ds_read_b64 %s, v6" % vr(H0, 2))
e("s_waitcnt lgkmcnt(0)")
mixer(H0, 1, Ya)
sacc([(sWAVE, 2)], LMC + 16)
e("v_mov_b32 v6, s%d" % sT0)
mask_begin(1)
e("ds_write_b32 v6, %s" % v(Ya))
mask_end()
e("s_waitcnt lgkmcnt(0)")
e("s_barrier")
e("s_cmp_lg_u32 s%d, 0" % sLAY)
e("s_cbranch_scc1 END")
e("s_mov_b32 s%d, 1" % sLAY)
e("s_barrier")
e("s_barrier")
e("s_barrier")
e("s_branch HLOOP")
lab("END")
e("s_endpgm")

L.append('.section .rodata,"a"')
L.append(".p2align 6")
L.append(".amdhsa_kernel %s_kernel" % NAME)
L.append("  .amdhsa_next_free_vgpr 256")
L.append("  .amdhsa_next_free_sgpr 102")
L.append("  .amdhsa_accum_offset 256")
L.append("  .amdhsa_group_segment_fixed_size 0")
L.append("  .amdhsa_kernarg_size 104")
L.append("  .amdhsa_user_sgpr_count 2")
L.append("  .amdhsa_user_sgpr_kernarg_segment_ptr 1")
L.append("  .amdhsa_system_sgpr_workgroup_id_x 1")
L.append("  .amdhsa_float_denorm_mode_32 3")
L.append(".end_amdhsa_kernel")
open(OUT, "w").write("\n".join(L) + "\n")
print("wrote", OUT, "lines", len(L), "ts", ts_count[0])
```

```python
import sys, struct

NAME = "interleave_layers__sliding_block_cached__mixer_token_mlp__decode"
TS = int(sys.argv[2]) if len(sys.argv) > 2 else 0
OUT = sys.argv[1] if len(sys.argv) > 1 else "cdna_kernels/%s.s" % NAME

L = []
def e(s): L.append("  " + s)
def lab(s): L.append(s + ":")
def nop(n):
    while n > 0:
        k = min(n, 16)
        e("s_nop %d" % (k - 1))
        n -= k
def f2u(x): return struct.unpack("<I", struct.pack("<f", x))[0]
def fh(x): return "0x%08x" % f2u(x)

QS_OFF = 0x1000
ST_OFF = 0x8000
XID_OFF = 0xc000
X1_OFF = 0x10000
X2_OFF = 0x20000
PO_OFF = 0x100000
OP_OFF = 0x200000
LV = 0
LWO = 32768
LW1 = 49152
LB1 = LW1 + 3584
LW2 = LB1 + 3584
LSS = 59904
LMC = 60160
LHB = 60288
LFL = 60352
LQ = 60416
LH = 61440
LSC = 63488
LOC = LSC + 8192
LWQ = LOC + 8192
LDS_TOTAL = LWQ + 16384

W0 = 65536 - 4096
LOG2E = 1.4426950408889634
SCALE = 128.0 ** -0.5

sWAVE = 4; sG = 5; sC = 6; sTAG = 7
sT0, sT1, sT2, sT3 = 8, 9, 10, 11
sCNT = 12
sEX = 14
P_X, P_K, P_V, P_WQ, P_WO, P_BX, P_W1, P_B1, P_W2, P_B2, P_OUT, P_DBG, P_WS = [16 + 2 * i for i in range(13)]
sLAY = 42; sPI = 43
sC1 = 44; sC2 = 46; sC3 = 48; sC4 = 50
sFAST = 13; sLAY2 = 94; sPIV = 52; sNPIV = 54; sWS2 = 90; sPB = 92
SDELTA = 0x400000
sTSB = 56
def sp(i): return "s[%d:%d]" % (i, i + 1)

vL = 1
vWQF = 16; vK = 48; vVF = 80; vWOF = 112
vW1 = 144; vB1 = 152; vW2 = 160; vB2 = 168
vXR = 170
aQS = 172; aPOW = 173; aSTW = 174; aSTR = 175; aPOR = 176; aOPW = 177; aOPR = 178
aX1R = 179; aXW = 180; aQW = 181; aVT = 182; aSCW = 183; aSCR = 184; aL16 = 185
aQF = 186; aL32 = 187
cC3 = 188
T = 192
def v(i): return "v%d" % i
def vr(i, n): return "v[%d:%d]" % (i, i + n - 1)
def vp(i): return vr(i, 2)

NTS = 13
ts_count = [0]
def ts():
    if not TS: return
    i = ts_count[0]; ts_count[0] += 1
    e("s_memtime s[98:99]" if TS != 9999 else "s_memrealtime s[98:99]")
    e("s_waitcnt lgkmcnt(0)")
    e("s_cmp_eq_u32 s%d, 0" % sLAY)
    e("s_cselect_b32 s%d, s98, s%d" % (sTSB + i, sTSB + i))
    e("s_cselect_b32 s%d, s%d, s98" % (sTSB + NTS + i, sTSB + NTS + i))

DPPM = "row_mask:0xf bank_mask:0xf"

def allreduce(op, regs, tmps, rors=(1, 2, 4, 8)):
    ins = "v_add_f32" if op == "add" else "v_max_f32"
    n = len(regs)
    pad = max(0, 2 - (n - 1))
    nop(2)
    for r in rors:
        for x in regs:
            e("%s_dpp %s, %s, %s row_ror:%d %s" % (ins, v(x), v(x), v(x), r, DPPM))
        nop(pad)
    for sw in ("v_permlane16_swap_b32", "v_permlane32_swap_b32"):
        for x, t in zip(regs, tmps):
            e("v_mov_b32 %s, %s" % (v(t), v(x)))
        nop(pad)
        for x, t in zip(regs, tmps):
            e("%s %s, %s" % (sw, v(x), v(t)))
        nop(1)
        for x, t in zip(regs, tmps):
            e("%s %s, %s, %s" % (ins, v(x), v(x), v(t)))
        nop(pad)

def round_bf16_pair(a, b, tmp):
    e("v_cvt_pk_bf16_f32 %s, %s, %s" % (v(tmp), v(a), v(b)))
    e("v_lshlrev_b32 %s, 16, %s" % (v(a), v(tmp)))
    e("v_and_b32 %s, 0xffff0000, %s" % (v(b), v(tmp)))

def layernorm(X, extra, tb, only_extra=False):
    s2, q2, d2, m, r, t, t2 = tb, tb + 2, tb + 4, tb + 6, tb + 8, tb + 7, tb + 9
    nop(1)
    e("v_readfirstlane_b32 s%d, %s" % (sPIV, v(X)))
    nop(1)
    e("s_xor_b32 s%d, s%d, 0x80000000" % (sNPIV, sPIV))
    nop(1)
    e("v_pk_add_f32 %s, %s, %s op_sel_hi:[1,0]" % (vp(s2), vp(X), sp(sNPIV)))
    e("v_pk_mul_f32 %s, %s, %s" % (vp(q2), vp(s2), vp(s2)))
    for i in range(2, 8, 2):
        e("v_pk_add_f32 %s, %s, %s op_sel_hi:[1,0]" % (vp(d2), vp(X + i), sp(sNPIV)))
        e("v_pk_add_f32 %s, %s, %s" % (vp(s2), vp(s2), vp(d2)))
        e("v_pk_fma_f32 %s, %s, %s, %s" % (vp(q2), vp(d2), vp(d2), vp(q2)))
    s, q = s2, q2
    e("v_add_f32 %s, %s, %s" % (v(s), v(s2), v(s2 + 1)))
    e("v_add_f32 %s, %s, %s" % (v(q), v(q2), v(q2 + 1)))
    allreduce("add", [s, q], [t, t2])
    e("v_mul_f32 %s, %s, %s" % (v(s), fh(1.0 / 512), v(s)))
    e("v_mul_f32 %s, %s, %s" % (v(q), fh(1.0 / 512), v(q)))
    e("v_fma_f32 %s, -%s, %s, %s" % (v(q), v(s), v(s), v(q)))
    e("v_max_f32 %s, 0, %s" % (v(q), v(q)))
    e("v_add_f32 %s, s%d, %s" % (v(m), sPIV, v(s)))
    round_bf16_pair(m, q, t)
    e("v_add_f32 %s, %s, %s" % (v(q), fh(1e-5), v(q)))
    e("v_cvt_pk_bf16_f32 %s, %s, %s" % (v(t), v(q), v(q)))
    e("v_lshlrev_b32 %s, 16, %s" % (v(q), v(t)))
    e("v_sqrt_f32 %s, %s" % (v(q), v(q)))
    e("v_xor_b32 %s, 0x80000000, %s" % (v(m), v(m)))
    e("v_cvt_pk_bf16_f32 %s, %s, %s" % (v(t), v(q), v(q)))
    e("v_lshlrev_b32 %s, 16, %s" % (v(q), v(t)))
    e("v_rcp_f32 %s, %s" % (v(r), v(q)))
    regs = ([] if only_extra else [X + i for i in range(0, 8, 2)]) + list(extra)
    for a in regs:
        e("v_pk_add_f32 %s, %s, %s op_sel_hi:[1,0]" % (vp(a), vp(a), vp(m)))
        round_bf16_pair(a, a + 1, t)
        e("v_pk_mul_f32 %s, %s, %s op_sel_hi:[1,0]" % (vp(a), vp(a), vp(r)))
        round_bf16_pair(a, a + 1, t)

poll_id = [0]
def poll(loads, tags, tmin, tmax, dual=False):
    pid = poll_id[0]; poll_id[0] += 1
    e("s_mov_b32 s%d, 0x100000" % sCNT)
    lab("POLL%d" % pid)
    if dual:
        e("s_and_b32 s%d, s%d, 7" % (sT0, sCNT))
        e("s_or_b32 s%d, s%d, s%d" % (sT0, sT0, sLAY2))
        e("s_cmp_eq_u32 s%d, 1" % sT0)
        e("s_cselect_b64 %s, %s, %s" % (sp(sPB), sp(sWS2), sp(P_WS)))
    for ld in loads:
        e(ld)
    e("s_waitcnt vmcnt(0)")
    tg = list(tags)
    first = tg[:3] if len(tg) >= 3 else tg[:2]
    rest = tg[len(first):]
    if len(first) == 3:
        e("v_min3_u32 %s, %s, %s, %s" % (v(tmin), v(first[0]), v(first[1]), v(first[2])))
        e("v_max3_u32 %s, %s, %s, %s" % (v(tmax), v(first[0]), v(first[1]), v(first[2])))
    else:
        e("v_min_u32 %s, %s, %s" % (v(tmin), v(first[0]), v(first[1])))
        e("v_max_u32 %s, %s, %s" % (v(tmax), v(first[0]), v(first[1])))
    while rest:
        if len(rest) >= 2:
            e("v_min3_u32 %s, %s, %s, %s" % (v(tmin), v(tmin), v(rest[0]), v(rest[1])))
            e("v_max3_u32 %s, %s, %s, %s" % (v(tmax), v(tmax), v(rest[0]), v(rest[1])))
            rest = rest[2:]
        else:
            e("v_min_u32 %s, %s, %s" % (v(tmin), v(tmin), v(rest[0])))
            e("v_max_u32 %s, %s, %s" % (v(tmax), v(tmax), v(rest[0])))
            rest = rest[1:]
    e("v_cmp_ne_u32 vcc, s%d, %s" % (sTAG, v(tmin)))
    e("v_cmp_ne_u32 %s, s%d, %s" % (sp(sT0), sTAG, v(tmax)))
    nop(1)
    e("s_or_b64 vcc, vcc, %s" % sp(sT0))
    e("s_cmp_eq_u64 vcc, 0")
    e("s_cbranch_scc1 POLLX%d" % pid)
    e("s_sub_u32 s%d, s%d, 1" % (sCNT, sCNT))
    e("s_cbranch_scc0 POLL%d" % pid)
    lab("POLLX%d" % pid)

def mask_begin(m):
    e("s_mov_b64 %s, exec" % sp(sEX))
    if m == 0xffffffff:
        e("s_mov_b32 exec_hi, 0")
    else:
        e("s_mov_b64 exec, 0x%x" % m)
def mask_end():
    e("s_mov_b64 exec, %s" % sp(sEX))

def sacc(terms, const):
    first = True
    for reg, sh in terms:
        if first:
            e("s_lshl_b32 s%d, s%d, %d" % (sT0, reg, sh)); first = False
        else:
            e("s_lshl_b32 s%d, s%d, %d" % (sT1, reg, sh))
            e("s_add_u32 s%d, s%d, s%d" % (sT0, sT0, sT1))
    if const:
        e("s_add_u32 s%d, s%d, 0x%x" % (sT0, sT0, const))

def gstore(addr, data):
    e("global_store_dwordx4 %s, %s, %s" % (addr, data, sp(P_WS)))
    e("global_store_dwordx4 %s, %s, %s sc1" % (addr, data, sp(sWS2)))

gst_id = [0]
def fstore(addr, data):
    i = gst_id[0]; gst_id[0] += 1
    e("s_cmp_lg_u32 s%d, 0" % sFAST)
    e("s_cbranch_scc1 GSF%d" % i)
    e("global_store_dwordx4 %s, %s, %s sc1" % (addr, data, sp(P_WS)))
    e("s_branch GSD%d" % i)
    lab("GSF%d" % i)
    e("global_store_dwordx4 %s, %s, %s" % (addr, data, sp(P_WS)))
    lab("GSD%d" % i)

def bcast_sel(reg):
    return (reg & ~1, reg & 1)

def load_mixer_weights(tidreg):
    e("v_lshlrev_b32 v6, 1, %s" % tidreg)
    for k in range(7):
        e("ds_read_u16 %s, v6 offset:%d" % (v(vW1 + k), LW1 + 512 * k))
        e("ds_read_u16 %s, v6 offset:%d" % (v(vB1 + k), LB1 + 512 * k))
        e("ds_read_u16 %s, v6 offset:%d" % (v(vW2 + k), LW2 + 512 * k))
    e("v_mov_b32 %s, 0" % v(vW1 + 7))
    e("v_mov_b32 %s, 0" % v(vB1 + 7))
    e("v_mov_b32 %s, 0" % v(vW2 + 7))
    e("v_mov_b32 %s, s%d" % (v(cC3), sC3))
    e("v_mov_b32 %s, s%d" % (v(cC3 + 1), sC3))
    e("s_waitcnt lgkmcnt(0)")
    for k in range(7):
        for b in (vW1, vB1, vW2):
            e("v_lshlrev_b32 %s, 16, %s" % (v(b + k), v(b + k)))

def mixer(H, hsel, Y):
    a, t, t2 = T + 24, T + 26, T + 28
    for k in range(0, 8, 2):
        e("v_pk_mul_f32 %s, %s, %s op_sel:[0,%d] op_sel_hi:[1,%d]" % (vp(a), vp(vW1 + k), vp(H), hsel, hsel))
        round_bf16_pair(a, a + 1, t2)
        e("v_pk_add_f32 %s, %s, %s" % (vp(a), vp(a), vp(vB1 + k)))
        round_bf16_pair(a, a + 1, t2)
        e("v_pk_mul_f32 %s, %s, %s" % (vp(t), vp(a), vp(a)))
        e("v_pk_fma_f32 %s, %s, %s, %s op_sel_hi:[1,0,1]" % (vp(t), vp(t), sp(sC4), vp(cC3)))
        e("v_pk_mul_f32 %s, %s, %s" % (vp(t), vp(t), vp(a)))
        e("v_exp_f32 %s, %s" % (v(t), v(t)))
        e("v_exp_f32 %s, %s" % (v(t + 1), v(t + 1)))
        nop(1)
        e("v_pk_add_f32 %s, %s, 1.0 op_sel_hi:[1,0]" % (vp(t), vp(t)))
        e("v_rcp_f32 %s, %s" % (v(t), v(t)))
        e("v_rcp_f32 %s, %s" % (v(t + 1), v(t + 1)))
        nop(1)
        e("v_pk_mul_f32 %s, %s, %s" % (vp(a), vp(a), vp(t)))
        round_bf16_pair(a, a + 1, t2)
        if k == 0:
            e("v_pk_mul_f32 %s, %s, %s" % (vp(Y), vp(a), vp(vW2 + k)))
        else:
            e("v_pk_fma_f32 %s, %s, %s, %s" % (vp(Y), vp(a), vp(vW2 + k), vp(Y)))
    e("v_add_f32 %s, %s, %s" % (v(Y), v(Y), v(Y + 1)))
    allreduce("add", [Y], [T + 24])

hdr = open("cdna_kernels/%s.s.ref" % NAME).read().split("\n")
for ln in hdr:
    if ln.startswith("; @launch"):
        L.append("; @launch grid=(256,1,1) block=(512,1,1) lds=%d" % LDS_TOTAL)
        break
    L.append(ln)
L.append('.amdgcn_target "amdgcn-amd-amdhsa--gfx950"')
L.append(".text")
L.append(".globl %s_kernel" % NAME)
L.append(".p2align 8")
L.append(".type %s_kernel,@function" % NAME)
lab("%s_kernel" % NAME)

e("s_cmp_ge_u32 s2, 256")
e("s_cbranch_scc1 END")
e("s_load_dwordx16 s[16:31], s[0:1], 0")
e("s_load_dwordx8 s[32:39], s[0:1], 64")
e("s_load_dwordx2 s[40:41], s[0:1], 96")
e("v_and_b32 %s, 63, v0" % v(vL))
e("v_lshrrev_b32 v2, 6, v0")
e("s_and_b32 s%d, s2, 7" % sG)
e("s_lshr_b32 s%d, s2, 3" % sC)
e("v_readfirstlane_b32 s%d, v2" % sWAVE)
e("v_lshlrev_b32 %s, 4, %s" % (v(aL16), v(vL)))
e("v_lshlrev_b32 %s, 5, %s" % (v(aL32), v(vL)))
e("s_mov_b32 s%d, 0" % sLAY)
e("s_lshl_b32 s%d, s%d, 5" % (sPI, sG))
e("s_add_u32 s%d, s%d, s%d" % (sPI, sPI, sC))
e("s_mov_b32 s%d, %s" % (sC1, fh(LOG2E)))
e("s_mov_b32 s%d, %s" % (sC2, fh(SCALE)))
GC0 = -2.0 * 0.7978845608028654 * LOG2E
GC1 = GC0 * 0.044715
e("s_mov_b32 s%d, %s" % (sC3, fh(GC0)))
e("s_mov_b32 s%d, %s" % (sC4, fh(GC1)))
e("s_waitcnt lgkmcnt(0)")
e("s_cmp_ge_u32 s%d, 4" % sWAVE)
e("s_cbranch_scc1 LOADER")
e("s_load_dword s%d, %s, 0" % (sTAG, sp(P_WS)))

XV = T
XL = T + 8
if TS:
    e("s_memtime s[98:99]" if TS != 9999 else "s_memrealtime s[98:99]")
    e("s_waitcnt lgkmcnt(0)")
    e("s_mov_b32 s%d, s98" % (sTSB + 2 * NTS))
e("s_cmp_lg_u32 s%d, 0" % sWAVE)
e("s_cbranch_scc1 NOX")
e("global_load_dwordx4 %s, %s, %s" % (vr(XL, 4), v(aL16), sp(P_X)))
lab("NOX")
sacc([(sG, 24), (sC, 15), (sWAVE, 13)], W0 * 256)
e("v_and_b32 v3, 15, %s" % v(vL))
e("v_lshrrev_b32 v4, 4, %s" % v(vL))
e("v_lshlrev_b32 v2, 8, v3")
e("v_lshl_add_u32 v2, v4, 4, v2")
e("v_add_u32 v2, s%d, v2" % sT0)
e("v_add_u32 v5, 0x1000, v2")
for Tt in range(2):
    for s in range(4):
        e("global_load_dwordx4 %s, %s, %s offset:%d nt" % (vr(vK + Tt * 16 + s * 4, 4), "v2" if Tt == 0 else "v5", sp(P_K), s * 64))
e("v_mov_b32 v6, 0")
e("global_load_ushort %s, v6, %s" % (v(vB2), sp(P_B2)))
e("s_lshl_b32 s%d, s%d, 2" % (sT0, sPI))
e("v_mov_b32 v6, s%d" % sT0)
e("global_load_dword %s, v6, %s" % (v(vXR), sp(P_X)))

sacc([(sG, 11)], QS_OFF)
e("v_add_u32 %s, s%d, %s" % (v(aQS), sT0, v(aL32)))
sacc([(sG, 11), (sC, 6), (sWAVE, 4)], QS_OFF)
e("v_mov_b32 %s, s%d" % (v(aQW), sT0))
e("v_and_b32 v6, 3, v3")
e("v_lshlrev_b32 v6, 8, v6")
e("v_lshl_add_u32 v6, v4, 4, v6")
e("v_add_u32 %s, 0x%x, v6" % (v(aQF), LQ))
sacc([(sG, 17), (sC, 12)], PO_OFF)
e("v_lshlrev_b32 v6, 4, v0")
e("v_add_u32 %s, s%d, v6" % (v(aPOW), sT0))
sacc([(2, 12)], OP_OFF)
e("v_add_u32 %s, s%d, v6" % (v(aOPW), sT0))
sacc([(sG, 11), (sC, 6), (sWAVE, 4)], ST_OFF)
e("v_mov_b32 %s, s%d" % (v(aSTW), sT0))
e("s_lshr_b32 s%d, s%d, 3" % (sT2, sC))
sacc([(sG, 11), (sT2, 4)], ST_OFF)
e("v_lshrrev_b32 v6, 1, %s" % v(vL))
e("v_lshlrev_b32 v7, 6, v6")
e("v_add_u32 %s, s%d, v7" % (v(aSTR), sT0))
sacc([(sG, 17), (sC, 7), (sWAVE, 5)], PO_OFF)
e("v_lshlrev_b32 v7, 12, v6")
e("v_and_b32 v6, 1, %s" % v(vL))
e("v_lshl_add_u32 v7, v6, 4, v7")
e("v_add_u32 %s, s%d, v7" % (v(aPOR), sT0))
sacc([(sPI, 4)], OP_OFF)
e("v_lshlrev_b32 v6, 12, %s" % v(vL))
e("v_add_u32 %s, s%d, v6" % (v(aOPR), sT0))
sacc([(sG, 11)], X1_OFF)
e("v_add_u32 %s, s%d, %s" % (v(aX1R), sT0, v(aL32)))
sacc([(sPI, 3)], X1_OFF)
e("v_lshlrev_b32 v6, 11, %s" % v(vL))
e("v_add_u32 %s, s%d, v6" % (v(aXW), sT0))
e("v_lshrrev_b32 v6, 2, v3")
e("v_lshl_add_u32 v6, v4, 2, v6")
e("v_lshlrev_b32 v7, 8, v6")
e("v_and_b32 v6, 7, v6")
e("v_lshl_add_u32 v7, v6, 5, v7")
e("v_and_b32 v6, 3, %s" % v(vL))
e("v_lshl_add_u32 v7, v6, 3, v7")
e("s_lshl_b32 s%d, s%d, 13" % (sT0, sWAVE))
e("v_add_u32 %s, s%d, v7" % (v(aVT), sT0))
sacc([(sWAVE, 11)], LSC)
e("v_lshlrev_b32 v6, 4, v3")
e("v_add_u32 %s, s%d, v6" % (v(aSCW), sT0))
sacc([(sWAVE, 2)], LSC)
e("v_add_u32 %s, s%d, %s" % (v(aSCR), sT0, v(aL32)))
e("s_add_u32 s%d, s%d, 0x%x" % (sWS2, P_WS, SDELTA))
e("s_addc_u32 s%d, s%d, 0" % (sWS2 + 1, P_WS + 1))
e("s_waitcnt lgkmcnt(0)")
e("s_add_u32 s%d, s%d, 1" % (sTAG, sTAG))

lab("LAYER")
e("s_lshl_b32 s%d, s%d, 3" % (sLAY2, sLAY))
e("s_cmp_lg_u32 s%d, 0" % sWAVE)
e("s_cbranch_scc1 QW")
e("s_cmp_lg_u32 s%d, 0" % sLAY)
e("s_cbranch_scc1 QPOLL")
e("s_waitcnt vmcnt(10)")
for i in range(4):
    e("v_lshlrev_b32 %s, 16, %s" % (v(XV + 2 * i), v(XL + i)))
    e("v_and_b32 %s, 0xffff0000, %s" % (v(XV + 2 * i + 1), v(XL + i)))
e("s_branch QLN")
lab("QPOLL")
G0 = T + 8
e("v_add_u32 v6, 0x%x, %s" % (X2_OFF - X1_OFF, v(aX1R)))
e("s_sub_u32 s%d, s%d, 1" % (sTAG, sTAG))
poll(["global_load_dwordx4 %s, v6, %s sc1" % (vr(G0, 4), sp(P_WS)),
      "global_load_dwordx4 %s, v6, %s offset:16 sc1" % (vr(G0 + 4, 4), sp(P_WS))],
     [G0 + 1, G0 + 3, G0 + 5, G0 + 7], T + 16, T + 17)
e("s_add_u32 s%d, s%d, 1" % (sTAG, sTAG))
for i in range(4):
    e("v_lshlrev_b32 %s, 16, %s" % (v(XV + 2 * i), v(G0 + 2 * i)))
    e("v_and_b32 %s, 0xffff0000, %s" % (v(XV + 2 * i + 1), v(G0 + 2 * i)))
lab("QLN")
ts()
layernorm(XV, [], T + 16)
e("v_add_u32 v6, 0x%x, %s" % (LH, v(aL32)))
e("ds_write_b128 v6, %s" % vr(XV, 4))
e("ds_write_b128 v6, %s offset:16" % vr(XV + 4, 4))
e("s_waitcnt lgkmcnt(0)")
e("s_barrier")
e("s_branch QG")
lab("QW")
e("v_add_u32 v6, 0x%x, %s" % (LH, v(aL32)))
e("s_barrier")
e("ds_read_b128 %s, v6" % vr(XV, 4))
e("ds_read_b128 %s, v6 offset:16" % vr(XV + 4, 4))
lab("QG")
e("s_cmp_lg_u32 s%d, 0" % sLAY)
e("s_cbranch_scc1 QG2")
sacc([(sWAVE, 3)], LWQ)
e("v_lshlrev_b32 v6, 8, %s" % v(vL))
e("v_add_u32 v6, s%d, v6" % sT0)
WT = T + 16
for i in range(8):
    e("ds_read_b64 %s, v6 offset:%d" % (vr(WT + 2 * i, 2), 32 * i))
e("s_waitcnt lgkmcnt(0)")
for i in range(16):
    e("v_lshlrev_b32 %s, 16, %s" % (v(vWQF + 2 * i), v(WT + i)))
    e("v_and_b32 %s, 0xffff0000, %s" % (v(vWQF + 2 * i + 1), v(WT + i)))
lab("QG2")
e("s_waitcnt lgkmcnt(0)")
A = T + 32
U = T + 36
for i in range(8):
    hb, hs = bcast_sel(XV + i)
    for hlf in range(2):
        w = vWQF + 4 * i + 2 * hlf
        if i == 0:
            e("v_pk_mul_f32 %s, %s, %s op_sel:[%d,0] op_sel_hi:[%d,1]" % (vp(A + 2 * hlf), vp(hb), vp(w), hs, hs))
        else:
            e("v_pk_fma_f32 %s, %s, %s, %s op_sel:[%d,0,0] op_sel_hi:[%d,1,1]" % (vp(A + 2 * hlf), vp(hb), vp(w), vp(A + 2 * hlf), hs, hs))
allreduce("add", [A, A + 1, A + 2, A + 3], [U, U + 1, U + 2, U + 3])
e("v_cvt_pk_bf16_f32 %s, %s, %s" % (v(U), v(A), v(A + 1)))
e("v_mov_b32 %s, s%d" % (v(U + 1), sTAG))
e("v_cvt_pk_bf16_f32 %s, %s, %s" % (v(U + 2), v(A + 2), v(A + 3)))
e("v_mov_b32 %s, s%d" % (v(U + 3), sTAG))
mask_begin(1)
e("s_cmp_lg_u32 s%d, 0" % sLAY)
e("s_cbranch_scc1 QST1")
gstore(v(aQW), vr(U, 4))
e("s_branch QST2")
lab("QST1")
fstore(v(aQW), vr(U, 4))
lab("QST2")
mask_end()
ts()
e("s_cmp_lg_u32 s%d, 0" % sWAVE)
e("s_cbranch_scc1 SW")
G0 = T
poll(["global_load_dwordx4 %s, %s, %s sc1" % (vr(G0, 4), v(aQS), sp(sPB)),
      "global_load_dwordx4 %s, %s, %s offset:16 sc1" % (vr(G0 + 4, 4), v(aQS), sp(sPB))],
     [G0 + 1, G0 + 3, G0 + 5, G0 + 7], T + 8, T + 9, dual=True)
ts()
e("v_mov_b32 %s, %s" % (v(G0 + 1), v(G0 + 2)))
e("v_mov_b32 %s, %s" % (v(G0 + 2), v(G0 + 4)))
e("v_mov_b32 %s, %s" % (v(G0 + 3), v(G0 + 6)))
e("v_add_u32 v6, 0x%x, %s" % (LQ, v(aL16)))
e("ds_write_b128 v6, %s" % vr(G0, 4))
e("s_waitcnt lgkmcnt(0)")
lab("SW")
e("s_barrier")
QL = T
for s in range(4):
    e("ds_read_b128 %s, %s offset:%d" % (vr(QL + 4 * s, 4), v(aQF), 64 * s))
e("s_waitcnt vmcnt(0) lgkmcnt(0)")
SC0 = T + 32
for s in range(4):
    for Tt in range(2):
        c = "0" if s == 0 else vr(SC0 + 4 * Tt, 4)
        e("v_mfma_f32_16x16x32_bf16 %s, %s, %s, %s" % (vr(SC0 + 4 * Tt, 4), vr(vK + Tt * 16 + s * 4, 4), vr(QL + 4 * s, 4), c))
nop(8)
tmp = T + 40
for i in range(0, 8, 2):
    round_bf16_pair(SC0 + i, SC0 + i + 1, tmp)
    e("v_pk_mul_f32 %s, %s, %s op_sel_hi:[1,0]" % (vp(SC0 + i), vp(SC0 + i), sp(sC2)))
    round_bf16_pair(SC0 + i, SC0 + i + 1, tmp)
M = T + 41
e("v_max3_f32 %s, %s, %s, %s" % (v(M), v(SC0), v(SC0 + 1), v(SC0 + 2)))
e("v_max3_f32 %s, %s, %s, %s" % (v(M), v(M), v(SC0 + 3), v(SC0 + 4)))
e("v_max3_f32 %s, %s, %s, %s" % (v(M), v(M), v(SC0 + 5), v(SC0 + 6)))
e("v_max_f32 %s, %s, %s" % (v(M), v(M), v(SC0 + 7)))
allreduce("max", [M], [tmp], rors=())
MM = T + 42
e("v_mul_f32 %s, s%d, %s" % (v(MM), sC1, v(M)))
for i in range(8):
    e("v_fma_f32 %s, %s, s%d, -%s" % (v(SC0 + i), v(SC0 + i), sC1, v(MM)))
for i in range(8):
    e("v_exp_f32 %s, %s" % (v(SC0 + i), v(SC0 + i)))
nop(1)
PA = T + 44
for i in range(4):
    e("v_cvt_pk_bf16_f32 %s, %s, %s" % (v(PA + i), v(SC0 + 2 * i), v(SC0 + 2 * i + 1)))
e("s_cmp_lg_u32 s%d, 0" % sLAY)
e("s_cbranch_scc1 SV")
e("s_barrier")
for Td in range(8):
    e("v_xor_b32 v6, 0x%x, %s" % (Td << 5, v(aVT)))
    e("ds_read_b64_tr_b16 %s, v6" % vr(vVF + 4 * Td, 2))
    e("ds_read_b64_tr_b16 %s, v6 offset:4096" % vr(vVF + 4 * Td + 2, 2))
e("s_waitcnt lgkmcnt(0)")
lab("SV")
ts()
D0 = T
for Td in range(8):
    e("v_mfma_f32_16x16x32_bf16 %s, %s, %s, 0" % (vr(D0 + 4 * Td, 4), vr(PA, 4), vr(vVF + 4 * Td, 4)))
LS = T + 43
e("v_pk_add_f32 %s, %s, %s" % (vp(SC0), vp(SC0), vp(SC0 + 2)))
e("v_pk_add_f32 %s, %s, %s" % (vp(SC0 + 4), vp(SC0 + 4), vp(SC0 + 6)))
e("v_pk_add_f32 %s, %s, %s" % (vp(SC0), vp(SC0), vp(SC0 + 4)))
e("v_add_f32 %s, %s, %s" % (v(LS), v(SC0), v(SC0 + 1)))
allreduce("add", [LS], [tmp], rors=())
sacc([(sWAVE, 5)], LSS)
e("v_lshlrev_b32 v6, 3, %s" % v(vL))
e("v_add_u32 v6, s%d, v6" % sT0)
e("v_mov_b32 %s, %s" % (v(T + 40), v(M)))
e("v_mov_b32 %s, %s" % (v(T + 41), v(LS)))
e("s_mov_b64 %s, exec" % sp(sEX))
e("s_mov_b64 exec, 15")
e("ds_write_b64 v6, %s" % vr(T + 40, 2))
e("s_mov_b64 exec, 0xffff")
for Td in range(8):
    e("ds_write_b128 %s, %s offset:%d" % (v(aSCW), vr(D0 + 4 * Td, 4), Td * 256))
e("s_mov_b64 exec, %s" % sp(sEX))
e("s_waitcnt lgkmcnt(0)")
e("s_barrier")
R = T
e("ds_read2_b32 %s, %s offset0:0 offset1:4" % (vr(R, 2), v(aSCR)))
for w_ in range(1, 4):
    e("v_add_u32 v6, 0x%x, %s" % (2048 * w_, v(aSCR)))
    e("ds_read2_b32 %s, v6 offset0:0 offset1:4" % vr(R + 2 * w_, 2))
sacc([(sWAVE, 3)], LSS)
e("v_mov_b32 v6, s%d" % sT0)
for w_ in range(4):
    e("ds_read_b64 %s, v6 offset:%d" % (vr(R + 8 + 2 * w_, 2), 32 * w_))
e("v_mov_b32 v7, 0x%x" % LFL)
e("ds_read_b32 v7, v7")
e("s_waitcnt lgkmcnt(0)")
e("v_readfirstlane_b32 s%d, v7" % sFAST)
nop(4)
e("s_cmp_lg_u32 s%d, 0" % sFAST)
e("s_cbranch_scc1 DIAG1")
for i in range(6):
    e("s_sleep 127")
lab("DIAG1")
MC, E0, LC, O0, O1 = T + 16, T + 17, T + 22, T + 24, T + 26
e("v_max3_f32 %s, %s, %s, %s" % (v(MC), v(R + 8), v(R + 10), v(R + 12)))
e("v_max_f32 %s, %s, %s" % (v(MC), v(MC), v(R + 14)))
for w_ in range(4):
    e("v_sub_f32 %s, %s, %s" % (v(E0 + w_), v(R + 8 + 2 * w_), v(MC)))
    e("v_mul_f32 %s, s%d, %s" % (v(E0 + w_), sC1, v(E0 + w_)))
for w_ in range(4):
    e("v_exp_f32 %s, %s" % (v(E0 + w_), v(E0 + w_)))
nop(1)
e("v_mul_f32 %s, %s, %s" % (v(LC), v(E0), v(R + 9)))
e("v_mul_f32 %s, %s, %s" % (v(O0), v(E0), v(R)))
e("v_mul_f32 %s, %s, %s" % (v(O1), v(E0), v(R + 1)))
for w_ in range(1, 4):
    e("v_fmac_f32 %s, %s, %s" % (v(LC), v(E0 + w_), v(R + 9 + 2 * w_)))
    e("v_fmac_f32 %s, %s, %s" % (v(O0), v(E0 + w_), v(R + 2 * w_)))
    e("v_fmac_f32 %s, %s, %s" % (v(O1), v(E0 + w_), v(R + 2 * w_ + 1)))
e("v_mov_b32 %s, s%d" % (v(O0 + 1), sTAG))
e("v_mov_b32 %s, s%d" % (v(O1 + 1), sTAG))
fstore(v(aPOW), vr(O0, 4))
S4 = T + 28
e("v_mov_b32 %s, %s" % (v(S4), v(MC)))
e("v_mov_b32 %s, s%d" % (v(S4 + 1), sTAG))
e("v_mov_b32 %s, %s" % (v(S4 + 2), v(LC)))
e("v_mov_b32 %s, s%d" % (v(S4 + 3), sTAG))
mask_begin(1)
fstore(v(aSTW), vr(S4, 4))
mask_end()
ts()
e("s_cmp_lg_u32 s%d, 0" % sLAY)
e("s_cbranch_scc1 OPH")
sacc([(sWAVE, 12)], LWO)
e("v_add_u32 v6, s%d, %s" % (sT0, v(aL16)))
WT = T + 32
for i in range(4):
    e("ds_read_b128 %s, v6 offset:%d" % (vr(WT + 4 * i, 4), 1024 * i))
e("s_waitcnt lgkmcnt(0)")
for i in range(16):
    e("v_lshlrev_b32 %s, 16, %s" % (v(vWOF + 2 * i), v(WT + i)))
    e("v_and_b32 %s, 0xffff0000, %s" % (v(vWOF + 2 * i + 1), v(WT + i)))
load_mixer_weights("v0")
e("v_lshlrev_b32 %s, 16, %s" % (v(vB2), v(vB2)))
e("v_and_b32 %s, 0xffff0000, %s" % (v(vXR + 1), v(vXR)))
e("v_lshlrev_b32 %s, 16, %s" % (v(vXR), v(vXR)))
lab("OPH")
SR, PR = T, T + 4
poll(["global_load_dwordx4 %s, %s, %s sc1" % (vr(SR, 4), v(aSTR), sp(P_WS)),
      "global_load_dwordx4 %s, %s, %s sc1" % (vr(PR, 4), v(aPOR), sp(P_WS))],
     [SR + 1, SR + 3, PR + 1, PR + 3], T + 8, T + 9)
ts()
Mx = T + 8
e("v_mov_b32 %s, %s" % (v(Mx), v(SR)))
allreduce("max", [Mx], [T + 9], rors=(2, 4, 8))
Ee = T + 10
e("v_sub_f32 %s, %s, %s" % (v(Ee), v(SR), v(Mx)))
e("v_mul_f32 %s, s%d, %s" % (v(Ee), sC1, v(Ee)))
e("v_exp_f32 %s, %s" % (v(Ee), v(Ee)))
nop(1)
A0, A1, A2 = T + 12, T + 13, T + 14
e("v_mul_f32 %s, %s, %s" % (v(A0), v(Ee), v(SR + 2)))
e("v_mul_f32 %s, %s, %s" % (v(A1), v(Ee), v(PR)))
e("v_mul_f32 %s, %s, %s" % (v(A2), v(Ee), v(PR + 2)))
allreduce("add", [A0, A1, A2], [T + 16, T + 17, T + 18], rors=(2, 4, 8))
e("v_rcp_f32 %s, %s" % (v(A0), v(A0)))
nop(1)
e("v_mul_f32 %s, %s, %s" % (v(A1), v(A1), v(A0)))
e("v_mul_f32 %s, %s, %s" % (v(A2), v(A2), v(A0)))
round_bf16_pair(A1, A2, T + 16)
OO = T + 20
nop(2)
e("v_mov_b32_dpp %s, %s quad_perm:[0,0,2,2] %s" % (v(OO), v(A1), DPPM))
e("v_mov_b32_dpp %s, %s quad_perm:[0,0,2,2] %s" % (v(OO + 1), v(A2), DPPM))
e("v_mov_b32_dpp %s, %s quad_perm:[1,1,3,3] %s" % (v(OO + 2), v(A1), DPPM))
e("v_mov_b32_dpp %s, %s quad_perm:[1,1,3,3] %s" % (v(OO + 3), v(A2), DPPM))
AC = T + 24
for i in range(4):
    ob, os_ = bcast_sel(OO + i)
    for k in range(4):
        w = vWOF + 8 * i + 2 * k
        if i == 0:
            e("v_pk_mul_f32 %s, %s, %s op_sel:[%d,0] op_sel_hi:[%d,1]" % (vp(AC + 2 * k), vp(ob), vp(w), os_, os_))
        else:
            e("v_pk_fma_f32 %s, %s, %s, %s op_sel:[%d,0,0] op_sel_hi:[%d,1,1]" % (vp(AC + 2 * k), vp(ob), vp(w), vp(AC + 2 * k), os_, os_))
sacc([(sWAVE, 11)], LOC)
e("v_add_u32 v6, s%d, %s" % (sT0, v(aL32)))
e("ds_write_b128 v6, %s" % vr(AC, 4))
e("ds_write_b128 v6, %s offset:16" % vr(AC + 4, 4))
e("v_lshlrev_b32 v6, 3, v0")
e("v_add_u32 v6, 0x%x, v6" % LOC)
e("s_waitcnt lgkmcnt(0)")
e("s_barrier")
R = T
for w_ in range(4):
    e("ds_read_b64 %s, v6 offset:%d" % (vr(R + 2 * w_, 2), 2048 * w_))
e("s_waitcnt lgkmcnt(0)")
O4 = T + 8
e("v_pk_add_f32 %s, %s, %s" % (vp(R), vp(R), vp(R + 2)))
e("v_pk_add_f32 %s, %s, %s" % (vp(R + 4), vp(R + 4), vp(R + 6)))
e("v_add_f32 %s, %s, %s" % (v(O4), v(R), v(R + 4)))
e("v_add_f32 %s, %s, %s" % (v(O4 + 2), v(R + 1), v(R + 5)))
e("v_mov_b32 %s, s%d" % (v(O4 + 1), sTAG))
e("v_mov_b32 %s, s%d" % (v(O4 + 3), sTAG))
e("global_store_dwordx4 %s, %s, %s sc1" % (v(aOPW), vr(O4, 4), sp(P_WS)))
ts()
e("s_cmp_lg_u32 s%d, 0" % sWAVE)
e("s_cbranch_scc1 MW")
XR = T + 16
AD = T + 40
for k in range(1, 4):
    e("v_add_u32 %s, 0x%x, %s" % (v(AD + k), 0x40000 * k, v(aOPR)))
loads = []; tags = []
for k in range(4):
    loads.append("global_load_dwordx4 %s, %s, %s sc1" % (vr(XR + 4 * k, 4), v(aOPR) if k == 0 else v(AD + k), sp(P_WS)))
    tags += [XR + 4 * k + 1, XR + 4 * k + 3]
poll(loads, tags, T + 32, T + 33)
ts()
Y0, Y1 = T + 32, T + 33
e("v_add_f32 %s, %s, %s" % (v(Y0), v(XR), v(XR + 4)))
e("v_add_f32 %s, %s, %s" % (v(Y1), v(XR + 2), v(XR + 6)))
e("v_add_f32 %s, %s, %s" % (v(XR + 8), v(XR + 8), v(XR + 12)))
e("v_add_f32 %s, %s, %s" % (v(XR + 10), v(XR + 10), v(XR + 14)))
e("v_add_f32 %s, %s, %s" % (v(Y0), v(Y0), v(XR + 8)))
e("v_add_f32 %s, %s, %s" % (v(Y1), v(Y1), v(XR + 10)))
allreduce("add", [Y0, Y1], [T + 34, T + 35])
round_bf16_pair(Y0, Y1, T + 34)
e("v_pk_add_f32 %s, %s, %s" % (vp(Y0), vp(Y0), vp(vXR)))
e("v_cvt_pk_bf16_f32 %s, %s, %s" % (v(T + 36), v(Y0), v(Y1)))
e("v_mov_b32 %s, s%d" % (v(T + 37), sTAG))
mask_begin(255)
e("global_store_dwordx2 %s, %s, %s sc1" % (v(aXW), vr(T + 36, 2), sp(P_WS)))
mask_end()
e("v_lshlrev_b32 %s, 16, %s" % (v(vXR), v(T + 36)))
e("v_and_b32 %s, 0xffff0000, %s" % (v(vXR + 1), v(T + 36)))
ts()
G0 = T + 8
poll(["global_load_dwordx4 %s, %s, %s sc1" % (vr(G0, 4), v(aX1R), sp(P_WS)),
      "global_load_dwordx4 %s, %s, %s offset:16 sc1" % (vr(G0 + 4, 4), v(aX1R), sp(P_WS))],
     [G0 + 1, G0 + 3, G0 + 5, G0 + 7], T + 18, T + 19)
ts()
for i in range(4):
    e("v_lshlrev_b32 %s, 16, %s" % (v(XV + 2 * i), v(G0 + 2 * i)))
    e("v_and_b32 %s, 0xffff0000, %s" % (v(XV + 2 * i + 1), v(G0 + 2 * i)))
H0 = T + 18
e("v_mov_b32 %s, %s" % (v(H0), v(vXR)))
e("v_mov_b32 %s, %s" % (v(H0 + 1), v(vXR + 1)))
layernorm(XV, [H0], T + 24)
layernorm(XV, [H0], T + 24, only_extra=True)
e("v_mov_b32 v6, 0x%x" % LHB)
mask_begin(1)
e("ds_write_b64 v6, %s" % vr(H0, 2))
mask_end()
e("s_waitcnt lgkmcnt(0)")
e("s_barrier")
e("s_branch MG")
lab("MW")
e("v_mov_b32 v6, 0x%x" % LHB)
e("s_barrier")
e("ds_read_b64 %s, v6" % vr(H0, 2))
e("s_waitcnt lgkmcnt(0)")
lab("MG")
ts()
Ya = T + 22
mixer(H0, 0, Ya)
sacc([(sWAVE, 2)], LMC)
e("v_mov_b32 v6, s%d" % sT0)
mask_begin(1)
e("ds_write_b32 v6, %s" % v(Ya))
mask_end()
e("s_waitcnt lgkmcnt(0)")
e("s_barrier")
e("s_cmp_lg_u32 s%d, 0" % sWAVE)
e("s_cbranch_scc1 MSKIP")
e("v_mov_b32 v6, 0x%x" % LMC)
e("ds_read_b128 %s, v6" % vr(T + 24, 4))
e("ds_read_b128 %s, v6 offset:16" % vr(T + 28, 4))
e("s_waitcnt lgkmcnt(0)")
Yb = Ya + 1
e("v_pk_add_f32 %s, %s, %s" % (vp(T + 24), vp(T + 24), vp(T + 26)))
e("v_pk_add_f32 %s, %s, %s" % (vp(T + 28), vp(T + 28), vp(T + 30)))
e("v_add_f32 %s, %s, %s" % (v(Ya), v(T + 24), v(T + 25)))
e("v_add_f32 %s, %s, %s" % (v(Yb), v(T + 28), v(T + 29)))
round_bf16_pair(Ya, Yb, T + 24)
e("v_add_f32 %s, %s, %s" % (v(Ya), v(Ya), v(vB2)))
e("v_add_f32 %s, %s, %s" % (v(Yb), v(Yb), v(vB2)))
round_bf16_pair(Ya, Yb, T + 24)
e("v_pk_add_f32 %s, %s, %s" % (vp(Ya), vp(Ya), vp(vXR)))
e("v_cvt_pk_bf16_f32 %s, %s, %s" % (v(T + 26), v(Ya), v(Yb)))
e("v_mov_b32 %s, s%d" % (v(T + 27), sTAG))
e("s_cmp_lg_u32 s%d, 0" % sLAY)
e("s_cbranch_scc1 FINAL")
e("v_add_u32 v6, 0x%x, %s" % (X2_OFF - X1_OFF, v(aXW)))
mask_begin(255)
e("global_store_dwordx2 v6, %s, %s sc1" % (vr(T + 26, 2), sp(P_WS)))
mask_end()
e("v_lshlrev_b32 %s, 16, %s" % (v(vXR), v(T + 26)))
e("v_and_b32 %s, 0xffff0000, %s" % (v(vXR + 1), v(T + 26)))
e("s_branch MDONE")
lab("FINAL")
e("s_lshl_b32 s%d, s%d, 2" % (sT0, sPI))
e("v_mov_b32 v6, s%d" % sT0)
mask_begin(1)
e("global_store_dword v6, %s, %s" % (v(T + 26), sp(P_OUT)))
e("s_cmp_lg_u32 s2, 0")
e("s_cbranch_scc1 NOEP")
e("v_mov_b32 v6, 0")
e("global_store_dword v6, %s, %s" % (v(T + 27), sp(P_WS)))
lab("NOEP")
mask_end()
lab("MDONE")
ts()
lab("MSKIP")
e("s_add_u32 s%d, s%d, 1" % (sTAG, sTAG))
e("s_add_u32 s%d, s%d, 1" % (sLAY, sLAY))
e("s_cmp_lt_u32 s%d, 2" % sLAY)
e("s_cbranch_scc1 LAYER")

assert ts_count[0] <= NTS, ts_count[0]
if TS == 9999:
    e("s_cmp_lg_u32 s%d, 0" % sWAVE)
    e("s_cbranch_scc1 END")
    mask_begin(1)
    e("s_lshl_b32 s%d, s2, 7" % sT0)
    e("s_add_u32 s%d, s%d, 0x2000000" % (sT0, sT0))
    e("v_mov_b32 v6, s%d" % sT0)
    e("v_mov_b32 v7, s%d" % (sTSB + 2 * NTS))
    e("global_store_dword v6, v7, %s" % sp(P_WS))
    idx = 1
    for lay in range(2):
        for i in range(ts_count[0]):
            e("v_mov_b32 v7, s%d" % (sTSB + lay * NTS + i))
            e("global_store_dword v6, v7, %s offset:%d" % (sp(P_WS), 4 * idx))
            idx += 1
    mask_end()
e("s_branch END")

lab("LOADER")
e("s_sub_u32 s%d, s%d, 4" % (sWAVE, sWAVE))
e("s_load_dword s%d, %s, 0" % (sTAG, sp(P_WS)))
e("s_getreg_b32 s%d, hwreg(HW_REG_XCC_ID)" % sPIV)
e("s_cmp_lg_u32 s%d, 3" % sWAVE)
e("s_cbranch_scc1 NOID")
sacc([(sG, 8), (sC, 3)], XID_OFF)
e("v_mov_b32 v6, s%d" % sT0)
e("v_mov_b32 %s, s%d" % (v(T), sPIV))
e("s_waitcnt lgkmcnt(0)")
e("s_add_u32 s%d, s%d, 1" % (sT0, sTAG))
e("v_mov_b32 %s, s%d" % (v(T + 1), sT0))
mask_begin(1)
e("global_store_dwordx2 v6, %s, %s sc1" % (vr(T, 2), sp(P_WS)))
mask_end()
lab("NOID")
e("s_lshl_b32 s%d, s%d, 10" % (sT1, sWAVE))
e("v_add_u32 v6, s%d, %s" % (sT1, v(aL16)))
e("s_mov_b64 %s, exec" % sp(sEX))
e("s_cmp_lg_u32 s%d, 3" % sWAVE)
e("s_cbranch_scc1 LD_FULL")
e("s_mov_b32 exec_hi, 0")
lab("LD_FULL")
for base, ptr in ((LW1, P_W1), (LB1, P_B1), (LW2, P_W2)):
    e("s_add_u32 s%d, s%d, 0x%x" % (sT3, sT1, base))
    e("s_mov_b32 m0, s%d" % sT3)
    nop(1)
    e("global_load_lds_dwordx4 v6, %s" % sp(ptr))
e("s_mov_b64 exec, %s" % sp(sEX))
e("v_lshrrev_b32 v3, 1, %s" % v(vL))
e("v_lshlrev_b32 v3, 13, v3")
e("v_and_b32 v4, 1, %s" % v(vL))
e("v_lshl_add_u32 v3, v4, 4, v3")
sacc([(sWAVE, 20), (sG, 10), (sC, 5)], 0)
e("v_add_u32 v3, s%d, v3" % sT0)
e("s_lshl_b32 s%d, s%d, 12" % (sT2, sWAVE))
for i in range(4):
    e("s_add_u32 s%d, s%d, 0x%x" % (sT3, sT2, LWQ + 1024 * i))
    e("s_mov_b32 m0, s%d" % sT3)
    nop(1)
    e("global_load_lds_dwordx4 v3, %s nt" % sp(P_WQ))
    e("v_add_u32 v3, 0x40000, v3")
e("v_and_b32 v3, 15, %s" % v(vL))
e("v_lshrrev_b32 v4, 4, %s" % v(vL))
e("v_lshrrev_b32 v5, 1, v3")
e("v_xor_b32 v6, v5, v4")
e("v_xor_b32 v7, 4, v6")
e("v_and_b32 v5, 1, v3")
e("v_lshl_add_u32 v6, v6, 1, v5")
e("v_lshl_add_u32 v7, v7, 1, v5")
e("v_lshlrev_b32 v6, 4, v6")
e("v_lshlrev_b32 v7, 4, v7")
e("v_lshl_add_u32 v6, v4, 8, v6")
e("v_lshl_add_u32 v7, v4, 8, v7")
sacc([(sG, 24), (sC, 15), (sWAVE, 13)], W0 * 256)
e("v_add_u32 v6, s%d, v6" % sT0)
e("v_add_u32 v7, s%d, v7" % sT0)
e("v_add_u32 v7, 0x400, v7")
e("s_lshl_b32 s%d, s%d, 13" % (sT2, sWAVE))
e("s_waitcnt vmcnt(4)")
for i in range(8):
    e("s_add_u32 s%d, s%d, 0x%x" % (sT3, sT2, LV + 1024 * i))
    e("s_mov_b32 m0, s%d" % sT3)
    nop(1)
    e("global_load_lds_dwordx4 %s, %s nt" % ("v6" if i % 2 == 0 else "v7", sp(P_V)))
    if i % 2 == 0:
        e("v_add_u32 v6, 0x800, v6")
    else:
        e("v_add_u32 v7, 0x800, v7")
sacc([(sG, 8)], XID_OFF)
e("v_and_b32 v9, 31, %s" % v(vL))
e("v_lshlrev_b32 v9, 3, v9")
e("v_add_u32 v9, s%d, v9" % sT0)
e("global_load_dwordx2 %s, v9, %s sc1" % (vr(T + 4, 2), sp(P_WS)))
sacc([(sG, 19), (sC, 14), (sWAVE, 12)], 0)
e("v_add_u32 v6, s%d, %s" % (sT0, v(aL16)))
e("s_lshl_b32 s%d, s%d, 12" % (sT1, sWAVE))
for i in range(4):
    e("s_add_u32 s%d, s%d, 0x%x" % (sT3, sT1, LWO + 1024 * i))
    e("s_mov_b32 m0, s%d" % sT3)
    nop(1)
    e("global_load_lds_dwordx4 v6, %s nt" % sp(P_WO))
    e("v_add_u32 v6, 0x400, v6")
e("s_waitcnt vmcnt(13) lgkmcnt(0)")
e("s_add_u32 s%d, s%d, 1" % (sTAG, sTAG))
e("s_barrier")
e("s_barrier")
e("s_waitcnt vmcnt(4)")
e("s_cmp_lg_u32 s%d, 3" % sWAVE)
e("s_cbranch_scc1 NOID2")
e("s_mov_b32 s%d, 0x100000" % sCNT)
lab("IDP")
e("v_cmp_ne_u32 vcc, s%d, %s" % (sTAG, v(T + 5)))
nop(1)
e("s_cmp_eq_u64 vcc, 0")
e("s_cbranch_scc1 IDD")
e("global_load_dwordx2 %s, v9, %s sc1" % (vr(T + 4, 2), sp(P_WS)))
e("s_waitcnt vmcnt(0)")
e("s_sub_u32 s%d, s%d, 1" % (sCNT, sCNT))
e("s_cbranch_scc0 IDP")
lab("IDD")
e("v_cmp_ne_u32 vcc, s%d, %s" % (sPIV, v(T + 4)))
nop(1)
e("s_cmp_eq_u64 vcc, 0")
e("s_cselect_b32 s%d, 1, 0" % sT3)
e("v_mov_b32 v7, s%d" % sT3)
e("v_mov_b32 v6, 0x%x" % LFL)
e("ds_write_b32 v6, v7")
e("s_waitcnt lgkmcnt(0)")
lab("NOID2")
e("s_barrier")
e("s_waitcnt vmcnt(0)")
e("s_barrier")
e("v_and_b32 v8, 255, v0")
load_mixer_weights("v8")
lab("HLOOP")
e("s_barrier")
e("v_mov_b32 v6, 0x%x" % LHB)
e("s_barrier")
e("ds_read_b64 %s, v6" % vr(H0, 2))
e("s_waitcnt lgkmcnt(0)")
mixer(H0, 1, Ya)
sacc([(sWAVE, 2)], LMC + 16)
e("v_mov_b32 v6, s%d" % sT0)
mask_begin(1)
e("ds_write_b32 v6, %s" % v(Ya))
mask_end()
e("s_waitcnt lgkmcnt(0)")
e("s_barrier")
e("s_cmp_lg_u32 s%d, 0" % sLAY)
e("s_cbranch_scc1 END")
e("s_mov_b32 s%d, 1" % sLAY)
e("s_barrier")
e("s_barrier")
e("s_barrier")
e("s_branch HLOOP")
lab("END")
e("s_endpgm")

L.append('.section .rodata,"a"')
L.append(".p2align 6")
L.append(".amdhsa_kernel %s_kernel" % NAME)
L.append("  .amdhsa_next_free_vgpr 256")
L.append("  .amdhsa_next_free_sgpr 102")
L.append("  .amdhsa_accum_offset 256")
L.append("  .amdhsa_group_segment_fixed_size 0")
L.append("  .amdhsa_kernarg_size 104")
L.append("  .amdhsa_user_sgpr_count 2")
L.append("  .amdhsa_user_sgpr_kernarg_segment_ptr 1")
L.append("  .amdhsa_system_sgpr_workgroup_id_x 1")
L.append("  .amdhsa_float_denorm_mode_32 3")
L.append(".end_amdhsa_kernel")
open(OUT, "w").write("\n".join(L) + "\n")
print("wrote", OUT, "lines", len(L), "ts", ts_count[0])
```

```python
import sys, struct

NAME = "interleave_layers__sliding_block_cached__mixer_token_mlp__decode"
TS = int(sys.argv[2]) if len(sys.argv) > 2 else 0
OUT = sys.argv[1] if len(sys.argv) > 1 else "cdna_kernels/%s.s" % NAME

L = []
def e(s): L.append("  " + s)
def lab(s): L.append(s + ":")
def nop(n):
    while n > 0:
        k = min(n, 16)
        e("s_nop %d" % (k - 1))
        n -= k
def f2u(x): return struct.unpack("<I", struct.pack("<f", x))[0]
def fh(x): return "0x%08x" % f2u(x)

QS_OFF = 0x40000
ST_OFF = 0x8000
XID_OFF = 0xc000
X1_OFF = 0x10000
X2_OFF = 0x20000
PO_OFF = 0x100000
OP_OFF = 0x200000
LV = 0
LWO = 32768
LW1 = 49152
LB1 = LW1 + 3584
LW2 = LB1 + 3584
LSS = 59904
LMC = 60160
LHB = 60288
LFL = 60352
LQ = 60416
LH = 61440
LSC = 63488
LOC = LSC + 8192
LWQ = LOC + 8192
LDS_TOTAL = LWQ + 16384

W0 = 65536 - 4096
LOG2E = 1.4426950408889634
SCALE = 128.0 ** -0.5

sWAVE = 4; sG = 5; sC = 6; sTAG = 7
sT0, sT1, sT2, sT3 = 8, 9, 10, 11
sCNT = 12
sEX = 14
P_X, P_K, P_V, P_WQ, P_WO, P_BX, P_W1, P_B1, P_W2, P_B2, P_OUT, P_DBG, P_WS = [16 + 2 * i for i in range(13)]
sLAY = 42; sPI = 43; sCB = 95; sRB = 88
sC1 = 44; sC2 = 46; sC3 = 48; sC4 = 50
sFAST = 13; sLAY2 = 94; sPIV = 52; sNPIV = 54; sWS2 = 90; sPB = 92
SDELTA = 0x400000
sTSB = 56
def sp(i): return "s[%d:%d]" % (i, i + 1)

vL = 1
vWQF = 16; vK = 48; vVF = 80; vWOF = 112
vW1 = 144; vB1 = 152; vW2 = 160; vB2 = 168
vXR = 170
aQS = 172; aPOW = 173; aSTW = 174; aSTR = 175; aPOR = 176; aOPW = 177; aOPR = 178
aX1R = 179; aXW = 180; aQW = 181; aVT = 182; aSCW = 183; aSCR = 184; aL16 = 185
aQF = 186; aL32 = 187
cC3 = 188
T = 192
def v(i): return "v%d" % i
def vr(i, n): return "v[%d:%d]" % (i, i + n - 1)
def vp(i): return vr(i, 2)

NTS = 13
ts_count = [0]
def ts():
    if not TS: return
    i = ts_count[0]; ts_count[0] += 1
    e("s_memtime s[98:99]" if TS != 9999 else "s_memrealtime s[98:99]")
    e("s_waitcnt lgkmcnt(0)")
    e("s_cmp_eq_u32 s%d, 0" % sLAY)
    e("s_cselect_b32 s%d, s98, s%d" % (sTSB + i, sTSB + i))
    e("s_cselect_b32 s%d, s%d, s98" % (sTSB + NTS + i, sTSB + NTS + i))

DPPM = "row_mask:0xf bank_mask:0xf"

def allreduce(op, regs, tmps, rors=(1, 2, 4, 8)):
    ins = "v_add_f32" if op == "add" else "v_max_f32"
    n = len(regs)
    pad = max(0, 2 - (n - 1))
    nop(2)
    for r in rors:
        for x in regs:
            e("%s_dpp %s, %s, %s row_ror:%d %s" % (ins, v(x), v(x), v(x), r, DPPM))
        nop(pad)
    for sw in ("v_permlane16_swap_b32", "v_permlane32_swap_b32"):
        for x, t in zip(regs, tmps):
            e("v_mov_b32 %s, %s" % (v(t), v(x)))
        nop(pad)
        for x, t in zip(regs, tmps):
            e("%s %s, %s" % (sw, v(x), v(t)))
        nop(1)
        for x, t in zip(regs, tmps):
            e("%s %s, %s, %s" % (ins, v(x), v(x), v(t)))
        nop(pad)

def round_bf16_pair(a, b, tmp):
    e("v_cvt_pk_bf16_f32 %s, %s, %s" % (v(tmp), v(a), v(b)))
    e("v_lshlrev_b32 %s, 16, %s" % (v(a), v(tmp)))
    e("v_and_b32 %s, 0xffff0000, %s" % (v(b), v(tmp)))

def layernorm(X, extra, tb, only_extra=False):
    s2, q2, d2, m, r, t, t2 = tb, tb + 2, tb + 4, tb + 6, tb + 8, tb + 7, tb + 9
    nop(1)
    e("v_readfirstlane_b32 s%d, %s" % (sPIV, v(X)))
    nop(1)
    e("s_xor_b32 s%d, s%d, 0x80000000" % (sNPIV, sPIV))
    nop(1)
    e("v_pk_add_f32 %s, %s, %s op_sel_hi:[1,0]" % (vp(s2), vp(X), sp(sNPIV)))
    e("v_pk_mul_f32 %s, %s, %s" % (vp(q2), vp(s2), vp(s2)))
    for i in range(2, 8, 2):
        e("v_pk_add_f32 %s, %s, %s op_sel_hi:[1,0]" % (vp(d2), vp(X + i), sp(sNPIV)))
        e("v_pk_add_f32 %s, %s, %s" % (vp(s2), vp(s2), vp(d2)))
        e("v_pk_fma_f32 %s, %s, %s, %s" % (vp(q2), vp(d2), vp(d2), vp(q2)))
    s, q = s2, q2
    e("v_add_f32 %s, %s, %s" % (v(s), v(s2), v(s2 + 1)))
    e("v_add_f32 %s, %s, %s" % (v(q), v(q2), v(q2 + 1)))
    allreduce("add", [s, q], [t, t2])
    e("v_mul_f32 %s, %s, %s" % (v(s), fh(1.0 / 512), v(s)))
    e("v_mul_f32 %s, %s, %s" % (v(q), fh(1.0 / 512), v(q)))
    e("v_fma_f32 %s, -%s, %s, %s" % (v(q), v(s), v(s), v(q)))
    e("v_max_f32 %s, 0, %s" % (v(q), v(q)))
    e("v_add_f32 %s, s%d, %s" % (v(m), sPIV, v(s)))
    round_bf16_pair(m, q, t)
    e("v_add_f32 %s, %s, %s" % (v(q), fh(1e-5), v(q)))
    e("v_cvt_pk_bf16_f32 %s, %s, %s" % (v(t), v(q), v(q)))
    e("v_lshlrev_b32 %s, 16, %s" % (v(q), v(t)))
    e("v_sqrt_f32 %s, %s" % (v(q), v(q)))
    e("v_xor_b32 %s, 0x80000000, %s" % (v(m), v(m)))
    e("v_cvt_pk_bf16_f32 %s, %s, %s" % (v(t), v(q), v(q)))
    e("v_lshlrev_b32 %s, 16, %s" % (v(q), v(t)))
    e("v_rcp_f32 %s, %s" % (v(r), v(q)))
    regs = ([] if only_extra else [X + i for i in range(0, 8, 2)]) + list(extra)
    for a in regs:
        e("v_pk_add_f32 %s, %s, %s op_sel_hi:[1,0]" % (vp(a), vp(a), vp(m)))
        round_bf16_pair(a, a + 1, t)
        e("v_pk_mul_f32 %s, %s, %s op_sel_hi:[1,0]" % (vp(a), vp(a), vp(r)))
        round_bf16_pair(a, a + 1, t)

poll_id = [0]
def poll(loads, tags, tmin, tmax, dual=False):
    pid = poll_id[0]; poll_id[0] += 1
    e("s_mov_b32 s%d, 0x100000" % sCNT)
    lab("POLL%d" % pid)
    if dual:
        e("s_and_b32 s%d, s%d, 7" % (sT0, sCNT))
        e("s_or_b32 s%d, s%d, s%d" % (sT0, sT0, sLAY2))
        e("s_cmp_eq_u32 s%d, 1" % sT0)
        e("s_cselect_b64 %s, %s, %s" % (sp(sPB), sp(sWS2), sp(P_WS)))
    for ld in loads:
        e(ld)
    e("s_waitcnt vmcnt(0)")
    tg = list(tags)
    first = tg[:3] if len(tg) >= 3 else tg[:2]
    rest = tg[len(first):]
    if len(first) == 3:
        e("v_min3_u32 %s, %s, %s, %s" % (v(tmin), v(first[0]), v(first[1]), v(first[2])))
        e("v_max3_u32 %s, %s, %s, %s" % (v(tmax), v(first[0]), v(first[1]), v(first[2])))
    else:
        e("v_min_u32 %s, %s, %s" % (v(tmin), v(first[0]), v(first[1])))
        e("v_max_u32 %s, %s, %s" % (v(tmax), v(first[0]), v(first[1])))
    while rest:
        if len(rest) >= 2:
            e("v_min3_u32 %s, %s, %s, %s" % (v(tmin), v(tmin), v(rest[0]), v(rest[1])))
            e("v_max3_u32 %s, %s, %s, %s" % (v(tmax), v(tmax), v(rest[0]), v(rest[1])))
            rest = rest[2:]
        else:
            e("v_min_u32 %s, %s, %s" % (v(tmin), v(tmin), v(rest[0])))
            e("v_max_u32 %s, %s, %s" % (v(tmax), v(tmax), v(rest[0])))
            rest = rest[1:]
    e("v_cmp_ne_u32 vcc, s%d, %s" % (sTAG, v(tmin)))
    e("v_cmp_ne_u32 %s, s%d, %s" % (sp(sT0), sTAG, v(tmax)))
    nop(1)
    e("s_or_b64 vcc, vcc, %s" % sp(sT0))
    e("s_cmp_eq_u64 vcc, 0")
    e("s_cbranch_scc1 POLLX%d" % pid)
    e("s_sub_u32 s%d, s%d, 1" % (sCNT, sCNT))
    e("s_cbranch_scc0 POLL%d" % pid)
    lab("POLLX%d" % pid)

def mask_begin(m):
    e("s_mov_b64 %s, exec" % sp(sEX))
    if m == 0xffffffff:
        e("s_mov_b32 exec_hi, 0")
    else:
        e("s_mov_b64 exec, 0x%x" % m)
def mask_end():
    e("s_mov_b64 exec, %s" % sp(sEX))

def sacc(terms, const):
    first = True
    for reg, sh in terms:
        if first:
            e("s_lshl_b32 s%d, s%d, %d" % (sT0, reg, sh)); first = False
        else:
            e("s_lshl_b32 s%d, s%d, %d" % (sT1, reg, sh))
            e("s_add_u32 s%d, s%d, s%d" % (sT0, sT0, sT1))
    if const:
        e("s_add_u32 s%d, s%d, 0x%x" % (sT0, sT0, const))

def gstore(addr, data):
    e("global_store_dwordx4 %s, %s, %s" % (addr, data, sp(P_WS)))
    e("global_store_dwordx4 %s, %s, %s sc1" % (addr, data, sp(sWS2)))

gst_id = [0]
def fstore(addr, data):
    i = gst_id[0]; gst_id[0] += 1
    e("s_cmp_lg_u32 s%d, 0" % sFAST)
    e("s_cbranch_scc1 GSF%d" % i)
    e("global_store_dwordx4 %s, %s, %s sc1" % (addr, data, sp(P_WS)))
    e("s_branch GSD%d" % i)
    lab("GSF%d" % i)
    e("global_store_dwordx4 %s, %s, %s" % (addr, data, sp(P_WS)))
    lab("GSD%d" % i)

def bcast_sel(reg):
    return (reg & ~1, reg & 1)

def load_mixer_weights(tidreg):
    e("v_lshlrev_b32 v6, 1, %s" % tidreg)
    for k in range(7):
        e("ds_read_u16 %s, v6 offset:%d" % (v(vW1 + k), LW1 + 512 * k))
        e("ds_read_u16 %s, v6 offset:%d" % (v(vB1 + k), LB1 + 512 * k))
        e("ds_read_u16 %s, v6 offset:%d" % (v(vW2 + k), LW2 + 512 * k))
    e("v_mov_b32 %s, 0" % v(vW1 + 7))
    e("v_mov_b32 %s, 0" % v(vB1 + 7))
    e("v_mov_b32 %s, 0" % v(vW2 + 7))
    e("v_mov_b32 %s, s%d" % (v(cC3), sC3))
    e("v_mov_b32 %s, s%d" % (v(cC3 + 1), sC3))
    e("s_waitcnt lgkmcnt(0)")
    for k in range(7):
        for b in (vW1, vB1, vW2):
            e("v_lshlrev_b32 %s, 16, %s" % (v(b + k), v(b + k)))

def mixer(H, hsel, Y):
    a, t, t2 = T + 24, T + 26, T + 28
    for k in range(0, 8, 2):
        e("v_pk_mul_f32 %s, %s, %s op_sel:[0,%d] op_sel_hi:[1,%d]" % (vp(a), vp(vW1 + k), vp(H), hsel, hsel))
        round_bf16_pair(a, a + 1, t2)
        e("v_pk_add_f32 %s, %s, %s" % (vp(a), vp(a), vp(vB1 + k)))
        round_bf16_pair(a, a + 1, t2)
        e("v_pk_mul_f32 %s, %s, %s" % (vp(t), vp(a), vp(a)))
        e("v_pk_fma_f32 %s, %s, %s, %s op_sel_hi:[1,0,1]" % (vp(t), vp(t), sp(sC4), vp(cC3)))
        e("v_pk_mul_f32 %s, %s, %s" % (vp(t), vp(t), vp(a)))
        e("v_exp_f32 %s, %s" % (v(t), v(t)))
        e("v_exp_f32 %s, %s" % (v(t + 1), v(t + 1)))
        nop(1)
        e("v_pk_add_f32 %s, %s, 1.0 op_sel_hi:[1,0]" % (vp(t), vp(t)))
        e("v_rcp_f32 %s, %s" % (v(t), v(t)))
        e("v_rcp_f32 %s, %s" % (v(t + 1), v(t + 1)))
        nop(1)
        e("v_pk_mul_f32 %s, %s, %s" % (vp(a), vp(a), vp(t)))
        round_bf16_pair(a, a + 1, t2)
        if k == 0:
            e("v_pk_mul_f32 %s, %s, %s" % (vp(Y), vp(a), vp(vW2 + k)))
        else:
            e("v_pk_fma_f32 %s, %s, %s, %s" % (vp(Y), vp(a), vp(vW2 + k), vp(Y)))
    e("v_add_f32 %s, %s, %s" % (v(Y), v(Y), v(Y + 1)))
    allreduce("add", [Y], [T + 24])

hdr = open("cdna_kernels/%s.s.ref" % NAME).read().split("\n")
for ln in hdr:
    if ln.startswith("; @launch"):
        L.append("; @launch grid=(256,1,1) block=(512,1,1) lds=%d" % LDS_TOTAL)
        break
    L.append(ln)
L.append('.amdgcn_target "amdgcn-amd-amdhsa--gfx950"')
L.append(".text")
L.append(".globl %s_kernel" % NAME)
L.append(".p2align 8")
L.append(".type %s_kernel,@function" % NAME)
lab("%s_kernel" % NAME)

e("s_cmp_ge_u32 s2, 256")
e("s_cbranch_scc1 END")
e("s_load_dwordx16 s[16:31], s[0:1], 0")
e("s_load_dwordx8 s[32:39], s[0:1], 64")
e("s_load_dwordx2 s[40:41], s[0:1], 96")
e("v_and_b32 %s, 63, v0" % v(vL))
e("v_lshrrev_b32 v2, 6, v0")
e("s_and_b32 s%d, s2, 7" % sG)
e("s_lshr_b32 s%d, s2, 3" % sC)
e("v_readfirstlane_b32 s%d, v2" % sWAVE)
e("v_lshlrev_b32 %s, 4, %s" % (v(aL16), v(vL)))
e("v_lshlrev_b32 %s, 5, %s" % (v(aL32), v(vL)))
e("s_mov_b32 s%d, 0" % sLAY)
e("s_and_b32 s%d, s%d, 7" % (sCB, sC))
e("s_lshr_b32 s%d, s%d, 3" % (sRB, sC))
e("s_lshl_b32 s%d, s%d, 5" % (sPI, sG))
e("s_add_u32 s%d, s%d, s%d" % (sPI, sPI, sC))
e("s_mov_b32 s%d, %s" % (sC1, fh(LOG2E)))
e("s_mov_b32 s%d, %s" % (sC2, fh(SCALE)))
GC0 = -2.0 * 0.7978845608028654 * LOG2E
GC1 = GC0 * 0.044715
e("s_mov_b32 s%d, %s" % (sC3, fh(GC0)))
e("s_mov_b32 s%d, %s" % (sC4, fh(GC1)))
e("s_waitcnt lgkmcnt(0)")
e("s_cmp_ge_u32 s%d, 4" % sWAVE)
e("s_cbranch_scc1 LOADER")
e("s_load_dword s%d, %s, 0" % (sTAG, sp(P_WS)))

XV = T
XL = T + 8
if TS:
    e("s_memtime s[98:99]" if TS != 9999 else "s_memrealtime s[98:99]")
    e("s_waitcnt lgkmcnt(0)")
    e("s_mov_b32 s%d, s98" % (sTSB + 2 * NTS))
e("s_cmp_lg_u32 s%d, 0" % sWAVE)
e("s_cbranch_scc1 NOX")
e("global_load_dwordx4 %s, %s, %s" % (vr(XL, 4), v(aL16), sp(P_X)))
lab("NOX")
sacc([(sG, 24), (sC, 15), (sWAVE, 13)], W0 * 256)
e("v_and_b32 v3, 15, %s" % v(vL))
e("v_lshrrev_b32 v4, 4, %s" % v(vL))
e("v_lshlrev_b32 v2, 8, v3")
e("v_lshl_add_u32 v2, v4, 4, v2")
e("v_add_u32 v2, s%d, v2" % sT0)
e("v_add_u32 v5, 0x1000, v2")
for Tt in range(2):
    for s in range(4):
        e("global_load_dwordx4 %s, %s, %s offset:%d nt" % (vr(vK + Tt * 16 + s * 4, 4), "v2" if Tt == 0 else "v5", sp(P_K), s * 64))
e("v_mov_b32 v6, 0")
e("global_load_ushort %s, v6, %s" % (v(vB2), sp(P_B2)))
e("s_lshl_b32 s%d, s%d, 2" % (sT0, sPI))
e("v_mov_b32 v6, s%d" % sT0)
e("global_load_dword %s, v6, %s" % (v(vXR), sp(P_X)))

sacc([(sG, 14), (sWAVE, 10)], QS_OFF)
e("v_add_u32 %s, s%d, %s" % (v(aQS), sT0, v(aL16)))
sacc([(sG, 14), (sRB, 12), (sCB, 9), (sWAVE, 7)], QS_OFF)
e("v_add_u32 %s, s%d, %s" % (v(aQW), sT0, v(aL32)))
e("v_lshrrev_b32 v6, 2, v3")
e("v_lshlrev_b32 v6, 8, v6")
e("v_lshl_add_u32 v6, v4, 4, v6")
e("v_add_u32 %s, 0x%x, v6" % (v(aQF), LQ))
sacc([(sG, 17), (sC, 12)], PO_OFF)
e("v_lshlrev_b32 v6, 4, v0")
e("v_add_u32 %s, s%d, v6" % (v(aPOW), sT0))
sacc([(2, 12)], OP_OFF)
e("v_add_u32 %s, s%d, v6" % (v(aOPW), sT0))
sacc([(sG, 11), (sC, 6), (sWAVE, 4)], ST_OFF)
e("v_mov_b32 %s, s%d" % (v(aSTW), sT0))
e("s_lshr_b32 s%d, s%d, 3" % (sT2, sC))
sacc([(sG, 11), (sT2, 4)], ST_OFF)
e("v_lshrrev_b32 v6, 1, %s" % v(vL))
e("v_lshlrev_b32 v7, 6, v6")
e("v_add_u32 %s, s%d, v7" % (v(aSTR), sT0))
sacc([(sG, 17), (sC, 7), (sWAVE, 5)], PO_OFF)
e("v_lshlrev_b32 v7, 12, v6")
e("v_and_b32 v6, 1, %s" % v(vL))
e("v_lshl_add_u32 v7, v6, 4, v7")
e("v_add_u32 %s, s%d, v7" % (v(aPOR), sT0))
sacc([(sPI, 4)], OP_OFF)
e("v_lshlrev_b32 v6, 12, %s" % v(vL))
e("v_add_u32 %s, s%d, v6" % (v(aOPR), sT0))
sacc([(sG, 11)], X1_OFF)
e("v_add_u32 %s, s%d, %s" % (v(aX1R), sT0, v(aL32)))
sacc([(sPI, 3)], X1_OFF)
e("v_lshlrev_b32 v6, 11, %s" % v(vL))
e("v_add_u32 %s, s%d, v6" % (v(aXW), sT0))
e("v_lshrrev_b32 v6, 2, v3")
e("v_lshl_add_u32 v6, v4, 2, v6")
e("v_lshlrev_b32 v7, 8, v6")
e("v_and_b32 v6, 7, v6")
e("v_lshl_add_u32 v7, v6, 5, v7")
e("v_and_b32 v6, 3, %s" % v(vL))
e("v_lshl_add_u32 v7, v6, 3, v7")
e("s_lshl_b32 s%d, s%d, 13" % (sT0, sWAVE))
e("v_add_u32 %s, s%d, v7" % (v(aVT), sT0))
sacc([(sWAVE, 11)], LSC)
e("v_lshlrev_b32 v6, 2, v3")
e("v_lshl_add_u32 v6, v4, 9, v6")
e("v_add_u32 %s, s%d, v6" % (v(aSCW), sT0))
sacc([(sWAVE, 9)], LSC)
e("v_lshlrev_b32 v6, 3, %s" % v(vL))
e("v_add_u32 %s, s%d, v6" % (v(aSCR), sT0))
e("s_add_u32 s%d, s%d, 0x%x" % (sWS2, P_WS, SDELTA))
e("s_addc_u32 s%d, s%d, 0" % (sWS2 + 1, P_WS + 1))
e("s_waitcnt lgkmcnt(0)")
e("s_add_u32 s%d, s%d, 1" % (sTAG, sTAG))

lab("LAYER")
e("s_lshl_b32 s%d, s%d, 3" % (sLAY2, sLAY))
e("s_cmp_lg_u32 s%d, 0" % sWAVE)
e("s_cbranch_scc1 QW")
e("s_cmp_lg_u32 s%d, 0" % sLAY)
e("s_cbranch_scc1 QPOLL")
e("s_waitcnt vmcnt(10)")
for i in range(4):
    e("v_lshlrev_b32 %s, 16, %s" % (v(XV + 2 * i), v(XL + i)))
    e("v_and_b32 %s, 0xffff0000, %s" % (v(XV + 2 * i + 1), v(XL + i)))
e("s_branch QLN")
lab("QPOLL")
G0 = T + 8
e("v_add_u32 v6, 0x%x, %s" % (X2_OFF - X1_OFF, v(aX1R)))
e("s_sub_u32 s%d, s%d, 1" % (sTAG, sTAG))
poll(["global_load_dwordx4 %s, v6, %s sc1" % (vr(G0, 4), sp(P_WS)),
      "global_load_dwordx4 %s, v6, %s offset:16 sc1" % (vr(G0 + 4, 4), sp(P_WS))],
     [G0 + 1, G0 + 3, G0 + 5, G0 + 7], T + 16, T + 17)
e("s_add_u32 s%d, s%d, 1" % (sTAG, sTAG))
for i in range(4):
    e("v_lshlrev_b32 %s, 16, %s" % (v(XV + 2 * i), v(G0 + 2 * i)))
    e("v_and_b32 %s, 0xffff0000, %s" % (v(XV + 2 * i + 1), v(G0 + 2 * i)))
lab("QLN")
ts()
layernorm(XV, [], T + 16)
e("v_add_u32 v6, 0x%x, %s" % (LH, v(aL32)))
e("ds_write_b128 v6, %s" % vr(XV, 4))
e("ds_write_b128 v6, %s offset:16" % vr(XV + 4, 4))
e("s_waitcnt lgkmcnt(0)")
lab("QW")
sacc([(sRB, 9)], LH)
e("v_lshrrev_b32 v6, 2, %s" % v(vL))
e("v_lshlrev_b32 v6, 5, v6")
e("v_add_u32 v6, s%d, v6" % sT0)
e("s_barrier")
e("ds_read_b128 %s, v6" % vr(XV, 4))
e("ds_read_b128 %s, v6 offset:16" % vr(XV + 4, 4))
lab("QG")
e("s_cmp_lg_u32 s%d, 0" % sLAY)
e("s_cbranch_scc1 QG2")
sacc([(sWAVE, 5)], LWQ)
e("v_lshrrev_b32 v6, 2, %s" % v(vL))
e("v_lshlrev_b32 v6, 10, v6")
e("v_and_b32 v7, 3, %s" % v(vL))
e("v_lshl_add_u32 v6, v7, 3, v6")
e("v_add_u32 v6, s%d, v6" % sT0)
WT = T + 16
for i in range(8):
    e("ds_read_b64 %s, v6 offset:%d" % (vr(WT + 2 * i, 2), 128 * i))
e("s_waitcnt lgkmcnt(0)")
for i in range(16):
    e("v_lshlrev_b32 %s, 16, %s" % (v(vWQF + 2 * i), v(WT + i)))
    e("v_and_b32 %s, 0xffff0000, %s" % (v(vWQF + 2 * i + 1), v(WT + i)))
lab("QG2")
e("s_waitcnt lgkmcnt(0)")
A = T + 32
U = T + 36
for i in range(8):
    hb, hs = bcast_sel(XV + i)
    for hlf in range(2):
        w = vWQF + 4 * i + 2 * hlf
        if i == 0:
            e("v_pk_mul_f32 %s, %s, %s op_sel:[%d,0] op_sel_hi:[%d,1]" % (vp(A + 2 * hlf), vp(hb), vp(w), hs, hs))
        else:
            e("v_pk_fma_f32 %s, %s, %s, %s op_sel:[%d,0,0] op_sel_hi:[%d,1,1]" % (vp(A + 2 * hlf), vp(hb), vp(w), vp(A + 2 * hlf), hs, hs))
allreduce("add", [A, A + 1, A + 2, A + 3], [U, U + 1, U + 2, U + 3], rors=(4, 8))
QP = T + 40
for i in range(4):
    e("v_mov_b32 %s, %s" % (v(QP + 2 * i), v(A + i)))
    e("v_mov_b32 %s, s%d" % (v(QP + 2 * i + 1), sTAG))
mask_begin(15)
e("s_cmp_lg_u32 s%d, 0" % sLAY)
e("s_cbranch_scc1 QST1")
e("global_store_dwordx4 %s, %s, %s" % (v(aQW), vr(QP, 4), sp(P_WS)))
e("global_store_dwordx4 %s, %s, %s offset:16" % (v(aQW), vr(QP + 4, 4), sp(P_WS)))
e("global_store_dwordx4 %s, %s, %s sc1" % (v(aQW), vr(QP, 4), sp(sWS2)))
e("global_store_dwordx4 %s, %s, %s offset:16 sc1" % (v(aQW), vr(QP + 4, 4), sp(sWS2)))
e("s_branch QST2")
lab("QST1")
e("s_cmp_lg_u32 s%d, 0" % sFAST)
e("s_cbranch_scc1 QST3")
e("global_store_dwordx4 %s, %s, %s sc1" % (v(aQW), vr(QP, 4), sp(P_WS)))
e("global_store_dwordx4 %s, %s, %s offset:16 sc1" % (v(aQW), vr(QP + 4, 4), sp(P_WS)))
e("s_branch QST2")
lab("QST3")
e("global_store_dwordx4 %s, %s, %s" % (v(aQW), vr(QP, 4), sp(P_WS)))
e("global_store_dwordx4 %s, %s, %s offset:16" % (v(aQW), vr(QP + 4, 4), sp(P_WS)))
lab("QST2")
mask_end()
ts()
G0 = T
for k in range(1, 4):
    e("v_add_u32 %s, 0x%x, %s" % (v(T + 32 + k), 0x1000 * k, v(aQS)))
loads = []; tags = []
for k in range(4):
    loads.append("global_load_dwordx4 %s, %s, %s sc1" % (vr(G0 + 4 * k, 4), v(aQS) if k == 0 else v(T + 32 + k), sp(sPB)))
    tags += [G0 + 4 * k + 1, G0 + 4 * k + 3]
poll(loads, tags, T + 16, T + 17, dual=True)
ts()
e("v_add_f32 %s, %s, %s" % (v(G0), v(G0), v(G0 + 4)))
e("v_add_f32 %s, %s, %s" % (v(G0 + 2), v(G0 + 2), v(G0 + 6)))
e("v_add_f32 %s, %s, %s" % (v(G0 + 8), v(G0 + 8), v(G0 + 12)))
e("v_add_f32 %s, %s, %s" % (v(G0 + 10), v(G0 + 10), v(G0 + 14)))
e("v_add_f32 %s, %s, %s" % (v(G0), v(G0), v(G0 + 8)))
e("v_add_f32 %s, %s, %s" % (v(G0 + 2), v(G0 + 2), v(G0 + 10)))
e("v_cvt_pk_bf16_f32 %s, %s, %s" % (v(G0), v(G0), v(G0 + 2)))
e("v_lshlrev_b32 v6, 2, v0")
e("v_add_u32 v6, 0x%x, v6" % LQ)
e("ds_write_b32 v6, %s" % v(G0))
e("s_waitcnt lgkmcnt(0)")
lab("SW")
e("s_barrier")
QL = T
for s in range(4):
    e("ds_read_b128 %s, %s offset:%d" % (vr(QL + 4 * s, 4), v(aQF), 64 * s))
e("s_waitcnt vmcnt(0) lgkmcnt(0)")
SC0 = T + 32
for s in range(4):
    for Tt in range(2):
        c = "0" if s == 0 else vr(SC0 + 4 * Tt, 4)
        e("v_mfma_f32_16x16x32_bf16 %s, %s, %s, %s" % (vr(SC0 + 4 * Tt, 4), vr(vK + Tt * 16 + s * 4, 4), vr(QL + 4 * s, 4), c))
nop(8)
tmp = T + 40
for i in range(0, 8, 2):
    round_bf16_pair(SC0 + i, SC0 + i + 1, tmp)
    e("v_pk_mul_f32 %s, %s, %s op_sel_hi:[1,0]" % (vp(SC0 + i), vp(SC0 + i), sp(sC2)))
    round_bf16_pair(SC0 + i, SC0 + i + 1, tmp)
M = T + 41
e("v_max3_f32 %s, %s, %s, %s" % (v(M), v(SC0), v(SC0 + 1), v(SC0 + 2)))
e("v_max3_f32 %s, %s, %s, %s" % (v(M), v(M), v(SC0 + 3), v(SC0 + 4)))
e("v_max3_f32 %s, %s, %s, %s" % (v(M), v(M), v(SC0 + 5), v(SC0 + 6)))
e("v_max_f32 %s, %s, %s" % (v(M), v(M), v(SC0 + 7)))
allreduce("max", [M], [tmp], rors=())
MM = T + 42
e("v_mul_f32 %s, s%d, %s" % (v(MM), sC1, v(M)))
for i in range(8):
    e("v_fma_f32 %s, %s, s%d, -%s" % (v(SC0 + i), v(SC0 + i), sC1, v(MM)))
for i in range(8):
    e("v_exp_f32 %s, %s" % (v(SC0 + i), v(SC0 + i)))
nop(1)
PA = T + 44
for i in range(4):
    e("v_cvt_pk_bf16_f32 %s, %s, %s" % (v(PA + i), v(SC0 + 2 * i), v(SC0 + 2 * i + 1)))
e("s_cmp_lg_u32 s%d, 0" % sLAY)
e("s_cbranch_scc1 SV")
e("s_barrier")
for Td in range(8):
    e("v_xor_b32 v6, 0x%x, %s" % (Td << 5, v(aVT)))
    e("ds_read_b64_tr_b16 %s, v6" % vr(vVF + 4 * Td, 2))
    e("ds_read_b64_tr_b16 %s, v6 offset:4096" % vr(vVF + 4 * Td + 2, 2))
e("s_waitcnt lgkmcnt(0)")
lab("SV")
ts()
D0 = T
for Td in range(8):
    e("v_mfma_f32_16x16x32_bf16 %s, %s, %s, 0" % (vr(D0 + 4 * Td, 4), vr(PA, 4), vr(vVF + 4 * Td, 4)))
LS = T + 43
e("v_pk_add_f32 %s, %s, %s" % (vp(SC0), vp(SC0), vp(SC0 + 2)))
e("v_pk_add_f32 %s, %s, %s" % (vp(SC0 + 4), vp(SC0 + 4), vp(SC0 + 6)))
e("v_pk_add_f32 %s, %s, %s" % (vp(SC0), vp(SC0), vp(SC0 + 4)))
e("v_add_f32 %s, %s, %s" % (v(LS), v(SC0), v(SC0 + 1)))
allreduce("add", [LS], [tmp], rors=())
sacc([(sWAVE, 5)], LSS)
e("v_lshlrev_b32 v6, 1, %s" % v(vL))
e("v_add_u32 v6, s%d, v6" % sT0)
e("v_mov_b32 %s, %s" % (v(T + 40), v(M)))
e("v_mov_b32 %s, %s" % (v(T + 41), v(LS)))
e("s_mov_b64 %s, exec" % sp(sEX))
e("s_mov_b64 exec, 0x1111")
e("ds_write_b64 v6, %s" % vr(T + 40, 2))
e("s_mov_b64 exec, %s" % sp(sEX))
for Td in range(8):
    e("ds_write_b32 %s, %s offset:%d" % (v(aSCW), v(D0 + 4 * Td), Td * 64))
e("s_waitcnt lgkmcnt(0)")
e("s_barrier")
R = T
for w_ in range(4):
    e("ds_read_b64 %s, %s offset:%d" % (vr(R + 2 * w_, 2), v(aSCR), 2048 * w_))
sacc([(sWAVE, 3)], LSS)
e("v_mov_b32 v6, s%d" % sT0)
for w_ in range(4):
    e("ds_read_b64 %s, v6 offset:%d" % (vr(R + 8 + 2 * w_, 2), 32 * w_))
e("v_mov_b32 v7, 0x%x" % LFL)
e("ds_read_b32 v7, v7")
e("s_waitcnt lgkmcnt(0)")
e("v_readfirstlane_b32 s%d, v7" % sFAST)
MC, E0, LC, O0, O1 = T + 16, T + 17, T + 22, T + 24, T + 26
e("v_max3_f32 %s, %s, %s, %s" % (v(MC), v(R + 8), v(R + 10), v(R + 12)))
e("v_max_f32 %s, %s, %s" % (v(MC), v(MC), v(R + 14)))
for w_ in range(4):
    e("v_sub_f32 %s, %s, %s" % (v(E0 + w_), v(R + 8 + 2 * w_), v(MC)))
    e("v_mul_f32 %s, s%d, %s" % (v(E0 + w_), sC1, v(E0 + w_)))
for w_ in range(4):
    e("v_exp_f32 %s, %s" % (v(E0 + w_), v(E0 + w_)))
nop(1)
e("v_mul_f32 %s, %s, %s" % (v(LC), v(E0), v(R + 9)))
e("v_mul_f32 %s, %s, %s" % (v(O0), v(E0), v(R)))
e("v_mul_f32 %s, %s, %s" % (v(O1), v(E0), v(R + 1)))
for w_ in range(1, 4):
    e("v_fmac_f32 %s, %s, %s" % (v(LC), v(E0 + w_), v(R + 9 + 2 * w_)))
    e("v_fmac_f32 %s, %s, %s" % (v(O0), v(E0 + w_), v(R + 2 * w_)))
    e("v_fmac_f32 %s, %s, %s" % (v(O1), v(E0 + w_), v(R + 2 * w_ + 1)))
e("v_mov_b32 %s, s%d" % (v(O0 + 1), sTAG))
e("v_mov_b32 %s, s%d" % (v(O1 + 1), sTAG))
fstore(v(aPOW), vr(O0, 4))
S4 = T + 28
e("v_mov_b32 %s, %s" % (v(S4), v(MC)))
e("v_mov_b32 %s, s%d" % (v(S4 + 1), sTAG))
e("v_mov_b32 %s, %s" % (v(S4 + 2), v(LC)))
e("v_mov_b32 %s, s%d" % (v(S4 + 3), sTAG))
mask_begin(1)
fstore(v(aSTW), vr(S4, 4))
mask_end()
ts()
e("s_cmp_lg_u32 s%d, 0" % sLAY)
e("s_cbranch_scc1 OPH")
sacc([(sWAVE, 12)], LWO)
e("v_add_u32 v6, s%d, %s" % (sT0, v(aL16)))
WT = T + 32
for i in range(4):
    e("ds_read_b128 %s, v6 offset:%d" % (vr(WT + 4 * i, 4), 1024 * i))
e("s_waitcnt lgkmcnt(0)")
for i in range(16):
    e("v_lshlrev_b32 %s, 16, %s" % (v(vWOF + 2 * i), v(WT + i)))
    e("v_and_b32 %s, 0xffff0000, %s" % (v(vWOF + 2 * i + 1), v(WT + i)))
load_mixer_weights("v0")
e("v_lshlrev_b32 %s, 16, %s" % (v(vB2), v(vB2)))
e("v_and_b32 %s, 0xffff0000, %s" % (v(vXR + 1), v(vXR)))
e("v_lshlrev_b32 %s, 16, %s" % (v(vXR), v(vXR)))
lab("OPH")
SR, PR = T, T + 4
poll(["global_load_dwordx4 %s, %s, %s sc1" % (vr(SR, 4), v(aSTR), sp(P_WS)),
      "global_load_dwordx4 %s, %s, %s sc1" % (vr(PR, 4), v(aPOR), sp(P_WS))],
     [SR + 1, SR + 3, PR + 1, PR + 3], T + 8, T + 9)
ts()
Mx = T + 8
e("v_mov_b32 %s, %s" % (v(Mx), v(SR)))
allreduce("max", [Mx], [T + 9], rors=(2, 4, 8))
Ee = T + 10
e("v_sub_f32 %s, %s, %s" % (v(Ee), v(SR), v(Mx)))
e("v_mul_f32 %s, s%d, %s" % (v(Ee), sC1, v(Ee)))
e("v_exp_f32 %s, %s" % (v(Ee), v(Ee)))
nop(1)
A0, A1, A2 = T + 12, T + 13, T + 14
e("v_mul_f32 %s, %s, %s" % (v(A0), v(Ee), v(SR + 2)))
e("v_mul_f32 %s, %s, %s" % (v(A1), v(Ee), v(PR)))
e("v_mul_f32 %s, %s, %s" % (v(A2), v(Ee), v(PR + 2)))
allreduce("add", [A0, A1, A2], [T + 16, T + 17, T + 18], rors=(2, 4, 8))
e("v_rcp_f32 %s, %s" % (v(A0), v(A0)))
nop(1)
e("v_mul_f32 %s, %s, %s" % (v(A1), v(A1), v(A0)))
e("v_mul_f32 %s, %s, %s" % (v(A2), v(A2), v(A0)))
round_bf16_pair(A1, A2, T + 16)
OO = T + 20
nop(2)
e("v_mov_b32_dpp %s, %s quad_perm:[0,0,2,2] %s" % (v(OO), v(A1), DPPM))
e("v_mov_b32_dpp %s, %s quad_perm:[0,0,2,2] %s" % (v(OO + 1), v(A2), DPPM))
e("v_mov_b32_dpp %s, %s quad_perm:[1,1,3,3] %s" % (v(OO + 2), v(A1), DPPM))
e("v_mov_b32_dpp %s, %s quad_perm:[1,1,3,3] %s" % (v(OO + 3), v(A2), DPPM))
AC = T + 24
for i in range(4):
    ob, os_ = bcast_sel(OO + i)
    for k in range(4):
        w = vWOF + 8 * i + 2 * k
        if i == 0:
            e("v_pk_mul_f32 %s, %s, %s op_sel:[%d,0] op_sel_hi:[%d,1]" % (vp(AC + 2 * k), vp(ob), vp(w), os_, os_))
        else:
            e("v_pk_fma_f32 %s, %s, %s, %s op_sel:[%d,0,0] op_sel_hi:[%d,1,1]" % (vp(AC + 2 * k), vp(ob), vp(w), vp(AC + 2 * k), os_, os_))
sacc([(sWAVE, 11)], LOC)
e("v_add_u32 v6, s%d, %s" % (sT0, v(aL32)))
e("ds_write_b128 v6, %s" % vr(AC, 4))
e("ds_write_b128 v6, %s offset:16" % vr(AC + 4, 4))
e("v_lshlrev_b32 v6, 3, v0")
e("v_add_u32 v6, 0x%x, v6" % LOC)
e("s_waitcnt lgkmcnt(0)")
e("s_barrier")
R = T
for w_ in range(4):
    e("ds_read_b64 %s, v6 offset:%d" % (vr(R + 2 * w_, 2), 2048 * w_))
e("s_waitcnt lgkmcnt(0)")
O4 = T + 8
e("v_pk_add_f32 %s, %s, %s" % (vp(R), vp(R), vp(R + 2)))
e("v_pk_add_f32 %s, %s, %s" % (vp(R + 4), vp(R + 4), vp(R + 6)))
e("v_add_f32 %s, %s, %s" % (v(O4), v(R), v(R + 4)))
e("v_add_f32 %s, %s, %s" % (v(O4 + 2), v(R + 1), v(R + 5)))
e("v_mov_b32 %s, s%d" % (v(O4 + 1), sTAG))
e("v_mov_b32 %s, s%d" % (v(O4 + 3), sTAG))
e("global_store_dwordx4 %s, %s, %s sc1" % (v(aOPW), vr(O4, 4), sp(P_WS)))
ts()
e("s_cmp_lg_u32 s%d, 0" % sWAVE)
e("s_cbranch_scc1 MW")
XR = T + 16
AD = T + 40
for k in range(1, 4):
    e("v_add_u32 %s, 0x%x, %s" % (v(AD + k), 0x40000 * k, v(aOPR)))
loads = []; tags = []
for k in range(4):
    loads.append("global_load_dwordx4 %s, %s, %s sc1" % (vr(XR + 4 * k, 4), v(aOPR) if k == 0 else v(AD + k), sp(P_WS)))
    tags += [XR + 4 * k + 1, XR + 4 * k + 3]
poll(loads, tags, T + 32, T + 33)
ts()
Y0, Y1 = T + 32, T + 33
e("v_add_f32 %s, %s, %s" % (v(Y0), v(XR), v(XR + 4)))
e("v_add_f32 %s, %s, %s" % (v(Y1), v(XR + 2), v(XR + 6)))
e("v_add_f32 %s, %s, %s" % (v(XR + 8), v(XR + 8), v(XR + 12)))
e("v_add_f32 %s, %s, %s" % (v(XR + 10), v(XR + 10), v(XR + 14)))
e("v_add_f32 %s, %s, %s" % (v(Y0), v(Y0), v(XR + 8)))
e("v_add_f32 %s, %s, %s" % (v(Y1), v(Y1), v(XR + 10)))
allreduce("add", [Y0, Y1], [T + 34, T + 35])
round_bf16_pair(Y0, Y1, T + 34)
e("v_pk_add_f32 %s, %s, %s" % (vp(Y0), vp(Y0), vp(vXR)))
e("v_cvt_pk_bf16_f32 %s, %s, %s" % (v(T + 36), v(Y0), v(Y1)))
e("v_mov_b32 %s, s%d" % (v(T + 37), sTAG))
mask_begin(255)
e("global_store_dwordx2 %s, %s, %s sc1" % (v(aXW), vr(T + 36, 2), sp(P_WS)))
mask_end()
e("v_lshlrev_b32 %s, 16, %s" % (v(vXR), v(T + 36)))
e("v_and_b32 %s, 0xffff0000, %s" % (v(vXR + 1), v(T + 36)))
ts()
G0 = T + 8
poll(["global_load_dwordx4 %s, %s, %s sc1" % (vr(G0, 4), v(aX1R), sp(P_WS)),
      "global_load_dwordx4 %s, %s, %s offset:16 sc1" % (vr(G0 + 4, 4), v(aX1R), sp(P_WS))],
     [G0 + 1, G0 + 3, G0 + 5, G0 + 7], T + 18, T + 19)
ts()
for i in range(4):
    e("v_lshlrev_b32 %s, 16, %s" % (v(XV + 2 * i), v(G0 + 2 * i)))
    e("v_and_b32 %s, 0xffff0000, %s" % (v(XV + 2 * i + 1), v(G0 + 2 * i)))
H0 = T + 18
e("v_mov_b32 %s, %s" % (v(H0), v(vXR)))
e("v_mov_b32 %s, %s" % (v(H0 + 1), v(vXR + 1)))
layernorm(XV, [H0], T + 24)
layernorm(XV, [H0], T + 24, only_extra=True)
e("v_mov_b32 v6, 0x%x" % LHB)
mask_begin(1)
e("ds_write_b64 v6, %s" % vr(H0, 2))
mask_end()
e("s_waitcnt lgkmcnt(0)")
e("s_barrier")
e("s_branch MG")
lab("MW")
e("v_mov_b32 v6, 0x%x" % LHB)
e("s_barrier")
e("ds_read_b64 %s, v6" % vr(H0, 2))
e("s_waitcnt lgkmcnt(0)")
lab("MG")
ts()
Ya = T + 22
mixer(H0, 0, Ya)
sacc([(sWAVE, 2)], LMC)
e("v_mov_b32 v6, s%d" % sT0)
mask_begin(1)
e("ds_write_b32 v6, %s" % v(Ya))
mask_end()
e("s_waitcnt lgkmcnt(0)")
e("s_barrier")
e("s_cmp_lg_u32 s%d, 0" % sWAVE)
e("s_cbranch_scc1 MSKIP")
e("v_mov_b32 v6, 0x%x" % LMC)
e("ds_read_b128 %s, v6" % vr(T + 24, 4))
e("ds_read_b128 %s, v6 offset:16" % vr(T + 28, 4))
e("s_waitcnt lgkmcnt(0)")
Yb = Ya + 1
e("v_pk_add_f32 %s, %s, %s" % (vp(T + 24), vp(T + 24), vp(T + 26)))
e("v_pk_add_f32 %s, %s, %s" % (vp(T + 28), vp(T + 28), vp(T + 30)))
e("v_add_f32 %s, %s, %s" % (v(Ya), v(T + 24), v(T + 25)))
e("v_add_f32 %s, %s, %s" % (v(Yb), v(T + 28), v(T + 29)))
round_bf16_pair(Ya, Yb, T + 24)
e("v_add_f32 %s, %s, %s" % (v(Ya), v(Ya), v(vB2)))
e("v_add_f32 %s, %s, %s" % (v(Yb), v(Yb), v(vB2)))
round_bf16_pair(Ya, Yb, T + 24)
e("v_pk_add_f32 %s, %s, %s" % (vp(Ya), vp(Ya), vp(vXR)))
e("v_cvt_pk_bf16_f32 %s, %s, %s" % (v(T + 26), v(Ya), v(Yb)))
e("v_mov_b32 %s, s%d" % (v(T + 27), sTAG))
e("s_cmp_lg_u32 s%d, 0" % sLAY)
e("s_cbranch_scc1 FINAL")
e("v_add_u32 v6, 0x%x, %s" % (X2_OFF - X1_OFF, v(aXW)))
mask_begin(255)
e("global_store_dwordx2 v6, %s, %s sc1" % (vr(T + 26, 2), sp(P_WS)))
mask_end()
e("v_lshlrev_b32 %s, 16, %s" % (v(vXR), v(T + 26)))
e("v_and_b32 %s, 0xffff0000, %s" % (v(vXR + 1), v(T + 26)))
e("s_branch MDONE")
lab("FINAL")
e("s_lshl_b32 s%d, s%d, 2" % (sT0, sPI))
e("v_mov_b32 v6, s%d" % sT0)
mask_begin(1)
e("global_store_dword v6, %s, %s" % (v(T + 26), sp(P_OUT)))
e("s_cmp_lg_u32 s2, 0")
e("s_cbranch_scc1 NOEP")
e("v_mov_b32 v6, 0")
e("global_store_dword v6, %s, %s" % (v(T + 27), sp(P_WS)))
lab("NOEP")
mask_end()
lab("MDONE")
ts()
lab("MSKIP")
e("s_add_u32 s%d, s%d, 1" % (sTAG, sTAG))
e("s_add_u32 s%d, s%d, 1" % (sLAY, sLAY))
e("s_cmp_lt_u32 s%d, 2" % sLAY)
e("s_cbranch_scc1 LAYER")

assert ts_count[0] <= NTS, ts_count[0]
if TS == 9999:
    e("s_cmp_lg_u32 s%d, 0" % sWAVE)
    e("s_cbranch_scc1 END")
    mask_begin(1)
    e("s_lshl_b32 s%d, s2, 7" % sT0)
    e("s_add_u32 s%d, s%d, 0x2000000" % (sT0, sT0))
    e("v_mov_b32 v6, s%d" % sT0)
    e("v_mov_b32 v7, s%d" % (sTSB + 2 * NTS))
    e("global_store_dword v6, v7, %s" % sp(P_WS))
    idx = 1
    for lay in range(2):
        for i in range(ts_count[0]):
            e("v_mov_b32 v7, s%d" % (sTSB + lay * NTS + i))
            e("global_store_dword v6, v7, %s offset:%d" % (sp(P_WS), 4 * idx))
            idx += 1
    mask_end()
e("s_branch END")

lab("LOADER")
e("s_sub_u32 s%d, s%d, 4" % (sWAVE, sWAVE))
e("s_load_dword s%d, %s, 0" % (sTAG, sp(P_WS)))
e("s_getreg_b32 s%d, hwreg(HW_REG_XCC_ID)" % sPIV)
e("s_cmp_lg_u32 s%d, 3" % sWAVE)
e("s_cbranch_scc1 NOID")
sacc([(sG, 8), (sC, 3)], XID_OFF)
e("v_mov_b32 v6, s%d" % sT0)
e("v_mov_b32 %s, s%d" % (v(T), sPIV))
e("s_waitcnt lgkmcnt(0)")
e("s_add_u32 s%d, s%d, 1" % (sT0, sTAG))
e("v_mov_b32 %s, s%d" % (v(T + 1), sT0))
mask_begin(1)
e("global_store_dwordx2 v6, %s, %s sc1" % (vr(T, 2), sp(P_WS)))
mask_end()
lab("NOID")
e("s_lshl_b32 s%d, s%d, 10" % (sT1, sWAVE))
e("v_add_u32 v6, s%d, %s" % (sT1, v(aL16)))
e("s_mov_b64 %s, exec" % sp(sEX))
e("s_cmp_lg_u32 s%d, 3" % sWAVE)
e("s_cbranch_scc1 LD_FULL")
e("s_mov_b32 exec_hi, 0")
lab("LD_FULL")
for base, ptr in ((LW1, P_W1), (LB1, P_B1), (LW2, P_W2)):
    e("s_add_u32 s%d, s%d, 0x%x" % (sT3, sT1, base))
    e("s_mov_b32 m0, s%d" % sT3)
    nop(1)
    e("global_load_lds_dwordx4 v6, %s" % sp(ptr))
e("s_mov_b64 exec, %s" % sp(sEX))
e("v_lshrrev_b32 v3, 3, %s" % v(vL))
e("v_lshlrev_b32 v3, 13, v3")
e("v_and_b32 v4, 7, %s" % v(vL))
e("v_lshl_add_u32 v3, v4, 4, v3")
sacc([(sRB, 20), (sWAVE, 18), (sG, 10), (sCB, 7)], 0)
e("v_add_u32 v3, s%d, v3" % sT0)
e("s_lshl_b32 s%d, s%d, 12" % (sT2, sWAVE))
for i in range(4):
    e("s_add_u32 s%d, s%d, 0x%x" % (sT3, sT2, LWQ + 1024 * i))
    e("s_mov_b32 m0, s%d" % sT3)
    nop(1)
    e("global_load_lds_dwordx4 v3, %s nt" % sp(P_WQ))
    e("v_add_u32 v3, 0x10000, v3")
e("v_and_b32 v3, 15, %s" % v(vL))
e("v_lshrrev_b32 v4, 4, %s" % v(vL))
e("v_lshrrev_b32 v5, 1, v3")
e("v_xor_b32 v6, v5, v4")
e("v_xor_b32 v7, 4, v6")
e("v_and_b32 v5, 1, v3")
e("v_lshl_add_u32 v6, v6, 1, v5")
e("v_lshl_add_u32 v7, v7, 1, v5")
e("v_lshlrev_b32 v6, 4, v6")
e("v_lshlrev_b32 v7, 4, v7")
e("v_lshl_add_u32 v6, v4, 8, v6")
e("v_lshl_add_u32 v7, v4, 8, v7")
sacc([(sG, 24), (sC, 15), (sWAVE, 13)], W0 * 256)
e("v_add_u32 v6, s%d, v6" % sT0)
e("v_add_u32 v7, s%d, v7" % sT0)
e("v_add_u32 v7, 0x400, v7")
e("s_lshl_b32 s%d, s%d, 13" % (sT2, sWAVE))
e("s_waitcnt vmcnt(4)")
for i in range(8):
    e("s_add_u32 s%d, s%d, 0x%x" % (sT3, sT2, LV + 1024 * i))
    e("s_mov_b32 m0, s%d" % sT3)
    nop(1)
    e("global_load_lds_dwordx4 %s, %s nt" % ("v6" if i % 2 == 0 else "v7", sp(P_V)))
    if i % 2 == 0:
        e("v_add_u32 v6, 0x800, v6")
    else:
        e("v_add_u32 v7, 0x800, v7")
sacc([(sG, 8)], XID_OFF)
e("v_and_b32 v9, 31, %s" % v(vL))
e("v_lshlrev_b32 v9, 3, v9")
e("v_add_u32 v9, s%d, v9" % sT0)
e("global_load_dwordx2 %s, v9, %s sc1" % (vr(T + 4, 2), sp(P_WS)))
sacc([(sG, 19), (sC, 14), (sWAVE, 12)], 0)
e("v_add_u32 v6, s%d, %s" % (sT0, v(aL16)))
e("s_lshl_b32 s%d, s%d, 12" % (sT1, sWAVE))
for i in range(4):
    e("s_add_u32 s%d, s%d, 0x%x" % (sT3, sT1, LWO + 1024 * i))
    e("s_mov_b32 m0, s%d" % sT3)
    nop(1)
    e("global_load_lds_dwordx4 v6, %s nt" % sp(P_WO))
    e("v_add_u32 v6, 0x400, v6")
e("s_waitcnt vmcnt(13) lgkmcnt(0)")
e("s_add_u32 s%d, s%d, 1" % (sTAG, sTAG))
e("s_barrier")
e("s_barrier")
e("s_waitcnt vmcnt(4)")
e("s_cmp_lg_u32 s%d, 3" % sWAVE)
e("s_cbranch_scc1 NOID2")
e("s_mov_b32 s%d, 0x100000" % sCNT)
lab("IDP")
e("v_cmp_ne_u32 vcc, s%d, %s" % (sTAG, v(T + 5)))
nop(1)
e("s_cmp_eq_u64 vcc, 0")
e("s_cbranch_scc1 IDD")
e("global_load_dwordx2 %s, v9, %s sc1" % (vr(T + 4, 2), sp(P_WS)))
e("s_waitcnt vmcnt(0)")
e("s_sub_u32 s%d, s%d, 1" % (sCNT, sCNT))
e("s_cbranch_scc0 IDP")
lab("IDD")
e("v_cmp_ne_u32 vcc, s%d, %s" % (sPIV, v(T + 4)))
nop(1)
e("s_cmp_eq_u64 vcc, 0")
e("s_cselect_b32 s%d, 1, 0" % sT3)
e("v_mov_b32 v7, s%d" % sT3)
e("v_mov_b32 v6, 0x%x" % LFL)
e("ds_write_b32 v6, v7")
e("s_waitcnt lgkmcnt(0)")
lab("NOID2")
e("s_barrier")
e("s_waitcnt vmcnt(0)")
e("s_barrier")
e("v_and_b32 v8, 255, v0")
load_mixer_weights("v8")
lab("HLOOP")
e("s_barrier")
e("v_mov_b32 v6, 0x%x" % LHB)
e("s_barrier")
e("ds_read_b64 %s, v6" % vr(H0, 2))
e("s_waitcnt lgkmcnt(0)")
mixer(H0, 1, Ya)
sacc([(sWAVE, 2)], LMC + 16)
e("v_mov_b32 v6, s%d" % sT0)
mask_begin(1)
e("ds_write_b32 v6, %s" % v(Ya))
mask_end()
e("s_waitcnt lgkmcnt(0)")
e("s_barrier")
e("s_cmp_lg_u32 s%d, 0" % sLAY)
e("s_cbranch_scc1 END")
e("s_mov_b32 s%d, 1" % sLAY)
e("s_barrier")
e("s_barrier")
e("s_barrier")
e("s_branch HLOOP")
lab("END")
e("s_endpgm")

L.append('.section .rodata,"a"')
L.append(".p2align 6")
L.append(".amdhsa_kernel %s_kernel" % NAME)
L.append("  .amdhsa_next_free_vgpr 256")
L.append("  .amdhsa_next_free_sgpr 102")
L.append("  .amdhsa_accum_offset 256")
L.append("  .amdhsa_group_segment_fixed_size 0")
L.append("  .amdhsa_kernarg_size 104")
L.append("  .amdhsa_user_sgpr_count 2")
L.append("  .amdhsa_user_sgpr_kernarg_segment_ptr 1")
L.append("  .amdhsa_system_sgpr_workgroup_id_x 1")
L.append("  .amdhsa_float_denorm_mode_32 3")
L.append(".end_amdhsa_kernel")
open(OUT, "w").write("\n".join(L) + "\n")
print("wrote", OUT, "lines", len(L), "ts", ts_count[0])
```

```python
import sys, struct

NAME = "interleave_layers__sliding_block_cached__mixer_token_mlp__decode"
TS = int(sys.argv[2]) if len(sys.argv) > 2 else 0
OUT = sys.argv[1] if len(sys.argv) > 1 else "cdna_kernels/%s.s" % NAME

L = []
def e(s): L.append("  " + s)
def lab(s): L.append(s + ":")
def nop(n):
    while n > 0:
        k = min(n, 16)
        e("s_nop %d" % (k - 1))
        n -= k
def f2u(x): return struct.unpack("<I", struct.pack("<f", x))[0]
def fh(x): return "0x%08x" % f2u(x)

QS_OFF = 0x40000
ST_OFF = 0x8000
XID_OFF = 0xc000
X1_OFF = 0x10000
X2_OFF = 0x20000
PO_OFF = 0x100000
OP_OFF = 0x200000
XP_OFF = 0x300000
LV = 0
LWO = 32768
LW1 = 49152
LB1 = LW1 + 3584
LW2 = LB1 + 3584
LSS = 59904
LMC = 60160
LHB = 60288
LFL = 60352
LQ = 60416
LH = 61440
LSC = 63488
LOC = LSC + 8192
LWQ = LOC + 8192
LXR = LWQ + 16384
LDS_TOTAL = LXR + 2048

W0 = 65536 - 4096
LOG2E = 1.4426950408889634
SCALE = 128.0 ** -0.5

sWAVE = 4; sG = 5; sC = 6; sTAG = 7
sT0, sT1, sT2, sT3 = 8, 9, 10, 11
sCNT = 12
sEX = 14
P_X, P_K, P_V, P_WQ, P_WO, P_BX, P_W1, P_B1, P_W2, P_B2, P_OUT, P_DBG, P_WS = [16 + 2 * i for i in range(13)]
sLAY = 42; sPI = 43; sCB = 95; sRB = 88
sC1 = 44; sC2 = 46; sC3 = 48; sC4 = 50
sFAST = 13; sLAY2 = 94; sPIV = 52; sNPIV = 54; sWS2 = 90; sPB = 92
SDELTA = 0x400000
sTSB = 56
def sp(i): return "s[%d:%d]" % (i, i + 1)

vL = 1
vWQF = 16; vK = 48; vVF = 80; vWOF = 112
vW1 = 144; vB1 = 152; vW2 = 160; vB2 = 168
vXR = 170
aQS = 172; aPOW = 173; aSTW = 174; aSTR = 175; aPOR = 176; aOPW = 177; aOPR = 178
aX1R = 179; aXW = 180; aQW = 181; aVT = 182; aSCW = 183; aSCR = 184; aL16 = 185
aQF = 186; aL32 = 187
cC3 = 188
aXPW = 190; aXPR = 191; aX1W = 240; aXRR = 241
T = 192
def v(i): return "v%d" % i
def vr(i, n): return "v[%d:%d]" % (i, i + n - 1)
def vp(i): return vr(i, 2)

NTS = 13
ts_count = [0]
def ts():
    if not TS: return
    i = ts_count[0]; ts_count[0] += 1
    e("s_memtime s[98:99]" if TS != 9999 else "s_memrealtime s[98:99]")
    e("s_waitcnt lgkmcnt(0)")
    e("s_cmp_eq_u32 s%d, 0" % sLAY)
    e("s_cselect_b32 s%d, s98, s%d" % (sTSB + i, sTSB + i))
    e("s_cselect_b32 s%d, s%d, s98" % (sTSB + NTS + i, sTSB + NTS + i))

DPPM = "row_mask:0xf bank_mask:0xf"

def allreduce(op, regs, tmps, rors=(1, 2, 4, 8)):
    ins = "v_add_f32" if op == "add" else "v_max_f32"
    n = len(regs)
    pad = max(0, 2 - (n - 1))
    nop(2)
    for r in rors:
        for x in regs:
            e("%s_dpp %s, %s, %s row_ror:%d %s" % (ins, v(x), v(x), v(x), r, DPPM))
        nop(pad)
    for sw in ("v_permlane16_swap_b32", "v_permlane32_swap_b32"):
        for x, t in zip(regs, tmps):
            e("v_mov_b32 %s, %s" % (v(t), v(x)))
        nop(pad)
        for x, t in zip(regs, tmps):
            e("%s %s, %s" % (sw, v(x), v(t)))
        nop(1)
        for x, t in zip(regs, tmps):
            e("%s %s, %s, %s" % (ins, v(x), v(x), v(t)))
        nop(pad)

def round_bf16_pair(a, b, tmp):
    e("v_cvt_pk_bf16_f32 %s, %s, %s" % (v(tmp), v(a), v(b)))
    e("v_lshlrev_b32 %s, 16, %s" % (v(a), v(tmp)))
    e("v_and_b32 %s, 0xffff0000, %s" % (v(b), v(tmp)))

def layernorm(X, extra, tb, only_extra=False):
    s2, q2, d2, m, r, t, t2 = tb, tb + 2, tb + 4, tb + 6, tb + 8, tb + 7, tb + 9
    nop(1)
    e("v_readfirstlane_b32 s%d, %s" % (sPIV, v(X)))
    nop(1)
    e("s_xor_b32 s%d, s%d, 0x80000000" % (sNPIV, sPIV))
    nop(1)
    e("v_pk_add_f32 %s, %s, %s op_sel_hi:[1,0]" % (vp(s2), vp(X), sp(sNPIV)))
    e("v_pk_mul_f32 %s, %s, %s" % (vp(q2), vp(s2), vp(s2)))
    for i in range(2, 8, 2):
        e("v_pk_add_f32 %s, %s, %s op_sel_hi:[1,0]" % (vp(d2), vp(X + i), sp(sNPIV)))
        e("v_pk_add_f32 %s, %s, %s" % (vp(s2), vp(s2), vp(d2)))
        e("v_pk_fma_f32 %s, %s, %s, %s" % (vp(q2), vp(d2), vp(d2), vp(q2)))
    s, q = s2, q2
    e("v_add_f32 %s, %s, %s" % (v(s), v(s2), v(s2 + 1)))
    e("v_add_f32 %s, %s, %s" % (v(q), v(q2), v(q2 + 1)))
    allreduce("add", [s, q], [t, t2])
    e("v_mul_f32 %s, %s, %s" % (v(s), fh(1.0 / 512), v(s)))
    e("v_mul_f32 %s, %s, %s" % (v(q), fh(1.0 / 512), v(q)))
    e("v_fma_f32 %s, -%s, %s, %s" % (v(q), v(s), v(s), v(q)))
    e("v_max_f32 %s, 0, %s" % (v(q), v(q)))
    e("v_add_f32 %s, s%d, %s" % (v(m), sPIV, v(s)))
    round_bf16_pair(m, q, t)
    e("v_add_f32 %s, %s, %s" % (v(q), fh(1e-5), v(q)))
    e("v_cvt_pk_bf16_f32 %s, %s, %s" % (v(t), v(q), v(q)))
    e("v_lshlrev_b32 %s, 16, %s" % (v(q), v(t)))
    e("v_sqrt_f32 %s, %s" % (v(q), v(q)))
    e("v_xor_b32 %s, 0x80000000, %s" % (v(m), v(m)))
    e("v_cvt_pk_bf16_f32 %s, %s, %s" % (v(t), v(q), v(q)))
    e("v_lshlrev_b32 %s, 16, %s" % (v(q), v(t)))
    e("v_rcp_f32 %s, %s" % (v(r), v(q)))
    regs = ([] if only_extra else [X + i for i in range(0, 8, 2)]) + list(extra)
    for a in regs:
        e("v_pk_add_f32 %s, %s, %s op_sel_hi:[1,0]" % (vp(a), vp(a), vp(m)))
        round_bf16_pair(a, a + 1, t)
        e("v_pk_mul_f32 %s, %s, %s op_sel_hi:[1,0]" % (vp(a), vp(a), vp(r)))
        round_bf16_pair(a, a + 1, t)

poll_id = [0]
def poll(loads, tags, tmin, tmax, dual=False):
    pid = poll_id[0]; poll_id[0] += 1
    e("s_mov_b32 s%d, 0x100000" % sCNT)
    lab("POLL%d" % pid)
    if dual:
        e("s_and_b32 s%d, s%d, 7" % (sT0, sCNT))
        e("s_or_b32 s%d, s%d, s%d" % (sT0, sT0, sLAY2))
        e("s_cmp_eq_u32 s%d, 1" % sT0)
        e("s_cselect_b64 %s, %s, %s" % (sp(sPB), sp(sWS2), sp(P_WS)))
    for ld in loads:
        e(ld)
    e("s_waitcnt vmcnt(0)")
    tg = list(tags)
    first = tg[:3] if len(tg) >= 3 else tg[:2]
    rest = tg[len(first):]
    if len(first) == 3:
        e("v_min3_u32 %s, %s, %s, %s" % (v(tmin), v(first[0]), v(first[1]), v(first[2])))
        e("v_max3_u32 %s, %s, %s, %s" % (v(tmax), v(first[0]), v(first[1]), v(first[2])))
    else:
        e("v_min_u32 %s, %s, %s" % (v(tmin), v(first[0]), v(first[1])))
        e("v_max_u32 %s, %s, %s" % (v(tmax), v(first[0]), v(first[1])))
    while rest:
        if len(rest) >= 2:
            e("v_min3_u32 %s, %s, %s, %s" % (v(tmin), v(tmin), v(rest[0]), v(rest[1])))
            e("v_max3_u32 %s, %s, %s, %s" % (v(tmax), v(tmax), v(rest[0]), v(rest[1])))
            rest = rest[2:]
        else:
            e("v_min_u32 %s, %s, %s" % (v(tmin), v(tmin), v(rest[0])))
            e("v_max_u32 %s, %s, %s" % (v(tmax), v(tmax), v(rest[0])))
            rest = rest[1:]
    e("v_cmp_ne_u32 vcc, s%d, %s" % (sTAG, v(tmin)))
    e("v_cmp_ne_u32 %s, s%d, %s" % (sp(sT0), sTAG, v(tmax)))
    nop(1)
    e("s_or_b64 vcc, vcc, %s" % sp(sT0))
    e("s_cmp_eq_u64 vcc, 0")
    e("s_cbranch_scc1 POLLX%d" % pid)
    e("s_sub_u32 s%d, s%d, 1" % (sCNT, sCNT))
    e("s_cbranch_scc0 POLL%d" % pid)
    lab("POLLX%d" % pid)

def mask_begin(m):
    e("s_mov_b64 %s, exec" % sp(sEX))
    if m == 0xffffffff:
        e("s_mov_b32 exec_hi, 0")
    else:
        e("s_mov_b64 exec, 0x%x" % m)
def mask_end():
    e("s_mov_b64 exec, %s" % sp(sEX))

def sacc(terms, const):
    first = True
    for reg, sh in terms:
        if first:
            e("s_lshl_b32 s%d, s%d, %d" % (sT0, reg, sh)); first = False
        else:
            e("s_lshl_b32 s%d, s%d, %d" % (sT1, reg, sh))
            e("s_add_u32 s%d, s%d, s%d" % (sT0, sT0, sT1))
    if const:
        e("s_add_u32 s%d, s%d, 0x%x" % (sT0, sT0, const))

def gstore(addr, data):
    e("global_store_dwordx4 %s, %s, %s" % (addr, data, sp(P_WS)))
    e("global_store_dwordx4 %s, %s, %s sc1" % (addr, data, sp(sWS2)))

gst_id = [0]
def fstore(addr, data):
    i = gst_id[0]; gst_id[0] += 1
    e("s_cmp_lg_u32 s%d, 0" % sFAST)
    e("s_cbranch_scc1 GSF%d" % i)
    e("global_store_dwordx4 %s, %s, %s sc1" % (addr, data, sp(P_WS)))
    e("s_branch GSD%d" % i)
    lab("GSF%d" % i)
    e("global_store_dwordx4 %s, %s, %s" % (addr, data, sp(P_WS)))
    lab("GSD%d" % i)

def bcast_sel(reg):
    return (reg & ~1, reg & 1)

def load_mixer_weights(tidreg):
    e("v_lshlrev_b32 v6, 1, %s" % tidreg)
    for k in range(7):
        e("ds_read_u16 %s, v6 offset:%d" % (v(vW1 + k), LW1 + 512 * k))
        e("ds_read_u16 %s, v6 offset:%d" % (v(vB1 + k), LB1 + 512 * k))
        e("ds_read_u16 %s, v6 offset:%d" % (v(vW2 + k), LW2 + 512 * k))
    e("v_mov_b32 %s, 0" % v(vW1 + 7))
    e("v_mov_b32 %s, 0" % v(vB1 + 7))
    e("v_mov_b32 %s, 0" % v(vW2 + 7))
    e("v_mov_b32 %s, s%d" % (v(cC3), sC3))
    e("v_mov_b32 %s, s%d" % (v(cC3 + 1), sC3))
    e("s_waitcnt lgkmcnt(0)")
    for k in range(7):
        for b in (vW1, vB1, vW2):
            e("v_lshlrev_b32 %s, 16, %s" % (v(b + k), v(b + k)))

def mixer(H, hsel, Y):
    a, t, t2 = T + 24, T + 26, T + 28
    for k in range(0, 8, 2):
        e("v_pk_mul_f32 %s, %s, %s op_sel:[0,%d] op_sel_hi:[1,%d]" % (vp(a), vp(vW1 + k), vp(H), hsel, hsel))
        round_bf16_pair(a, a + 1, t2)
        e("v_pk_add_f32 %s, %s, %s" % (vp(a), vp(a), vp(vB1 + k)))
        round_bf16_pair(a, a + 1, t2)
        e("v_pk_mul_f32 %s, %s, %s" % (vp(t), vp(a), vp(a)))
        e("v_pk_fma_f32 %s, %s, %s, %s op_sel_hi:[1,0,1]" % (vp(t), vp(t), sp(sC4), vp(cC3)))
        e("v_pk_mul_f32 %s, %s, %s" % (vp(t), vp(t), vp(a)))
        e("v_exp_f32 %s, %s" % (v(t), v(t)))
        e("v_exp_f32 %s, %s" % (v(t + 1), v(t + 1)))
        nop(1)
        e("v_pk_add_f32 %s, %s, 1.0 op_sel_hi:[1,0]" % (vp(t), vp(t)))
        e("v_rcp_f32 %s, %s" % (v(t), v(t)))
        e("v_rcp_f32 %s, %s" % (v(t + 1), v(t + 1)))
        nop(1)
        e("v_pk_mul_f32 %s, %s, %s" % (vp(a), vp(a), vp(t)))
        round_bf16_pair(a, a + 1, t2)
        if k == 0:
            e("v_pk_mul_f32 %s, %s, %s" % (vp(Y), vp(a), vp(vW2 + k)))
        else:
            e("v_pk_fma_f32 %s, %s, %s, %s" % (vp(Y), vp(a), vp(vW2 + k), vp(Y)))
    e("v_add_f32 %s, %s, %s" % (v(Y), v(Y), v(Y + 1)))
    allreduce("add", [Y], [T + 24])

hdr = open("cdna_kernels/%s.s.ref" % NAME).read().split("\n")
for ln in hdr:
    if ln.startswith("; @launch"):
        L.append("; @launch grid=(256,1,1) block=(512,1,1) lds=%d" % LDS_TOTAL)
        break
    L.append(ln)
L.append('.amdgcn_target "amdgcn-amd-amdhsa--gfx950"')
L.append(".text")
L.append(".globl %s_kernel" % NAME)
L.append(".p2align 8")
L.append(".type %s_kernel,@function" % NAME)
lab("%s_kernel" % NAME)

e("s_cmp_ge_u32 s2, 256")
e("s_cbranch_scc1 END")
e("s_load_dwordx16 s[16:31], s[0:1], 0")
e("s_load_dwordx8 s[32:39], s[0:1], 64")
e("s_load_dwordx2 s[40:41], s[0:1], 96")
e("v_and_b32 %s, 63, v0" % v(vL))
e("v_lshrrev_b32 v2, 6, v0")
e("s_and_b32 s%d, s2, 7" % sG)
e("s_lshr_b32 s%d, s2, 3" % sC)
e("v_readfirstlane_b32 s%d, v2" % sWAVE)
e("v_lshlrev_b32 %s, 4, %s" % (v(aL16), v(vL)))
e("v_lshlrev_b32 %s, 5, %s" % (v(aL32), v(vL)))
e("s_mov_b32 s%d, 0" % sLAY)
e("s_and_b32 s%d, s%d, 7" % (sCB, sC))
e("s_lshr_b32 s%d, s%d, 3" % (sRB, sC))
e("s_mov_b32 s%d, s2" % sPI)
e("s_mov_b32 s%d, %s" % (sC1, fh(LOG2E)))
e("s_mov_b32 s%d, %s" % (sC2, fh(SCALE)))
GC0 = -2.0 * 0.7978845608028654 * LOG2E
GC1 = GC0 * 0.044715
e("s_mov_b32 s%d, %s" % (sC3, fh(GC0)))
e("s_mov_b32 s%d, %s" % (sC4, fh(GC1)))
e("s_waitcnt lgkmcnt(0)")
e("s_cmp_ge_u32 s%d, 4" % sWAVE)
e("s_cbranch_scc1 LOADER")
e("s_load_dword s%d, %s, 0" % (sTAG, sp(P_WS)))

XV = T
XL = T + 8
if TS:
    e("s_memtime s[98:99]" if TS != 9999 else "s_memrealtime s[98:99]")
    e("s_waitcnt lgkmcnt(0)")
    e("s_mov_b32 s%d, s98" % (sTSB + 2 * NTS))
e("s_cmp_lg_u32 s%d, 0" % sWAVE)
e("s_cbranch_scc1 NOX")
e("global_load_dwordx4 %s, %s, %s" % (vr(XL, 4), v(aL16), sp(P_X)))
lab("NOX")
sacc([(sG, 24), (sC, 15), (sWAVE, 13)], W0 * 256)
e("v_and_b32 v3, 15, %s" % v(vL))
e("v_lshrrev_b32 v4, 4, %s" % v(vL))
e("v_lshlrev_b32 v2, 8, v3")
e("v_lshl_add_u32 v2, v4, 4, v2")
e("v_add_u32 v2, s%d, v2" % sT0)
e("v_add_u32 v5, 0x1000, v2")
for Tt in range(2):
    for s in range(4):
        e("global_load_dwordx4 %s, %s, %s offset:%d nt" % (vr(vK + Tt * 16 + s * 4, 4), "v2" if Tt == 0 else "v5", sp(P_K), s * 64))
e("v_mov_b32 v6, 0")
e("global_load_ushort %s, v6, %s" % (v(vB2), sp(P_B2)))
e("s_lshl_b32 s%d, s%d, 2" % (sT0, sPI))
e("v_mov_b32 v6, s%d" % sT0)
e("global_load_dword %s, v6, %s" % (v(vXR), sp(P_X)))

sacc([(sG, 14), (sWAVE, 10)], QS_OFF)
e("v_add_u32 %s, s%d, %s" % (v(aQS), sT0, v(aL16)))
sacc([(sG, 14), (sRB, 12), (sCB, 9), (sWAVE, 7)], QS_OFF)
e("v_add_u32 %s, s%d, %s" % (v(aQW), sT0, v(aL32)))
e("v_lshrrev_b32 v6, 2, v3")
e("v_lshlrev_b32 v6, 8, v6")
e("v_lshl_add_u32 v6, v4, 4, v6")
e("v_add_u32 %s, 0x%x, v6" % (v(aQF), LQ))
sacc([(sG, 17), (sC, 12)], PO_OFF)
e("v_lshlrev_b32 v6, 4, v0")
e("v_add_u32 %s, s%d, v6" % (v(aPOW), sT0))
sacc([(sG, 17), (sC, 12)], OP_OFF)
e("v_add_u32 %s, s%d, v6" % (v(aOPW), sT0))
sacc([(sG, 11), (sC, 6), (sWAVE, 4)], ST_OFF)
e("v_mov_b32 %s, s%d" % (v(aSTW), sT0))
e("s_lshr_b32 s%d, s%d, 3" % (sT2, sC))
sacc([(sG, 11), (sT2, 4)], ST_OFF)
e("v_lshrrev_b32 v6, 1, %s" % v(vL))
e("v_lshlrev_b32 v7, 6, v6")
e("v_add_u32 %s, s%d, v7" % (v(aSTR), sT0))
sacc([(sG, 17), (sC, 7), (sWAVE, 5)], PO_OFF)
e("v_lshlrev_b32 v7, 12, v6")
e("v_and_b32 v6, 1, %s" % v(vL))
e("v_lshl_add_u32 v7, v6, 4, v7")
e("v_add_u32 %s, s%d, v7" % (v(aPOR), sT0))
sacc([(sG, 17), (sC, 7)], OP_OFF)
e("v_lshrrev_b32 v6, 3, %s" % v(vL))
e("v_lshlrev_b32 v7, 12, v6")
e("v_and_b32 v8, 7, %s" % v(vL))
e("v_lshl_add_u32 v7, v8, 4, v7")
e("v_add_u32 %s, s%d, v7" % (v(aOPR), sT0))
sacc([(sC, 10), (sG, 7)], XP_OFF)
e("v_lshlrev_b32 v7, 15, v6")
e("v_lshl_add_u32 v7, v8, 4, v7")
e("v_add_u32 %s, s%d, v7" % (v(aXPW), sT0))
sacc([(sG, 15), (sC, 10)], XP_OFF)
e("v_add_u32 %s, s%d, %s" % (v(aXPR), sT0, v(aL16)))
sacc([(sG, 11), (sC, 6)], X1_OFF)
e("v_lshlrev_b32 v7, 3, v8")
e("v_add_u32 %s, s%d, v7" % (v(aX1W), sT0))
sacc([(sC, 6)], LXR)
e("v_add_u32 %s, s%d, v7" % (v(aXRR), sT0))
sacc([(sG, 11)], X1_OFF)
e("v_add_u32 %s, s%d, %s" % (v(aX1R), sT0, v(aL32)))
sacc([(sPI, 3)], X1_OFF)
e("v_lshlrev_b32 v6, 11, %s" % v(vL))
e("v_add_u32 %s, s%d, v6" % (v(aXW), sT0))
e("v_lshrrev_b32 v6, 2, v3")
e("v_lshl_add_u32 v6, v4, 2, v6")
e("v_lshlrev_b32 v7, 8, v6")
e("v_and_b32 v6, 7, v6")
e("v_lshl_add_u32 v7, v6, 5, v7")
e("v_and_b32 v6, 3, %s" % v(vL))
e("v_lshl_add_u32 v7, v6, 3, v7")
e("s_lshl_b32 s%d, s%d, 13" % (sT0, sWAVE))
e("v_add_u32 %s, s%d, v7" % (v(aVT), sT0))
sacc([(sWAVE, 11)], LSC)
e("v_lshlrev_b32 v6, 2, v3")
e("v_lshl_add_u32 v6, v4, 9, v6")
e("v_add_u32 %s, s%d, v6" % (v(aSCW), sT0))
sacc([(sWAVE, 9)], LSC)
e("v_lshlrev_b32 v6, 3, %s" % v(vL))
e("v_add_u32 %s, s%d, v6" % (v(aSCR), sT0))
e("s_add_u32 s%d, s%d, 0x%x" % (sWS2, P_WS, SDELTA))
e("s_addc_u32 s%d, s%d, 0" % (sWS2 + 1, P_WS + 1))
e("s_waitcnt lgkmcnt(0)")
e("s_add_u32 s%d, s%d, 1" % (sTAG, sTAG))

lab("LAYER")
e("s_lshl_b32 s%d, s%d, 3" % (sLAY2, sLAY))
e("s_cmp_lg_u32 s%d, 0" % sWAVE)
e("s_cbranch_scc1 QW")
e("s_cmp_lg_u32 s%d, 0" % sLAY)
e("s_cbranch_scc1 QPOLL")
e("s_waitcnt vmcnt(10)")
for i in range(4):
    e("v_lshlrev_b32 %s, 16, %s" % (v(XV + 2 * i), v(XL + i)))
    e("v_and_b32 %s, 0xffff0000, %s" % (v(XV + 2 * i + 1), v(XL + i)))
e("s_branch QLN")
lab("QPOLL")
G0 = T + 8
e("v_add_u32 v6, 0x%x, %s" % (X2_OFF - X1_OFF, v(aX1R)))
e("s_sub_u32 s%d, s%d, 1" % (sTAG, sTAG))
poll(["global_load_dwordx4 %s, v6, %s sc1" % (vr(G0, 4), sp(P_WS)),
      "global_load_dwordx4 %s, v6, %s offset:16 sc1" % (vr(G0 + 4, 4), sp(P_WS))],
     [G0 + 1, G0 + 3, G0 + 5, G0 + 7], T + 16, T + 17)
e("s_add_u32 s%d, s%d, 1" % (sTAG, sTAG))
for i in range(4):
    e("v_lshlrev_b32 %s, 16, %s" % (v(XV + 2 * i), v(G0 + 2 * i)))
    e("v_and_b32 %s, 0xffff0000, %s" % (v(XV + 2 * i + 1), v(G0 + 2 * i)))
lab("QLN")
ts()
e("v_add_u32 v6, 0x%x, %s" % (LXR, v(aL32)))
e("ds_write_b128 v6, %s" % vr(XV, 4))
e("ds_write_b128 v6, %s offset:16" % vr(XV + 4, 4))
layernorm(XV, [], T + 16)
e("v_add_u32 v6, 0x%x, %s" % (LH, v(aL32)))
e("ds_write_b128 v6, %s" % vr(XV, 4))
e("ds_write_b128 v6, %s offset:16" % vr(XV + 4, 4))
e("s_waitcnt lgkmcnt(0)")
lab("QW")
sacc([(sRB, 9)], LH)
e("v_lshrrev_b32 v6, 2, %s" % v(vL))
e("v_lshlrev_b32 v6, 5, v6")
e("v_add_u32 v6, s%d, v6" % sT0)
e("s_barrier")
e("ds_read_b128 %s, v6" % vr(XV, 4))
e("ds_read_b128 %s, v6 offset:16" % vr(XV + 4, 4))
lab("QG")
e("s_cmp_lg_u32 s%d, 0" % sLAY)
e("s_cbranch_scc1 QG2")
sacc([(sWAVE, 5)], LWQ)
e("v_lshrrev_b32 v6, 2, %s" % v(vL))
e("v_lshlrev_b32 v6, 10, v6")
e("v_and_b32 v7, 3, %s" % v(vL))
e("v_lshl_add_u32 v6, v7, 3, v6")
e("v_add_u32 v6, s%d, v6" % sT0)
WT = T + 16
for i in range(8):
    e("ds_read_b64 %s, v6 offset:%d" % (vr(WT + 2 * i, 2), 128 * i))
e("s_waitcnt lgkmcnt(0)")
for i in range(16):
    e("v_lshlrev_b32 %s, 16, %s" % (v(vWQF + 2 * i), v(WT + i)))
    e("v_and_b32 %s, 0xffff0000, %s" % (v(vWQF + 2 * i + 1), v(WT + i)))
lab("QG2")
e("s_waitcnt lgkmcnt(0)")
A = T + 32
U = T + 36
for i in range(8):
    hb, hs = bcast_sel(XV + i)
    for hlf in range(2):
        w = vWQF + 4 * i + 2 * hlf
        if i == 0:
            e("v_pk_mul_f32 %s, %s, %s op_sel:[%d,0] op_sel_hi:[%d,1]" % (vp(A + 2 * hlf), vp(hb), vp(w), hs, hs))
        else:
            e("v_pk_fma_f32 %s, %s, %s, %s op_sel:[%d,0,0] op_sel_hi:[%d,1,1]" % (vp(A + 2 * hlf), vp(hb), vp(w), vp(A + 2 * hlf), hs, hs))
allreduce("add", [A, A + 1, A + 2, A + 3], [U, U + 1, U + 2, U + 3], rors=(4, 8))
QP = T + 40
for i in range(4):
    e("v_mov_b32 %s, %s" % (v(QP + 2 * i), v(A + i)))
    e("v_mov_b32 %s, s%d" % (v(QP + 2 * i + 1), sTAG))
mask_begin(15)
e("s_cmp_lg_u32 s%d, 0" % sLAY)
e("s_cbranch_scc1 QST1")
e("global_store_dwordx4 %s, %s, %s" % (v(aQW), vr(QP, 4), sp(P_WS)))
e("global_store_dwordx4 %s, %s, %s offset:16" % (v(aQW), vr(QP + 4, 4), sp(P_WS)))
e("global_store_dwordx4 %s, %s, %s sc1" % (v(aQW), vr(QP, 4), sp(sWS2)))
e("global_store_dwordx4 %s, %s, %s offset:16 sc1" % (v(aQW), vr(QP + 4, 4), sp(sWS2)))
e("s_branch QST2")
lab("QST1")
e("s_cmp_lg_u32 s%d, 0" % sFAST)
e("s_cbranch_scc1 QST3")
e("global_store_dwordx4 %s, %s, %s sc1" % (v(aQW), vr(QP, 4), sp(P_WS)))
e("global_store_dwordx4 %s, %s, %s offset:16 sc1" % (v(aQW), vr(QP + 4, 4), sp(P_WS)))
e("s_branch QST2")
lab("QST3")
e("global_store_dwordx4 %s, %s, %s" % (v(aQW), vr(QP, 4), sp(P_WS)))
e("global_store_dwordx4 %s, %s, %s offset:16" % (v(aQW), vr(QP + 4, 4), sp(P_WS)))
lab("QST2")
mask_end()
ts()
G0 = T
for k in range(1, 4):
    e("v_add_u32 %s, 0x%x, %s" % (v(T + 32 + k), 0x1000 * k, v(aQS)))
loads = []; tags = []
for k in range(4):
    loads.append("global_load_dwordx4 %s, %s, %s sc1" % (vr(G0 + 4 * k, 4), v(aQS) if k == 0 else v(T + 32 + k), sp(sPB)))
    tags += [G0 + 4 * k + 1, G0 + 4 * k + 3]
poll(loads, tags, T + 16, T + 17, dual=True)
ts()
e("v_add_f32 %s, %s, %s" % (v(G0), v(G0), v(G0 + 4)))
e("v_add_f32 %s, %s, %s" % (v(G0 + 2), v(G0 + 2), v(G0 + 6)))
e("v_add_f32 %s, %s, %s" % (v(G0 + 8), v(G0 + 8), v(G0 + 12)))
e("v_add_f32 %s, %s, %s" % (v(G0 + 10), v(G0 + 10), v(G0 + 14)))
e("v_add_f32 %s, %s, %s" % (v(G0), v(G0), v(G0 + 8)))
e("v_add_f32 %s, %s, %s" % (v(G0 + 2), v(G0 + 2), v(G0 + 10)))
e("v_cvt_pk_bf16_f32 %s, %s, %s" % (v(G0), v(G0), v(G0 + 2)))
e("v_lshlrev_b32 v6, 2, v0")
e("v_add_u32 v6, 0x%x, v6" % LQ)
e("ds_write_b32 v6, %s" % v(G0))
e("s_waitcnt lgkmcnt(0)")
lab("SW")
e("s_barrier")
QL = T
for s in range(4):
    e("ds_read_b128 %s, %s offset:%d" % (vr(QL + 4 * s, 4), v(aQF), 64 * s))
e("s_waitcnt vmcnt(0) lgkmcnt(0)")
SC0 = T + 32
for s in range(4):
    for Tt in range(2):
        c = "0" if s == 0 else vr(SC0 + 4 * Tt, 4)
        e("v_mfma_f32_16x16x32_bf16 %s, %s, %s, %s" % (vr(SC0 + 4 * Tt, 4), vr(vK + Tt * 16 + s * 4, 4), vr(QL + 4 * s, 4), c))
nop(8)
tmp = T + 40
for i in range(0, 8, 2):
    round_bf16_pair(SC0 + i, SC0 + i + 1, tmp)
    e("v_pk_mul_f32 %s, %s, %s op_sel_hi:[1,0]" % (vp(SC0 + i), vp(SC0 + i), sp(sC2)))
    round_bf16_pair(SC0 + i, SC0 + i + 1, tmp)
M = T + 41
e("v_max3_f32 %s, %s, %s, %s" % (v(M), v(SC0), v(SC0 + 1), v(SC0 + 2)))
e("v_max3_f32 %s, %s, %s, %s" % (v(M), v(M), v(SC0 + 3), v(SC0 + 4)))
e("v_max3_f32 %s, %s, %s, %s" % (v(M), v(M), v(SC0 + 5), v(SC0 + 6)))
e("v_max_f32 %s, %s, %s" % (v(M), v(M), v(SC0 + 7)))
allreduce("max", [M], [tmp], rors=())
MM = T + 42
e("v_mul_f32 %s, s%d, %s" % (v(MM), sC1, v(M)))
for i in range(8):
    e("v_fma_f32 %s, %s, s%d, -%s" % (v(SC0 + i), v(SC0 + i), sC1, v(MM)))
for i in range(8):
    e("v_exp_f32 %s, %s" % (v(SC0 + i), v(SC0 + i)))
nop(1)
PA = T + 44
for i in range(4):
    e("v_cvt_pk_bf16_f32 %s, %s, %s" % (v(PA + i), v(SC0 + 2 * i), v(SC0 + 2 * i + 1)))
e("s_cmp_lg_u32 s%d, 0" % sLAY)
e("s_cbranch_scc1 SV")
e("s_barrier")
for Td in range(8):
    e("v_xor_b32 v6, 0x%x, %s" % (Td << 5, v(aVT)))
    e("ds_read_b64_tr_b16 %s, v6" % vr(vVF + 4 * Td, 2))
    e("ds_read_b64_tr_b16 %s, v6 offset:4096" % vr(vVF + 4 * Td + 2, 2))
e("s_waitcnt lgkmcnt(0)")
lab("SV")
ts()
D0 = T
for Td in range(8):
    e("v_mfma_f32_16x16x32_bf16 %s, %s, %s, 0" % (vr(D0 + 4 * Td, 4), vr(PA, 4), vr(vVF + 4 * Td, 4)))
LS = T + 43
e("v_pk_add_f32 %s, %s, %s" % (vp(SC0), vp(SC0), vp(SC0 + 2)))
e("v_pk_add_f32 %s, %s, %s" % (vp(SC0 + 4), vp(SC0 + 4), vp(SC0 + 6)))
e("v_pk_add_f32 %s, %s, %s" % (vp(SC0), vp(SC0), vp(SC0 + 4)))
e("v_add_f32 %s, %s, %s" % (v(LS), v(SC0), v(SC0 + 1)))
allreduce("add", [LS], [tmp], rors=())
sacc([(sWAVE, 5)], LSS)
e("v_lshlrev_b32 v6, 1, %s" % v(vL))
e("v_add_u32 v6, s%d, v6" % sT0)
e("v_mov_b32 %s, %s" % (v(T + 40), v(M)))
e("v_mov_b32 %s, %s" % (v(T + 41), v(LS)))
e("s_mov_b64 %s, exec" % sp(sEX))
e("s_mov_b64 exec, 0x1111")
e("ds_write_b64 v6, %s" % vr(T + 40, 2))
e("s_mov_b64 exec, %s" % sp(sEX))
for Td in range(8):
    e("ds_write_b32 %s, %s offset:%d" % (v(aSCW), v(D0 + 4 * Td), Td * 64))
e("s_waitcnt lgkmcnt(0)")
e("s_barrier")
R = T
for w_ in range(4):
    e("ds_read_b64 %s, %s offset:%d" % (vr(R + 2 * w_, 2), v(aSCR), 2048 * w_))
sacc([(sWAVE, 3)], LSS)
e("v_mov_b32 v6, s%d" % sT0)
for w_ in range(4):
    e("ds_read_b64 %s, v6 offset:%d" % (vr(R + 8 + 2 * w_, 2), 32 * w_))
e("v_mov_b32 v7, 0x%x" % LFL)
e("ds_read_b32 v7, v7")
e("s_waitcnt lgkmcnt(0)")
e("v_readfirstlane_b32 s%d, v7" % sFAST)
MC, E0, LC, O0, O1 = T + 16, T + 17, T + 22, T + 24, T + 26
e("v_max3_f32 %s, %s, %s, %s" % (v(MC), v(R + 8), v(R + 10), v(R + 12)))
e("v_max_f32 %s, %s, %s" % (v(MC), v(MC), v(R + 14)))
for w_ in range(4):
    e("v_sub_f32 %s, %s, %s" % (v(E0 + w_), v(R + 8 + 2 * w_), v(MC)))
    e("v_mul_f32 %s, s%d, %s" % (v(E0 + w_), sC1, v(E0 + w_)))
for w_ in range(4):
    e("v_exp_f32 %s, %s" % (v(E0 + w_), v(E0 + w_)))
nop(1)
e("v_mul_f32 %s, %s, %s" % (v(LC), v(E0), v(R + 9)))
e("v_mul_f32 %s, %s, %s" % (v(O0), v(E0), v(R)))
e("v_mul_f32 %s, %s, %s" % (v(O1), v(E0), v(R + 1)))
for w_ in range(1, 4):
    e("v_fmac_f32 %s, %s, %s" % (v(LC), v(E0 + w_), v(R + 9 + 2 * w_)))
    e("v_fmac_f32 %s, %s, %s" % (v(O0), v(E0 + w_), v(R + 2 * w_)))
    e("v_fmac_f32 %s, %s, %s" % (v(O1), v(E0 + w_), v(R + 2 * w_ + 1)))
e("v_mov_b32 %s, s%d" % (v(O0 + 1), sTAG))
e("v_mov_b32 %s, s%d" % (v(O1 + 1), sTAG))
fstore(v(aPOW), vr(O0, 4))
S4 = T + 28
e("v_mov_b32 %s, %s" % (v(S4), v(MC)))
e("v_mov_b32 %s, s%d" % (v(S4 + 1), sTAG))
e("v_mov_b32 %s, %s" % (v(S4 + 2), v(LC)))
e("v_mov_b32 %s, s%d" % (v(S4 + 3), sTAG))
mask_begin(1)
fstore(v(aSTW), vr(S4, 4))
mask_end()
ts()
e("s_cmp_lg_u32 s%d, 0" % sLAY)
e("s_cbranch_scc1 OPH")
sacc([(sWAVE, 12)], LWO)
e("v_add_u32 v6, s%d, %s" % (sT0, v(aL16)))
WT = T + 32
for i in range(4):
    e("ds_read_b128 %s, v6 offset:%d" % (vr(WT + 4 * i, 4), 1024 * i))
e("s_waitcnt lgkmcnt(0)")
for i in range(16):
    e("v_lshlrev_b32 %s, 16, %s" % (v(vWOF + 2 * i), v(WT + i)))
    e("v_and_b32 %s, 0xffff0000, %s" % (v(vWOF + 2 * i + 1), v(WT + i)))
load_mixer_weights("v0")
e("v_lshlrev_b32 %s, 16, %s" % (v(vB2), v(vB2)))
e("v_and_b32 %s, 0xffff0000, %s" % (v(vXR + 1), v(vXR)))
e("v_lshlrev_b32 %s, 16, %s" % (v(vXR), v(vXR)))
lab("OPH")
SR, PR = T, T + 4
poll(["global_load_dwordx4 %s, %s, %s sc1" % (vr(SR, 4), v(aSTR), sp(P_WS)),
      "global_load_dwordx4 %s, %s, %s sc1" % (vr(PR, 4), v(aPOR), sp(P_WS))],
     [SR + 1, SR + 3, PR + 1, PR + 3], T + 8, T + 9)
ts()
Mx = T + 8
e("v_mov_b32 %s, %s" % (v(Mx), v(SR)))
allreduce("max", [Mx], [T + 9], rors=(2, 4, 8))
Ee = T + 10
e("v_sub_f32 %s, %s, %s" % (v(Ee), v(SR), v(Mx)))
e("v_mul_f32 %s, s%d, %s" % (v(Ee), sC1, v(Ee)))
e("v_exp_f32 %s, %s" % (v(Ee), v(Ee)))
nop(1)
A0, A1, A2 = T + 12, T + 13, T + 14
e("v_mul_f32 %s, %s, %s" % (v(A0), v(Ee), v(SR + 2)))
e("v_mul_f32 %s, %s, %s" % (v(A1), v(Ee), v(PR)))
e("v_mul_f32 %s, %s, %s" % (v(A2), v(Ee), v(PR + 2)))
allreduce("add", [A0, A1, A2], [T + 16, T + 17, T + 18], rors=(2, 4, 8))
e("v_rcp_f32 %s, %s" % (v(A0), v(A0)))
nop(1)
e("v_mul_f32 %s, %s, %s" % (v(A1), v(A1), v(A0)))
e("v_mul_f32 %s, %s, %s" % (v(A2), v(A2), v(A0)))
round_bf16_pair(A1, A2, T + 16)
OO = T + 20
nop(2)
e("v_mov_b32_dpp %s, %s quad_perm:[0,0,2,2] %s" % (v(OO), v(A1), DPPM))
e("v_mov_b32_dpp %s, %s quad_perm:[0,0,2,2] %s" % (v(OO + 1), v(A2), DPPM))
e("v_mov_b32_dpp %s, %s quad_perm:[1,1,3,3] %s" % (v(OO + 2), v(A1), DPPM))
e("v_mov_b32_dpp %s, %s quad_perm:[1,1,3,3] %s" % (v(OO + 3), v(A2), DPPM))
AC = T + 24
for i in range(4):
    ob, os_ = bcast_sel(OO + i)
    for k in range(4):
        w = vWOF + 8 * i + 2 * k
        if i == 0:
            e("v_pk_mul_f32 %s, %s, %s op_sel:[%d,0] op_sel_hi:[%d,1]" % (vp(AC + 2 * k), vp(ob), vp(w), os_, os_))
        else:
            e("v_pk_fma_f32 %s, %s, %s, %s op_sel:[%d,0,0] op_sel_hi:[%d,1,1]" % (vp(AC + 2 * k), vp(ob), vp(w), vp(AC + 2 * k), os_, os_))
sacc([(sWAVE, 11)], LOC)
e("v_add_u32 v6, s%d, %s" % (sT0, v(aL32)))
e("ds_write_b128 v6, %s" % vr(AC, 4))
e("ds_write_b128 v6, %s offset:16" % vr(AC + 4, 4))
e("v_lshlrev_b32 v6, 3, v0")
e("v_add_u32 v6, 0x%x, v6" % LOC)
e("s_waitcnt lgkmcnt(0)")
e("s_barrier")
R = T
for w_ in range(4):
    e("ds_read_b64 %s, v6 offset:%d" % (vr(R + 2 * w_, 2), 2048 * w_))
e("s_waitcnt lgkmcnt(0)")
O4 = T + 8
e("v_pk_add_f32 %s, %s, %s" % (vp(R), vp(R), vp(R + 2)))
e("v_pk_add_f32 %s, %s, %s" % (vp(R + 4), vp(R + 4), vp(R + 6)))
e("v_add_f32 %s, %s, %s" % (v(O4), v(R), v(R + 4)))
e("v_add_f32 %s, %s, %s" % (v(O4 + 2), v(R + 1), v(R + 5)))
e("v_mov_b32 %s, s%d" % (v(O4 + 1), sTAG))
e("v_mov_b32 %s, s%d" % (v(O4 + 3), sTAG))
fstore(v(aOPW), vr(O4, 4))
ts()
e("s_cmp_lg_u32 s%d, 0" % sWAVE)
e("s_cbranch_scc1 MW")
XR = T + 16
AD = T + 40
for k in range(1, 4):
    e("v_add_u32 %s, 0x%x, %s" % (v(AD + k), 0x8000 * k, v(aOPR)))
e("ds_read_b64 %s, %s" % (vr(T + 44, 2), v(aXRR)))
loads = []; tags = []
for k in range(4):
    loads.append("global_load_dwordx4 %s, %s, %s sc1" % (vr(XR + 4 * k, 4), v(aOPR) if k == 0 else v(AD + k), sp(P_WS)))
    tags += [XR + 4 * k + 1, XR + 4 * k + 3]
poll(loads, tags, T + 32, T + 33)
ts()
Y0, Y1 = T + 32, T + 34
e("v_add_f32 %s, %s, %s" % (v(Y0), v(XR), v(XR + 4)))
e("v_add_f32 %s, %s, %s" % (v(Y1), v(XR + 2), v(XR + 6)))
e("v_add_f32 %s, %s, %s" % (v(XR + 8), v(XR + 8), v(XR + 12)))
e("v_add_f32 %s, %s, %s" % (v(XR + 10), v(XR + 10), v(XR + 14)))
e("v_add_f32 %s, %s, %s" % (v(Y0), v(Y0), v(XR + 8)))
e("v_add_f32 %s, %s, %s" % (v(Y1), v(Y1), v(XR + 10)))
allreduce("add", [Y0, Y1], [T + 36, T + 37], rors=(8,))
e("v_mov_b32 %s, s%d" % (v(Y0 + 1), sTAG))
e("v_mov_b32 %s, s%d" % (v(Y1 + 1), sTAG))
e("global_store_dwordx4 %s, %s, %s sc1" % (v(aXPW), vr(Y0, 4), sp(P_WS)))
poll(["global_load_dwordx4 %s, %s, %s sc1" % (vr(XR, 4), v(aXPR), sp(P_WS))], [XR + 1, XR + 3], T + 36, T + 37)
Z0, Z1 = T + 36, T + 37
e("v_mov_b32 %s, %s" % (v(Z0), v(XR)))
e("v_mov_b32 %s, %s" % (v(Z1), v(XR + 2)))
allreduce("add", [Z0, Z1], [T + 38, T + 39], rors=(8,))
round_bf16_pair(Z0, Z1, T + 38)
e("s_waitcnt lgkmcnt(0)")
e("v_pk_add_f32 %s, %s, %s" % (vp(Z0), vp(Z0), vp(T + 44)))
e("v_cvt_pk_bf16_f32 %s, %s, %s" % (v(T + 40), v(Z0), v(Z1)))
e("v_mov_b32 %s, s%d" % (v(T + 41), sTAG))
mask_begin(255)
e("s_cmp_lg_u32 s%d, 0" % sFAST)
e("s_cbranch_scc1 X1F")
e("global_store_dwordx2 %s, %s, %s sc1" % (v(aX1W), vr(T + 40, 2), sp(P_WS)))
e("s_branch X1D")
lab("X1F")
e("global_store_dwordx2 %s, %s, %s" % (v(aX1W), vr(T + 40, 2), sp(P_WS)))
lab("X1D")
mask_end()
e("v_readlane_b32 s%d, %s, s%d" % (sT2, v(T + 40), sG))
nop(2)
e("s_lshl_b32 s%d, s%d, 16" % (sT3, sT2))
e("s_and_b32 s%d, s%d, 0xffff0000" % (sT2, sT2))
e("v_mov_b32 %s, s%d" % (v(vXR), sT3))
e("v_mov_b32 %s, s%d" % (v(vXR + 1), sT2))
ts()
G0 = T + 8
poll(["global_load_dwordx4 %s, %s, %s sc1" % (vr(G0, 4), v(aX1R), sp(P_WS)),
      "global_load_dwordx4 %s, %s, %s offset:16 sc1" % (vr(G0 + 4, 4), v(aX1R), sp(P_WS))],
     [G0 + 1, G0 + 3, G0 + 5, G0 + 7], T + 18, T + 19)
ts()
for i in range(4):
    e("v_lshlrev_b32 %s, 16, %s" % (v(XV + 2 * i), v(G0 + 2 * i)))
    e("v_and_b32 %s, 0xffff0000, %s" % (v(XV + 2 * i + 1), v(G0 + 2 * i)))
H0 = T + 18
e("v_mov_b32 %s, %s" % (v(H0), v(vXR)))
e("v_mov_b32 %s, %s" % (v(H0 + 1), v(vXR + 1)))
layernorm(XV, [H0], T + 24)
layernorm(XV, [H0], T + 24, only_extra=True)
e("v_mov_b32 v6, 0x%x" % LHB)
mask_begin(1)
e("ds_write_b64 v6, %s" % vr(H0, 2))
mask_end()
e("s_waitcnt lgkmcnt(0)")
e("s_barrier")
e("s_branch MG")
lab("MW")
e("v_mov_b32 v6, 0x%x" % LHB)
e("s_barrier")
e("ds_read_b64 %s, v6" % vr(H0, 2))
e("s_waitcnt lgkmcnt(0)")
lab("MG")
ts()
Ya = T + 22
mixer(H0, 0, Ya)
sacc([(sWAVE, 2)], LMC)
e("v_mov_b32 v6, s%d" % sT0)
mask_begin(1)
e("ds_write_b32 v6, %s" % v(Ya))
mask_end()
e("s_waitcnt lgkmcnt(0)")
e("s_barrier")
e("s_cmp_lg_u32 s%d, 0" % sWAVE)
e("s_cbranch_scc1 MSKIP")
e("v_mov_b32 v6, 0x%x" % LMC)
e("ds_read_b128 %s, v6" % vr(T + 24, 4))
e("ds_read_b128 %s, v6 offset:16" % vr(T + 28, 4))
e("s_waitcnt lgkmcnt(0)")
Yb = Ya + 1
e("v_pk_add_f32 %s, %s, %s" % (vp(T + 24), vp(T + 24), vp(T + 26)))
e("v_pk_add_f32 %s, %s, %s" % (vp(T + 28), vp(T + 28), vp(T + 30)))
e("v_add_f32 %s, %s, %s" % (v(Ya), v(T + 24), v(T + 25)))
e("v_add_f32 %s, %s, %s" % (v(Yb), v(T + 28), v(T + 29)))
round_bf16_pair(Ya, Yb, T + 24)
e("v_add_f32 %s, %s, %s" % (v(Ya), v(Ya), v(vB2)))
e("v_add_f32 %s, %s, %s" % (v(Yb), v(Yb), v(vB2)))
round_bf16_pair(Ya, Yb, T + 24)
e("v_pk_add_f32 %s, %s, %s" % (vp(Ya), vp(Ya), vp(vXR)))
e("v_cvt_pk_bf16_f32 %s, %s, %s" % (v(T + 26), v(Ya), v(Yb)))
e("v_mov_b32 %s, s%d" % (v(T + 27), sTAG))
e("s_cmp_lg_u32 s%d, 0" % sLAY)
e("s_cbranch_scc1 FINAL")
e("v_add_u32 v6, 0x%x, %s" % (X2_OFF - X1_OFF, v(aXW)))
mask_begin(255)
e("global_store_dwordx2 v6, %s, %s sc1" % (vr(T + 26, 2), sp(P_WS)))
mask_end()
e("v_lshlrev_b32 %s, 16, %s" % (v(vXR), v(T + 26)))
e("v_and_b32 %s, 0xffff0000, %s" % (v(vXR + 1), v(T + 26)))
e("s_branch MDONE")
lab("FINAL")
e("s_lshl_b32 s%d, s%d, 2" % (sT0, sPI))
e("v_mov_b32 v6, s%d" % sT0)
mask_begin(1)
e("global_store_dword v6, %s, %s" % (v(T + 26), sp(P_OUT)))
e("s_cmp_lg_u32 s2, 0")
e("s_cbranch_scc1 NOEP")
e("v_mov_b32 v6, 0")
e("global_store_dword v6, %s, %s" % (v(T + 27), sp(P_WS)))
lab("NOEP")
mask_end()
lab("MDONE")
ts()
lab("MSKIP")
e("s_add_u32 s%d, s%d, 1" % (sTAG, sTAG))
e("s_add_u32 s%d, s%d, 1" % (sLAY, sLAY))
e("s_cmp_lt_u32 s%d, 2" % sLAY)
e("s_cbranch_scc1 LAYER")

assert ts_count[0] <= NTS, ts_count[0]
if TS == 9999:
    e("s_cmp_lg_u32 s%d, 0" % sWAVE)
    e("s_cbranch_scc1 END")
    mask_begin(1)
    e("s_lshl_b32 s%d, s2, 7" % sT0)
    e("s_add_u32 s%d, s%d, 0x2000000" % (sT0, sT0))
    e("v_mov_b32 v6, s%d" % sT0)
    e("v_mov_b32 v7, s%d" % (sTSB + 2 * NTS))
    e("global_store_dword v6, v7, %s" % sp(P_WS))
    idx = 1
    for lay in range(2):
        for i in range(ts_count[0]):
            e("v_mov_b32 v7, s%d" % (sTSB + lay * NTS + i))
            e("global_store_dword v6, v7, %s offset:%d" % (sp(P_WS), 4 * idx))
            idx += 1
    mask_end()
e("s_branch END")

lab("LOADER")
e("s_sub_u32 s%d, s%d, 4" % (sWAVE, sWAVE))
e("s_load_dword s%d, %s, 0" % (sTAG, sp(P_WS)))
e("s_getreg_b32 s%d, hwreg(HW_REG_XCC_ID)" % sPIV)
e("s_cmp_lg_u32 s%d, 3" % sWAVE)
e("s_cbranch_scc1 NOID")
sacc([(sG, 8), (sC, 3)], XID_OFF)
e("v_mov_b32 v6, s%d" % sT0)
e("v_mov_b32 %s, s%d" % (v(T), sPIV))
e("s_waitcnt lgkmcnt(0)")
e("s_add_u32 s%d, s%d, 1" % (sT0, sTAG))
e("v_mov_b32 %s, s%d" % (v(T + 1), sT0))
mask_begin(1)
e("global_store_dwordx2 v6, %s, %s sc1" % (vr(T, 2), sp(P_WS)))
mask_end()
lab("NOID")
e("s_lshl_b32 s%d, s%d, 10" % (sT1, sWAVE))
e("v_add_u32 v6, s%d, %s" % (sT1, v(aL16)))
e("s_mov_b64 %s, exec" % sp(sEX))
e("s_cmp_lg_u32 s%d, 3" % sWAVE)
e("s_cbranch_scc1 LD_FULL")
e("s_mov_b32 exec_hi, 0")
lab("LD_FULL")
for base, ptr in ((LW1, P_W1), (LB1, P_B1), (LW2, P_W2)):
    e("s_add_u32 s%d, s%d, 0x%x" % (sT3, sT1, base))
    e("s_mov_b32 m0, s%d" % sT3)
    nop(1)
    e("global_load_lds_dwordx4 v6, %s" % sp(ptr))
e("s_mov_b64 exec, %s" % sp(sEX))
e("v_lshrrev_b32 v3, 3, %s" % v(vL))
e("v_lshlrev_b32 v3, 13, v3")
e("v_and_b32 v4, 7, %s" % v(vL))
e("v_lshl_add_u32 v3, v4, 4, v3")
sacc([(sRB, 20), (sWAVE, 18), (sG, 10), (sCB, 7)], 0)
e("v_add_u32 v3, s%d, v3" % sT0)
e("s_lshl_b32 s%d, s%d, 12" % (sT2, sWAVE))
for i in range(4):
    e("s_add_u32 s%d, s%d, 0x%x" % (sT3, sT2, LWQ + 1024 * i))
    e("s_mov_b32 m0, s%d" % sT3)
    nop(1)
    e("global_load_lds_dwordx4 v3, %s nt" % sp(P_WQ))
    e("v_add_u32 v3, 0x10000, v3")
e("v_and_b32 v3, 15, %s" % v(vL))
e("v_lshrrev_b32 v4, 4, %s" % v(vL))
e("v_lshrrev_b32 v5, 1, v3")
e("v_xor_b32 v6, v5, v4")
e("v_xor_b32 v7, 4, v6")
e("v_and_b32 v5, 1, v3")
e("v_lshl_add_u32 v6, v6, 1, v5")
e("v_lshl_add_u32 v7, v7, 1, v5")
e("v_lshlrev_b32 v6, 4, v6")
e("v_lshlrev_b32 v7, 4, v7")
e("v_lshl_add_u32 v6, v4, 8, v6")
e("v_lshl_add_u32 v7, v4, 8, v7")
sacc([(sG, 24), (sC, 15), (sWAVE, 13)], W0 * 256)
e("v_add_u32 v6, s%d, v6" % sT0)
e("v_add_u32 v7, s%d, v7" % sT0)
e("v_add_u32 v7, 0x400, v7")
e("s_lshl_b32 s%d, s%d, 13" % (sT2, sWAVE))
e("s_waitcnt vmcnt(4)")
for i in range(8):
    e("s_add_u32 s%d, s%d, 0x%x" % (sT3, sT2, LV + 1024 * i))
    e("s_mov_b32 m0, s%d" % sT3)
    nop(1)
    e("global_load_lds_dwordx4 %s, %s nt" % ("v6" if i % 2 == 0 else "v7", sp(P_V)))
    if i % 2 == 0:
        e("v_add_u32 v6, 0x800, v6")
    else:
        e("v_add_u32 v7, 0x800, v7")
sacc([(sG, 8)], XID_OFF)
e("v_and_b32 v9, 31, %s" % v(vL))
e("v_lshlrev_b32 v9, 3, v9")
e("v_add_u32 v9, s%d, v9" % sT0)
e("global_load_dwordx2 %s, v9, %s sc1" % (vr(T + 4, 2), sp(P_WS)))
sacc([(sG, 19), (sC, 14), (sWAVE, 12)], 0)
e("v_add_u32 v6, s%d, %s" % (sT0, v(aL16)))
e("s_lshl_b32 s%d, s%d, 12" % (sT1, sWAVE))
for i in range(4):
    e("s_add_u32 s%d, s%d, 0x%x" % (sT3, sT1, LWO + 1024 * i))
    e("s_mov_b32 m0, s%d" % sT3)
    nop(1)
    e("global_load_lds_dwordx4 v6, %s nt" % sp(P_WO))
    e("v_add_u32 v6, 0x400, v6")
e("s_waitcnt vmcnt(13) lgkmcnt(0)")
e("s_add_u32 s%d, s%d, 1" % (sTAG, sTAG))
e("s_barrier")
e("s_barrier")
e("s_waitcnt vmcnt(4)")
e("s_cmp_lg_u32 s%d, 3" % sWAVE)
e("s_cbranch_scc1 NOID2")
e("s_mov_b32 s%d, 0x100000" % sCNT)
lab("IDP")
e("v_cmp_ne_u32 vcc, s%d, %s" % (sTAG, v(T + 5)))
nop(1)
e("s_cmp_eq_u64 vcc, 0")
e("s_cbranch_scc1 IDD")
e("global_load_dwordx2 %s, v9, %s sc1" % (vr(T + 4, 2), sp(P_WS)))
e("s_waitcnt vmcnt(0)")
e("s_sub_u32 s%d, s%d, 1" % (sCNT, sCNT))
e("s_cbranch_scc0 IDP")
lab("IDD")
e("v_cmp_ne_u32 vcc, s%d, %s" % (sPIV, v(T + 4)))
nop(1)
e("s_cmp_eq_u64 vcc, 0")
e("s_cselect_b32 s%d, 1, 0" % sT3)
e("v_mov_b32 v7, s%d" % sT3)
e("v_mov_b32 v6, 0x%x" % LFL)
e("ds_write_b32 v6, v7")
e("s_waitcnt lgkmcnt(0)")
lab("NOID2")
e("s_barrier")
e("s_waitcnt vmcnt(0)")
e("s_barrier")
e("v_and_b32 v8, 255, v0")
load_mixer_weights("v8")
lab("HLOOP")
e("s_barrier")
e("v_mov_b32 v6, 0x%x" % LHB)
e("s_barrier")
e("ds_read_b64 %s, v6" % vr(H0, 2))
e("s_waitcnt lgkmcnt(0)")
mixer(H0, 1, Ya)
sacc([(sWAVE, 2)], LMC + 16)
e("v_mov_b32 v6, s%d" % sT0)
mask_begin(1)
e("ds_write_b32 v6, %s" % v(Ya))
mask_end()
e("s_waitcnt lgkmcnt(0)")
e("s_barrier")
e("s_cmp_lg_u32 s%d, 0" % sLAY)
e("s_cbranch_scc1 END")
e("s_mov_b32 s%d, 1" % sLAY)
e("s_barrier")
e("s_barrier")
e("s_barrier")
e("s_branch HLOOP")
lab("END")
e("s_endpgm")

L.append('.section .rodata,"a"')
L.append(".p2align 6")
L.append(".amdhsa_kernel %s_kernel" % NAME)
L.append("  .amdhsa_next_free_vgpr 256")
L.append("  .amdhsa_next_free_sgpr 102")
L.append("  .amdhsa_accum_offset 256")
L.append("  .amdhsa_group_segment_fixed_size 0")
L.append("  .amdhsa_kernarg_size 104")
L.append("  .amdhsa_user_sgpr_count 2")
L.append("  .amdhsa_user_sgpr_kernarg_segment_ptr 1")
L.append("  .amdhsa_system_sgpr_workgroup_id_x 1")
L.append("  .amdhsa_float_denorm_mode_32 3")
L.append(".end_amdhsa_kernel")
open(OUT, "w").write("\n".join(L) + "\n")
print("wrote", OUT, "lines", len(L), "ts", ts_count[0])
```

```python
import sys, struct

NAME = "interleave_layers__sliding_block_cached__mixer_token_mlp__decode"
TS = int(sys.argv[2]) if len(sys.argv) > 2 else 0
OUT = sys.argv[1] if len(sys.argv) > 1 else "cdna_kernels/%s.s" % NAME

L = []
def e(s): L.append("  " + s)
def lab(s): L.append(s + ":")
def nop(n):
    while n > 0:
        k = min(n, 16)
        e("s_nop %d" % (k - 1))
        n -= k
def f2u(x): return struct.unpack("<I", struct.pack("<f", x))[0]
def fh(x): return "0x%08x" % f2u(x)

QS_OFF = 0x40000
ST_OFF = 0x8000
XID_OFF = 0xc000
X1_OFF = 0x10000
X2_OFF = 0x20000
PO_OFF = 0x100000
OP_OFF = 0x200000
XP_OFF = 0x300000
LV = 0
LWO = 32768
LW1 = 49152
LB1 = LW1 + 3584
LW2 = LB1 + 3584
LSS = 59904
LMC = 60160
LHB = 60288
LFL = 60352
LQ = 60416
LH = 61440
LSC = 63488
LOC = LSC + 8192
LWQ = LOC + 8192
LXR = LWQ + 16384
LDS_TOTAL = LXR + 2048

W0 = 65536 - 4096
LOG2E = 1.4426950408889634
SCALE = 128.0 ** -0.5

sWAVE = 4; sG = 5; sC = 6; sTAG = 7
sT0, sT1, sT2, sT3 = 8, 9, 10, 11
sCNT = 12
sEX = 14
P_X, P_K, P_V, P_WQ, P_WO, P_BX, P_W1, P_B1, P_W2, P_B2, P_OUT, P_DBG, P_WS = [16 + 2 * i for i in range(13)]
sLAY = 42; sPI = 43; sCB = 95; sRB = 88
sC1 = 44; sC2 = 46; sC3 = 48; sC4 = 50
sFAST = 13; sLAY2 = 94; sPIV = 52; sNPIV = 54; sWS2 = 90; sPB = 92
SDELTA = 0x400000
sTSB = 56
def sp(i): return "s[%d:%d]" % (i, i + 1)

vL = 1
vWQF = 16; vK = 48; vVF = 80; vWOF = 112
vW1 = 144; vB1 = 152; vW2 = 160; vB2 = 168
vXR = 170
aQS = 172; aPOW = 173; aSTW = 174; aSTR = 175; aPOR = 176; aOPW = 177; aOPR = 178
aX1R = 179; aXW = 180; aQW = 181; aVT = 182; aSCW = 183; aSCR = 184; aL16 = 185
aQF = 186; aL32 = 187
cC3 = 188
aXPW = 190; aXPR = 191; aX1W = 240; aXRR = 241
T = 192
def v(i): return "v%d" % i
def vr(i, n): return "v[%d:%d]" % (i, i + n - 1)
def vp(i): return vr(i, 2)

NTS = 13
ts_count = [0]
def ts():
    if not TS: return
    i = ts_count[0]; ts_count[0] += 1
    e("s_memtime s[98:99]" if TS != 9999 else "s_memrealtime s[98:99]")
    e("s_waitcnt lgkmcnt(0)")
    e("s_cmp_eq_u32 s%d, 0" % sLAY)
    e("s_cselect_b32 s%d, s98, s%d" % (sTSB + i, sTSB + i))
    e("s_cselect_b32 s%d, s%d, s98" % (sTSB + NTS + i, sTSB + NTS + i))

DPPM = "row_mask:0xf bank_mask:0xf"

def allreduce(op, regs, tmps, rors=(1, 2, 4, 8)):
    ins = "v_add_f32" if op == "add" else "v_max_f32"
    n = len(regs)
    pad = max(0, 2 - (n - 1))
    nop(2)
    for r in rors:
        for x in regs:
            e("%s_dpp %s, %s, %s row_ror:%d %s" % (ins, v(x), v(x), v(x), r, DPPM))
        nop(pad)
    for sw in ("v_permlane16_swap_b32", "v_permlane32_swap_b32"):
        for x, t in zip(regs, tmps):
            e("v_mov_b32 %s, %s" % (v(t), v(x)))
        nop(pad)
        for x, t in zip(regs, tmps):
            e("%s %s, %s" % (sw, v(x), v(t)))
        nop(1)
        for x, t in zip(regs, tmps):
            e("%s %s, %s, %s" % (ins, v(x), v(x), v(t)))
        nop(pad)

def round_bf16_pair(a, b, tmp):
    e("v_cvt_pk_bf16_f32 %s, %s, %s" % (v(tmp), v(a), v(b)))
    e("v_lshlrev_b32 %s, 16, %s" % (v(a), v(tmp)))
    e("v_and_b32 %s, 0xffff0000, %s" % (v(b), v(tmp)))

def layernorm(X, extra, tb, only_extra=False):
    s2, q2, d2, m, r, t, t2 = tb, tb + 2, tb + 4, tb + 6, tb + 8, tb + 7, tb + 9
    nop(1)
    e("v_readfirstlane_b32 s%d, %s" % (sPIV, v(X)))
    nop(1)
    e("s_xor_b32 s%d, s%d, 0x80000000" % (sNPIV, sPIV))
    nop(1)
    e("v_pk_add_f32 %s, %s, %s op_sel_hi:[1,0]" % (vp(s2), vp(X), sp(sNPIV)))
    e("v_pk_mul_f32 %s, %s, %s" % (vp(q2), vp(s2), vp(s2)))
    for i in range(2, 8, 2):
        e("v_pk_add_f32 %s, %s, %s op_sel_hi:[1,0]" % (vp(d2), vp(X + i), sp(sNPIV)))
        e("v_pk_add_f32 %s, %s, %s" % (vp(s2), vp(s2), vp(d2)))
        e("v_pk_fma_f32 %s, %s, %s, %s" % (vp(q2), vp(d2), vp(d2), vp(q2)))
    s, q = s2, q2
    e("v_add_f32 %s, %s, %s" % (v(s), v(s2), v(s2 + 1)))
    e("v_add_f32 %s, %s, %s" % (v(q), v(q2), v(q2 + 1)))
    allreduce("add", [s, q], [t, t2])
    e("v_mul_f32 %s, %s, %s" % (v(s), fh(1.0 / 512), v(s)))
    e("v_mul_f32 %s, %s, %s" % (v(q), fh(1.0 / 512), v(q)))
    e("v_fma_f32 %s, -%s, %s, %s" % (v(q), v(s), v(s), v(q)))
    e("v_max_f32 %s, 0, %s" % (v(q), v(q)))
    e("v_add_f32 %s, s%d, %s" % (v(m), sPIV, v(s)))
    round_bf16_pair(m, q, t)
    e("v_add_f32 %s, %s, %s" % (v(q), fh(1e-5), v(q)))
    e("v_cvt_pk_bf16_f32 %s, %s, %s" % (v(t), v(q), v(q)))
    e("v_lshlrev_b32 %s, 16, %s" % (v(q), v(t)))
    e("v_sqrt_f32 %s, %s" % (v(q), v(q)))
    e("v_xor_b32 %s, 0x80000000, %s" % (v(m), v(m)))
    e("v_cvt_pk_bf16_f32 %s, %s, %s" % (v(t), v(q), v(q)))
    e("v_lshlrev_b32 %s, 16, %s" % (v(q), v(t)))
    e("v_rcp_f32 %s, %s" % (v(r), v(q)))
    regs = ([] if only_extra else [X + i for i in range(0, 8, 2)]) + list(extra)
    for a in regs:
        e("v_pk_add_f32 %s, %s, %s op_sel_hi:[1,0]" % (vp(a), vp(a), vp(m)))
        round_bf16_pair(a, a + 1, t)
        e("v_pk_mul_f32 %s, %s, %s op_sel_hi:[1,0]" % (vp(a), vp(a), vp(r)))
        round_bf16_pair(a, a + 1, t)

poll_id = [0]
def poll(loads, tags, tmin, tmax, dual=False):
    pid = poll_id[0]; poll_id[0] += 1
    e("s_mov_b32 s%d, 0x100000" % sCNT)
    lab("POLL%d" % pid)
    if dual:
        e("s_and_b32 s%d, s%d, 7" % (sT0, sCNT))
        e("s_or_b32 s%d, s%d, s%d" % (sT0, sT0, sLAY2))
        e("s_cmp_eq_u32 s%d, 1" % sT0)
        e("s_cselect_b64 %s, %s, %s" % (sp(sPB), sp(sWS2), sp(P_WS)))
    for ld in loads:
        e(ld)
    e("s_waitcnt vmcnt(0)")
    tg = list(tags)
    first = tg[:3] if len(tg) >= 3 else tg[:2]
    rest = tg[len(first):]
    if len(first) == 3:
        e("v_min3_u32 %s, %s, %s, %s" % (v(tmin), v(first[0]), v(first[1]), v(first[2])))
        e("v_max3_u32 %s, %s, %s, %s" % (v(tmax), v(first[0]), v(first[1]), v(first[2])))
    else:
        e("v_min_u32 %s, %s, %s" % (v(tmin), v(first[0]), v(first[1])))
        e("v_max_u32 %s, %s, %s" % (v(tmax), v(first[0]), v(first[1])))
    while rest:
        if len(rest) >= 2:
            e("v_min3_u32 %s, %s, %s, %s" % (v(tmin), v(tmin), v(rest[0]), v(rest[1])))
            e("v_max3_u32 %s, %s, %s, %s" % (v(tmax), v(tmax), v(rest[0]), v(rest[1])))
            rest = rest[2:]
        else:
            e("v_min_u32 %s, %s, %s" % (v(tmin), v(tmin), v(rest[0])))
            e("v_max_u32 %s, %s, %s" % (v(tmax), v(tmax), v(rest[0])))
            rest = rest[1:]
    e("v_cmp_ne_u32 vcc, s%d, %s" % (sTAG, v(tmin)))
    e("v_cmp_ne_u32 %s, s%d, %s" % (sp(sT0), sTAG, v(tmax)))
    nop(1)
    e("s_or_b64 vcc, vcc, %s" % sp(sT0))
    e("s_cmp_eq_u64 vcc, 0")
    e("s_cbranch_scc1 POLLX%d" % pid)
    e("s_sub_u32 s%d, s%d, 1" % (sCNT, sCNT))
    e("s_cbranch_scc0 POLL%d" % pid)
    lab("POLLX%d" % pid)

def mask_begin(m):
    e("s_mov_b64 %s, exec" % sp(sEX))
    if m == 0xffffffff:
        e("s_mov_b32 exec_hi, 0")
    else:
        e("s_mov_b64 exec, 0x%x" % m)
def mask_end():
    e("s_mov_b64 exec, %s" % sp(sEX))

def sacc(terms, const):
    first = True
    for reg, sh in terms:
        if first:
            e("s_lshl_b32 s%d, s%d, %d" % (sT0, reg, sh)); first = False
        else:
            e("s_lshl_b32 s%d, s%d, %d" % (sT1, reg, sh))
            e("s_add_u32 s%d, s%d, s%d" % (sT0, sT0, sT1))
    if const:
        e("s_add_u32 s%d, s%d, 0x%x" % (sT0, sT0, const))

def gstore(addr, data):
    e("global_store_dwordx4 %s, %s, %s" % (addr, data, sp(P_WS)))
    e("global_store_dwordx4 %s, %s, %s sc1" % (addr, data, sp(sWS2)))

gst_id = [0]
def fstore(addr, data):
    i = gst_id[0]; gst_id[0] += 1
    e("s_cmp_lg_u32 s%d, 0" % sFAST)
    e("s_cbranch_scc1 GSF%d" % i)
    e("global_store_dwordx4 %s, %s, %s sc1" % (addr, data, sp(P_WS)))
    e("s_branch GSD%d" % i)
    lab("GSF%d" % i)
    e("global_store_dwordx4 %s, %s, %s" % (addr, data, sp(P_WS)))
    lab("GSD%d" % i)

def bcast_sel(reg):
    return (reg & ~1, reg & 1)

def load_mixer_weights(tidreg):
    e("v_lshlrev_b32 v6, 1, %s" % tidreg)
    for k in range(7):
        e("ds_read_u16 %s, v6 offset:%d" % (v(vW1 + k), LW1 + 512 * k))
        e("ds_read_u16 %s, v6 offset:%d" % (v(vB1 + k), LB1 + 512 * k))
        e("ds_read_u16 %s, v6 offset:%d" % (v(vW2 + k), LW2 + 512 * k))
    e("v_mov_b32 %s, 0" % v(vW1 + 7))
    e("v_mov_b32 %s, 0" % v(vB1 + 7))
    e("v_mov_b32 %s, 0" % v(vW2 + 7))
    e("v_mov_b32 %s, s%d" % (v(cC3), sC3))
    e("v_mov_b32 %s, s%d" % (v(cC3 + 1), sC3))
    e("s_waitcnt lgkmcnt(0)")
    for k in range(7):
        for b in (vW1, vB1, vW2):
            e("v_lshlrev_b32 %s, 16, %s" % (v(b + k), v(b + k)))

def mixer(H, hsel, Y):
    a, t, t2 = T + 24, T + 26, T + 28
    for k in range(0, 8, 2):
        e("v_pk_mul_f32 %s, %s, %s op_sel:[0,%d] op_sel_hi:[1,%d]" % (vp(a), vp(vW1 + k), vp(H), hsel, hsel))
        round_bf16_pair(a, a + 1, t2)
        e("v_pk_add_f32 %s, %s, %s" % (vp(a), vp(a), vp(vB1 + k)))
        round_bf16_pair(a, a + 1, t2)
        e("v_pk_mul_f32 %s, %s, %s" % (vp(t), vp(a), vp(a)))
        e("v_pk_fma_f32 %s, %s, %s, %s op_sel_hi:[1,0,1]" % (vp(t), vp(t), sp(sC4), vp(cC3)))
        e("v_pk_mul_f32 %s, %s, %s" % (vp(t), vp(t), vp(a)))
        e("v_exp_f32 %s, %s" % (v(t), v(t)))
        e("v_exp_f32 %s, %s" % (v(t + 1), v(t + 1)))
        nop(1)
        e("v_pk_add_f32 %s, %s, 1.0 op_sel_hi:[1,0]" % (vp(t), vp(t)))
        e("v_rcp_f32 %s, %s" % (v(t), v(t)))
        e("v_rcp_f32 %s, %s" % (v(t + 1), v(t + 1)))
        nop(1)
        e("v_pk_mul_f32 %s, %s, %s" % (vp(a), vp(a), vp(t)))
        round_bf16_pair(a, a + 1, t2)
        if k == 0:
            e("v_pk_mul_f32 %s, %s, %s" % (vp(Y), vp(a), vp(vW2 + k)))
        else:
            e("v_pk_fma_f32 %s, %s, %s, %s" % (vp(Y), vp(a), vp(vW2 + k), vp(Y)))
    e("v_add_f32 %s, %s, %s" % (v(Y), v(Y), v(Y + 1)))
    allreduce("add", [Y], [T + 24])

hdr = open("cdna_kernels/%s.s.ref" % NAME).read().split("\n")
for ln in hdr:
    if ln.startswith("; @launch"):
        L.append("; @launch grid=(256,1,1) block=(512,1,1) lds=%d" % LDS_TOTAL)
        break
    L.append(ln)
L.append('.amdgcn_target "amdgcn-amd-amdhsa--gfx950"')
L.append(".text")
L.append(".globl %s_kernel" % NAME)
L.append(".p2align 8")
L.append(".type %s_kernel,@function" % NAME)
lab("%s_kernel" % NAME)

e("s_cmp_ge_u32 s2, 256")
e("s_cbranch_scc1 END")
e("s_load_dwordx16 s[16:31], s[0:1], 0")
e("s_load_dwordx8 s[32:39], s[0:1], 64")
e("s_load_dwordx2 s[40:41], s[0:1], 96")
e("v_and_b32 %s, 63, v0" % v(vL))
e("v_lshrrev_b32 v2, 6, v0")
e("s_and_b32 s%d, s2, 7" % sG)
e("s_lshr_b32 s%d, s2, 3" % sC)
e("v_readfirstlane_b32 s%d, v2" % sWAVE)
e("v_lshlrev_b32 %s, 4, %s" % (v(aL16), v(vL)))
e("v_lshlrev_b32 %s, 5, %s" % (v(aL32), v(vL)))
e("s_mov_b32 s%d, 0" % sLAY)
e("s_and_b32 s%d, s%d, 7" % (sCB, sC))
e("s_lshr_b32 s%d, s%d, 3" % (sRB, sC))
e("s_mov_b32 s%d, s2" % sPI)
e("s_mov_b32 s%d, %s" % (sC1, fh(LOG2E)))
e("s_mov_b32 s%d, %s" % (sC2, fh(SCALE)))
GC0 = -2.0 * 0.7978845608028654 * LOG2E
GC1 = GC0 * 0.044715
e("s_mov_b32 s%d, %s" % (sC3, fh(GC0)))
e("s_mov_b32 s%d, %s" % (sC4, fh(GC1)))
e("s_waitcnt lgkmcnt(0)")
e("s_cmp_ge_u32 s%d, 4" % sWAVE)
e("s_cbranch_scc1 LOADER")
e("s_load_dword s%d, %s, 0" % (sTAG, sp(P_WS)))

XV = T
XL = T + 8
if TS:
    e("s_memtime s[98:99]" if TS != 9999 else "s_memrealtime s[98:99]")
    e("s_waitcnt lgkmcnt(0)")
    e("s_mov_b32 s%d, s98" % (sTSB + 2 * NTS))
e("s_cmp_lg_u32 s%d, 0" % sWAVE)
e("s_cbranch_scc1 NOX")
e("global_load_dwordx4 %s, %s, %s" % (vr(XL, 4), v(aL16), sp(P_X)))
lab("NOX")
sacc([(sG, 24), (sC, 15), (sWAVE, 13)], W0 * 256)
e("v_and_b32 v3, 15, %s" % v(vL))
e("v_lshrrev_b32 v4, 4, %s" % v(vL))
e("v_lshlrev_b32 v2, 8, v3")
e("v_lshl_add_u32 v2, v4, 4, v2")
e("v_add_u32 v2, s%d, v2" % sT0)
e("v_add_u32 v5, 0x1000, v2")
for Tt in range(2):
    for s in range(4):
        e("global_load_dwordx4 %s, %s, %s offset:%d nt" % (vr(vK + Tt * 16 + s * 4, 4), "v2" if Tt == 0 else "v5", sp(P_K), s * 64))
e("v_mov_b32 v6, 0")
e("global_load_ushort %s, v6, %s" % (v(vB2), sp(P_B2)))
e("s_lshl_b32 s%d, s%d, 2" % (sT0, sPI))
e("v_mov_b32 v6, s%d" % sT0)
e("global_load_dword %s, v6, %s" % (v(vXR), sp(P_X)))

sacc([(sG, 14), (sWAVE, 10)], QS_OFF)
e("v_add_u32 %s, s%d, %s" % (v(aQS), sT0, v(aL16)))
sacc([(sG, 14), (sRB, 12), (sCB, 9), (sWAVE, 7)], QS_OFF)
e("v_add_u32 %s, s%d, %s" % (v(aQW), sT0, v(aL32)))
e("v_lshrrev_b32 v6, 2, v3")
e("v_lshlrev_b32 v6, 8, v6")
e("v_lshl_add_u32 v6, v4, 4, v6")
e("v_add_u32 %s, 0x%x, v6" % (v(aQF), LQ))
sacc([(sG, 17), (sC, 12)], PO_OFF)
e("v_lshlrev_b32 v6, 4, v0")
e("v_add_u32 %s, s%d, v6" % (v(aPOW), sT0))
sacc([(sG, 17), (sC, 12)], OP_OFF)
e("v_add_u32 %s, s%d, v6" % (v(aOPW), sT0))
sacc([(sG, 11), (sC, 6), (sWAVE, 4)], ST_OFF)
e("v_mov_b32 %s, s%d" % (v(aSTW), sT0))
e("s_lshr_b32 s%d, s%d, 3" % (sT2, sC))
sacc([(sG, 11), (sT2, 4)], ST_OFF)
e("v_lshrrev_b32 v6, 1, %s" % v(vL))
e("v_lshlrev_b32 v7, 6, v6")
e("v_add_u32 %s, s%d, v7" % (v(aSTR), sT0))
sacc([(sG, 17), (sC, 7), (sWAVE, 5)], PO_OFF)
e("v_lshlrev_b32 v7, 12, v6")
e("v_and_b32 v6, 1, %s" % v(vL))
e("v_lshl_add_u32 v7, v6, 4, v7")
e("v_add_u32 %s, s%d, v7" % (v(aPOR), sT0))
sacc([(sG, 17), (sC, 7)], OP_OFF)
e("v_lshrrev_b32 v6, 3, %s" % v(vL))
e("v_lshlrev_b32 v7, 12, v6")
e("v_and_b32 v8, 7, %s" % v(vL))
e("v_lshl_add_u32 v7, v8, 4, v7")
e("v_add_u32 %s, s%d, v7" % (v(aOPR), sT0))
sacc([(sC, 10), (sG, 7)], XP_OFF)
e("v_lshlrev_b32 v7, 15, v6")
e("v_lshl_add_u32 v7, v8, 4, v7")
e("v_add_u32 %s, s%d, v7" % (v(aXPW), sT0))
sacc([(sG, 15), (sC, 10)], XP_OFF)
e("v_add_u32 %s, s%d, %s" % (v(aXPR), sT0, v(aL16)))
sacc([(sG, 11), (sC, 6)], X1_OFF)
e("v_lshlrev_b32 v7, 3, v8")
e("v_add_u32 %s, s%d, v7" % (v(aX1W), sT0))
sacc([(sC, 6)], LXR)
e("v_add_u32 %s, s%d, v7" % (v(aXRR), sT0))
sacc([(sG, 11)], X1_OFF)
e("v_add_u32 %s, s%d, %s" % (v(aX1R), sT0, v(aL32)))
sacc([(sPI, 3)], X1_OFF)
e("v_lshlrev_b32 v6, 11, %s" % v(vL))
e("v_add_u32 %s, s%d, v6" % (v(aXW), sT0))
e("v_lshrrev_b32 v6, 2, v3")
e("v_lshl_add_u32 v6, v4, 2, v6")
e("v_lshlrev_b32 v7, 8, v6")
e("v_and_b32 v6, 7, v6")
e("v_lshl_add_u32 v7, v6, 5, v7")
e("v_and_b32 v6, 3, %s" % v(vL))
e("v_lshl_add_u32 v7, v6, 3, v7")
e("s_lshl_b32 s%d, s%d, 13" % (sT0, sWAVE))
e("v_add_u32 %s, s%d, v7" % (v(aVT), sT0))
sacc([(sWAVE, 11)], LSC)
e("v_lshlrev_b32 v6, 2, v3")
e("v_lshl_add_u32 v6, v4, 9, v6")
e("v_add_u32 %s, s%d, v6" % (v(aSCW), sT0))
sacc([(sWAVE, 9)], LSC)
e("v_lshlrev_b32 v6, 3, %s" % v(vL))
e("v_add_u32 %s, s%d, v6" % (v(aSCR), sT0))
e("s_add_u32 s%d, s%d, 0x%x" % (sWS2, P_WS, SDELTA))
e("s_addc_u32 s%d, s%d, 0" % (sWS2 + 1, P_WS + 1))
e("s_waitcnt lgkmcnt(0)")
e("s_add_u32 s%d, s%d, 1" % (sTAG, sTAG))

lab("LAYER")
e("s_lshl_b32 s%d, s%d, 3" % (sLAY2, sLAY))
e("s_cmp_lg_u32 s%d, 0" % sWAVE)
e("s_cbranch_scc1 QW")
e("s_cmp_lg_u32 s%d, 0" % sLAY)
e("s_cbranch_scc1 QPOLL")
e("s_waitcnt vmcnt(10)")
for i in range(4):
    e("v_lshlrev_b32 %s, 16, %s" % (v(XV + 2 * i), v(XL + i)))
    e("v_and_b32 %s, 0xffff0000, %s" % (v(XV + 2 * i + 1), v(XL + i)))
e("s_branch QLN")
lab("QPOLL")
G0 = T + 8
e("v_add_u32 v6, 0x%x, %s" % (X2_OFF - X1_OFF, v(aX1R)))
e("s_sub_u32 s%d, s%d, 1" % (sTAG, sTAG))
poll(["global_load_dwordx4 %s, v6, %s sc1" % (vr(G0, 4), sp(P_WS)),
      "global_load_dwordx4 %s, v6, %s offset:16 sc1" % (vr(G0 + 4, 4), sp(P_WS))],
     [G0 + 1, G0 + 3, G0 + 5, G0 + 7], T + 16, T + 17)
e("s_add_u32 s%d, s%d, 1" % (sTAG, sTAG))
for i in range(4):
    e("v_lshlrev_b32 %s, 16, %s" % (v(XV + 2 * i), v(G0 + 2 * i)))
    e("v_and_b32 %s, 0xffff0000, %s" % (v(XV + 2 * i + 1), v(G0 + 2 * i)))
lab("QLN")
ts()
e("v_add_u32 v6, 0x%x, %s" % (LXR, v(aL32)))
e("ds_write_b128 v6, %s" % vr(XV, 4))
e("ds_write_b128 v6, %s offset:16" % vr(XV + 4, 4))
layernorm(XV, [], T + 16)
e("v_add_u32 v6, 0x%x, %s" % (LH, v(aL32)))
e("ds_write_b128 v6, %s" % vr(XV, 4))
e("ds_write_b128 v6, %s offset:16" % vr(XV + 4, 4))
e("s_waitcnt lgkmcnt(0)")
lab("QW")
sacc([(sRB, 9)], LH)
e("v_lshrrev_b32 v6, 2, %s" % v(vL))
e("v_lshlrev_b32 v6, 5, v6")
e("v_add_u32 v6, s%d, v6" % sT0)
e("s_barrier")
e("ds_read_b128 %s, v6" % vr(XV, 4))
e("ds_read_b128 %s, v6 offset:16" % vr(XV + 4, 4))
lab("QG")
e("s_cmp_lg_u32 s%d, 0" % sLAY)
e("s_cbranch_scc1 QG2")
sacc([(sWAVE, 5)], LWQ)
e("v_lshrrev_b32 v6, 2, %s" % v(vL))
e("v_lshlrev_b32 v6, 10, v6")
e("v_and_b32 v7, 3, %s" % v(vL))
e("v_lshl_add_u32 v6, v7, 3, v6")
e("v_add_u32 v6, s%d, v6" % sT0)
WT = T + 16
for i in range(8):
    e("ds_read_b64 %s, v6 offset:%d" % (vr(WT + 2 * i, 2), 128 * i))
e("s_waitcnt lgkmcnt(0)")
for i in range(16):
    e("v_lshlrev_b32 %s, 16, %s" % (v(vWQF + 2 * i), v(WT + i)))
    e("v_and_b32 %s, 0xffff0000, %s" % (v(vWQF + 2 * i + 1), v(WT + i)))
lab("QG2")
e("s_waitcnt lgkmcnt(0)")
A = T + 32
U = T + 36
for i in range(8):
    hb, hs = bcast_sel(XV + i)
    for hlf in range(2):
        w = vWQF + 4 * i + 2 * hlf
        if i == 0:
            e("v_pk_mul_f32 %s, %s, %s op_sel:[%d,0] op_sel_hi:[%d,1]" % (vp(A + 2 * hlf), vp(hb), vp(w), hs, hs))
        else:
            e("v_pk_fma_f32 %s, %s, %s, %s op_sel:[%d,0,0] op_sel_hi:[%d,1,1]" % (vp(A + 2 * hlf), vp(hb), vp(w), vp(A + 2 * hlf), hs, hs))
allreduce("add", [A, A + 1, A + 2, A + 3], [U, U + 1, U + 2, U + 3], rors=(4, 8))
QP = T + 40
for i in range(4):
    e("v_mov_b32 %s, %s" % (v(QP + 2 * i), v(A + i)))
    e("v_mov_b32 %s, s%d" % (v(QP + 2 * i + 1), sTAG))
mask_begin(15)
e("s_cmp_lg_u32 s%d, 0" % sLAY)
e("s_cbranch_scc1 QST1")
e("global_store_dwordx4 %s, %s, %s" % (v(aQW), vr(QP, 4), sp(P_WS)))
e("global_store_dwordx4 %s, %s, %s offset:16" % (v(aQW), vr(QP + 4, 4), sp(P_WS)))
e("global_store_dwordx4 %s, %s, %s sc1" % (v(aQW), vr(QP, 4), sp(sWS2)))
e("global_store_dwordx4 %s, %s, %s offset:16 sc1" % (v(aQW), vr(QP + 4, 4), sp(sWS2)))
e("s_branch QST2")
lab("QST1")
e("s_cmp_lg_u32 s%d, 0" % sFAST)
e("s_cbranch_scc1 QST3")
e("global_store_dwordx4 %s, %s, %s sc1" % (v(aQW), vr(QP, 4), sp(P_WS)))
e("global_store_dwordx4 %s, %s, %s offset:16 sc1" % (v(aQW), vr(QP + 4, 4), sp(P_WS)))
e("s_branch QST2")
lab("QST3")
e("global_store_dwordx4 %s, %s, %s" % (v(aQW), vr(QP, 4), sp(P_WS)))
e("global_store_dwordx4 %s, %s, %s offset:16" % (v(aQW), vr(QP + 4, 4), sp(P_WS)))
lab("QST2")
mask_end()
ts()
e("s_cmp_lg_u32 s%d, 0" % sLAY)
e("s_cbranch_scc1 NOMW")
load_mixer_weights("v0")
lab("NOMW")
G0 = T
for k in range(1, 4):
    e("v_add_u32 %s, 0x%x, %s" % (v(T + 32 + k), 0x1000 * k, v(aQS)))
loads = []; tags = []
for k in range(4):
    loads.append("global_load_dwordx4 %s, %s, %s sc1" % (vr(G0 + 4 * k, 4), v(aQS) if k == 0 else v(T + 32 + k), sp(sPB)))
    tags += [G0 + 4 * k + 1, G0 + 4 * k + 3]
poll(loads, tags, T + 16, T + 17, dual=True)
ts()
e("v_add_f32 %s, %s, %s" % (v(G0), v(G0), v(G0 + 4)))
e("v_add_f32 %s, %s, %s" % (v(G0 + 2), v(G0 + 2), v(G0 + 6)))
e("v_add_f32 %s, %s, %s" % (v(G0 + 8), v(G0 + 8), v(G0 + 12)))
e("v_add_f32 %s, %s, %s" % (v(G0 + 10), v(G0 + 10), v(G0 + 14)))
e("v_add_f32 %s, %s, %s" % (v(G0), v(G0), v(G0 + 8)))
e("v_add_f32 %s, %s, %s" % (v(G0 + 2), v(G0 + 2), v(G0 + 10)))
e("v_cvt_pk_bf16_f32 %s, %s, %s" % (v(G0), v(G0), v(G0 + 2)))
e("v_lshlrev_b32 v6, 2, v0")
e("v_add_u32 v6, 0x%x, v6" % LQ)
e("ds_write_b32 v6, %s" % v(G0))
e("s_waitcnt lgkmcnt(0)")
lab("SW")
e("s_barrier")
QL = T
for s in range(4):
    e("ds_read_b128 %s, %s offset:%d" % (vr(QL + 4 * s, 4), v(aQF), 64 * s))
e("s_waitcnt vmcnt(0) lgkmcnt(0)")
SC0 = T + 32
for s in range(4):
    for Tt in range(2):
        c = "0" if s == 0 else vr(SC0 + 4 * Tt, 4)
        e("v_mfma_f32_16x16x32_bf16 %s, %s, %s, %s" % (vr(SC0 + 4 * Tt, 4), vr(vK + Tt * 16 + s * 4, 4), vr(QL + 4 * s, 4), c))
nop(8)
tmp = T + 40
for i in range(0, 8, 2):
    round_bf16_pair(SC0 + i, SC0 + i + 1, tmp)
    e("v_pk_mul_f32 %s, %s, %s op_sel_hi:[1,0]" % (vp(SC0 + i), vp(SC0 + i), sp(sC2)))
    round_bf16_pair(SC0 + i, SC0 + i + 1, tmp)
M = T + 41
e("v_max3_f32 %s, %s, %s, %s" % (v(M), v(SC0), v(SC0 + 1), v(SC0 + 2)))
e("v_max3_f32 %s, %s, %s, %s" % (v(M), v(M), v(SC0 + 3), v(SC0 + 4)))
e("v_max3_f32 %s, %s, %s, %s" % (v(M), v(M), v(SC0 + 5), v(SC0 + 6)))
e("v_max_f32 %s, %s, %s" % (v(M), v(M), v(SC0 + 7)))
allreduce("max", [M], [tmp], rors=())
MM = T + 42
e("v_mul_f32 %s, s%d, %s" % (v(MM), sC1, v(M)))
for i in range(8):
    e("v_fma_f32 %s, %s, s%d, -%s" % (v(SC0 + i), v(SC0 + i), sC1, v(MM)))
for i in range(8):
    e("v_exp_f32 %s, %s" % (v(SC0 + i), v(SC0 + i)))
nop(1)
PA = T + 44
for i in range(4):
    e("v_cvt_pk_bf16_f32 %s, %s, %s" % (v(PA + i), v(SC0 + 2 * i), v(SC0 + 2 * i + 1)))
e("s_cmp_lg_u32 s%d, 0" % sLAY)
e("s_cbranch_scc1 SV")
e("s_barrier")
for Td in range(8):
    e("v_xor_b32 v6, 0x%x, %s" % (Td << 5, v(aVT)))
    e("ds_read_b64_tr_b16 %s, v6" % vr(vVF + 4 * Td, 2))
    e("ds_read_b64_tr_b16 %s, v6 offset:4096" % vr(vVF + 4 * Td + 2, 2))
e("s_waitcnt lgkmcnt(0)")
lab("SV")
ts()
D0 = T
for Td in range(8):
    e("v_mfma_f32_16x16x32_bf16 %s, %s, %s, 0" % (vr(D0 + 4 * Td, 4), vr(PA, 4), vr(vVF + 4 * Td, 4)))
LS = T + 43
e("v_pk_add_f32 %s, %s, %s" % (vp(SC0), vp(SC0), vp(SC0 + 2)))
e("v_pk_add_f32 %s, %s, %s" % (vp(SC0 + 4), vp(SC0 + 4), vp(SC0 + 6)))
e("v_pk_add_f32 %s, %s, %s" % (vp(SC0), vp(SC0), vp(SC0 + 4)))
e("v_add_f32 %s, %s, %s" % (v(LS), v(SC0), v(SC0 + 1)))
allreduce("add", [LS], [tmp], rors=())
sacc([(sWAVE, 5)], LSS)
e("v_lshlrev_b32 v6, 1, %s" % v(vL))
e("v_add_u32 v6, s%d, v6" % sT0)
e("v_mov_b32 %s, %s" % (v(T + 40), v(M)))
e("v_mov_b32 %s, %s" % (v(T + 41), v(LS)))
e("s_mov_b64 %s, exec" % sp(sEX))
e("s_mov_b64 exec, 0x1111")
e("ds_write_b64 v6, %s" % vr(T + 40, 2))
e("s_mov_b64 exec, %s" % sp(sEX))
for Td in range(8):
    e("ds_write_b32 %s, %s offset:%d" % (v(aSCW), v(D0 + 4 * Td), Td * 64))
e("s_waitcnt lgkmcnt(0)")
e("s_barrier")
R = T
for w_ in range(4):
    e("ds_read_b64 %s, %s offset:%d" % (vr(R + 2 * w_, 2), v(aSCR), 2048 * w_))
sacc([(sWAVE, 3)], LSS)
e("v_mov_b32 v6, s%d" % sT0)
for w_ in range(4):
    e("ds_read_b64 %s, v6 offset:%d" % (vr(R + 8 + 2 * w_, 2), 32 * w_))
e("v_mov_b32 v7, 0x%x" % LFL)
e("ds_read_b32 v7, v7")
e("s_waitcnt lgkmcnt(0)")
e("v_readfirstlane_b32 s%d, v7" % sFAST)
MC, E0, LC, O0, O1 = T + 16, T + 17, T + 22, T + 24, T + 26
e("v_max3_f32 %s, %s, %s, %s" % (v(MC), v(R + 8), v(R + 10), v(R + 12)))
e("v_max_f32 %s, %s, %s" % (v(MC), v(MC), v(R + 14)))
for w_ in range(4):
    e("v_sub_f32 %s, %s, %s" % (v(E0 + w_), v(R + 8 + 2 * w_), v(MC)))
    e("v_mul_f32 %s, s%d, %s" % (v(E0 + w_), sC1, v(E0 + w_)))
for w_ in range(4):
    e("v_exp_f32 %s, %s" % (v(E0 + w_), v(E0 + w_)))
nop(1)
e("v_mul_f32 %s, %s, %s" % (v(LC), v(E0), v(R + 9)))
e("v_mul_f32 %s, %s, %s" % (v(O0), v(E0), v(R)))
e("v_mul_f32 %s, %s, %s" % (v(O1), v(E0), v(R + 1)))
for w_ in range(1, 4):
    e("v_fmac_f32 %s, %s, %s" % (v(LC), v(E0 + w_), v(R + 9 + 2 * w_)))
    e("v_fmac_f32 %s, %s, %s" % (v(O0), v(E0 + w_), v(R + 2 * w_)))
    e("v_fmac_f32 %s, %s, %s" % (v(O1), v(E0 + w_), v(R + 2 * w_ + 1)))
e("v_mov_b32 %s, s%d" % (v(O0 + 1), sTAG))
e("v_mov_b32 %s, s%d" % (v(O1 + 1), sTAG))
fstore(v(aPOW), vr(O0, 4))
S4 = T + 28
e("v_mov_b32 %s, %s" % (v(S4), v(MC)))
e("v_mov_b32 %s, s%d" % (v(S4 + 1), sTAG))
e("v_mov_b32 %s, %s" % (v(S4 + 2), v(LC)))
e("v_mov_b32 %s, s%d" % (v(S4 + 3), sTAG))
mask_begin(1)
fstore(v(aSTW), vr(S4, 4))
mask_end()
ts()
e("s_cmp_lg_u32 s%d, 0" % sLAY)
e("s_cbranch_scc1 OPH")
e("s_barrier")
sacc([(sWAVE, 12)], LWO)
e("v_add_u32 v6, s%d, %s" % (sT0, v(aL16)))
WT = T + 32
for i in range(4):
    e("ds_read_b128 %s, v6 offset:%d" % (vr(WT + 4 * i, 4), 1024 * i))
e("s_waitcnt lgkmcnt(0)")
for i in range(16):
    e("v_lshlrev_b32 %s, 16, %s" % (v(vWOF + 2 * i), v(WT + i)))
    e("v_and_b32 %s, 0xffff0000, %s" % (v(vWOF + 2 * i + 1), v(WT + i)))
e("v_lshlrev_b32 %s, 16, %s" % (v(vB2), v(vB2)))
e("v_and_b32 %s, 0xffff0000, %s" % (v(vXR + 1), v(vXR)))
e("v_lshlrev_b32 %s, 16, %s" % (v(vXR), v(vXR)))
lab("OPH")
SR, PR = T, T + 4
poll(["global_load_dwordx4 %s, %s, %s sc1" % (vr(SR, 4), v(aSTR), sp(P_WS)),
      "global_load_dwordx4 %s, %s, %s sc1" % (vr(PR, 4), v(aPOR), sp(P_WS))],
     [SR + 1, SR + 3, PR + 1, PR + 3], T + 8, T + 9)
ts()
Mx = T + 8
e("v_mov_b32 %s, %s" % (v(Mx), v(SR)))
allreduce("max", [Mx], [T + 9], rors=(2, 4, 8))
Ee = T + 10
e("v_sub_f32 %s, %s, %s" % (v(Ee), v(SR), v(Mx)))
e("v_mul_f32 %s, s%d, %s" % (v(Ee), sC1, v(Ee)))
e("v_exp_f32 %s, %s" % (v(Ee), v(Ee)))
nop(1)
A0, A1, A2 = T + 12, T + 13, T + 14
e("v_mul_f32 %s, %s, %s" % (v(A0), v(Ee), v(SR + 2)))
e("v_mul_f32 %s, %s, %s" % (v(A1), v(Ee), v(PR)))
e("v_mul_f32 %s, %s, %s" % (v(A2), v(Ee), v(PR + 2)))
allreduce("add", [A0, A1, A2], [T + 16, T + 17, T + 18], rors=(2, 4, 8))
e("v_rcp_f32 %s, %s" % (v(A0), v(A0)))
nop(1)
e("v_mul_f32 %s, %s, %s" % (v(A1), v(A1), v(A0)))
e("v_mul_f32 %s, %s, %s" % (v(A2), v(A2), v(A0)))
round_bf16_pair(A1, A2, T + 16)
OO = T + 20
nop(2)
e("v_mov_b32_dpp %s, %s quad_perm:[0,0,2,2] %s" % (v(OO), v(A1), DPPM))
e("v_mov_b32_dpp %s, %s quad_perm:[0,0,2,2] %s" % (v(OO + 1), v(A2), DPPM))
e("v_mov_b32_dpp %s, %s quad_perm:[1,1,3,3] %s" % (v(OO + 2), v(A1), DPPM))
e("v_mov_b32_dpp %s, %s quad_perm:[1,1,3,3] %s" % (v(OO + 3), v(A2), DPPM))
AC = T + 24
for i in range(4):
    ob, os_ = bcast_sel(OO + i)
    for k in range(4):
        w = vWOF + 8 * i + 2 * k
        if i == 0:
            e("v_pk_mul_f32 %s, %s, %s op_sel:[%d,0] op_sel_hi:[%d,1]" % (vp(AC + 2 * k), vp(ob), vp(w), os_, os_))
        else:
            e("v_pk_fma_f32 %s, %s, %s, %s op_sel:[%d,0,0] op_sel_hi:[%d,1,1]" % (vp(AC + 2 * k), vp(ob), vp(w), vp(AC + 2 * k), os_, os_))
sacc([(sWAVE, 11)], LOC)
e("v_add_u32 v6, s%d, %s" % (sT0, v(aL32)))
e("ds_write_b128 v6, %s" % vr(AC, 4))
e("ds_write_b128 v6, %s offset:16" % vr(AC + 4, 4))
e("v_lshlrev_b32 v6, 3, v0")
e("v_add_u32 v6, 0x%x, v6" % LOC)
e("s_waitcnt lgkmcnt(0)")
e("s_barrier")
R = T
for w_ in range(4):
    e("ds_read_b64 %s, v6 offset:%d" % (vr(R + 2 * w_, 2), 2048 * w_))
e("s_waitcnt lgkmcnt(0)")
O4 = T + 8
e("v_pk_add_f32 %s, %s, %s" % (vp(R), vp(R), vp(R + 2)))
e("v_pk_add_f32 %s, %s, %s" % (vp(R + 4), vp(R + 4), vp(R + 6)))
e("v_add_f32 %s, %s, %s" % (v(O4), v(R), v(R + 4)))
e("v_add_f32 %s, %s, %s" % (v(O4 + 2), v(R + 1), v(R + 5)))
e("v_mov_b32 %s, s%d" % (v(O4 + 1), sTAG))
e("v_mov_b32 %s, s%d" % (v(O4 + 3), sTAG))
fstore(v(aOPW), vr(O4, 4))
ts()
e("s_cmp_lg_u32 s%d, 0" % sWAVE)
e("s_cbranch_scc1 MW")
XR = T + 16
AD = T + 40
for k in range(1, 4):
    e("v_add_u32 %s, 0x%x, %s" % (v(AD + k), 0x8000 * k, v(aOPR)))
e("ds_read_b64 %s, %s" % (vr(T + 44, 2), v(aXRR)))
loads = []; tags = []
for k in range(4):
    loads.append("global_load_dwordx4 %s, %s, %s sc1" % (vr(XR + 4 * k, 4), v(aOPR) if k == 0 else v(AD + k), sp(P_WS)))
    tags += [XR + 4 * k + 1, XR + 4 * k + 3]
poll(loads, tags, T + 32, T + 33)
ts()
Y0, Y1 = T + 32, T + 34
e("v_add_f32 %s, %s, %s" % (v(Y0), v(XR), v(XR + 4)))
e("v_add_f32 %s, %s, %s" % (v(Y1), v(XR + 2), v(XR + 6)))
e("v_add_f32 %s, %s, %s" % (v(XR + 8), v(XR + 8), v(XR + 12)))
e("v_add_f32 %s, %s, %s" % (v(XR + 10), v(XR + 10), v(XR + 14)))
e("v_add_f32 %s, %s, %s" % (v(Y0), v(Y0), v(XR + 8)))
e("v_add_f32 %s, %s, %s" % (v(Y1), v(Y1), v(XR + 10)))
allreduce("add", [Y0, Y1], [T + 36, T + 37], rors=(8,))
e("v_mov_b32 %s, s%d" % (v(Y0 + 1), sTAG))
e("v_mov_b32 %s, s%d" % (v(Y1 + 1), sTAG))
e("global_store_dwordx4 %s, %s, %s sc1" % (v(aXPW), vr(Y0, 4), sp(P_WS)))
poll(["global_load_dwordx4 %s, %s, %s sc1" % (vr(XR, 4), v(aXPR), sp(P_WS))], [XR + 1, XR + 3], T + 36, T + 37)
Z0, Z1 = T + 36, T + 37
e("v_mov_b32 %s, %s" % (v(Z0), v(XR)))
e("v_mov_b32 %s, %s" % (v(Z1), v(XR + 2)))
allreduce("add", [Z0, Z1], [T + 38, T + 39], rors=(8,))
round_bf16_pair(Z0, Z1, T + 38)
e("s_waitcnt lgkmcnt(0)")
e("v_pk_add_f32 %s, %s, %s" % (vp(Z0), vp(Z0), vp(T + 44)))
e("v_cvt_pk_bf16_f32 %s, %s, %s" % (v(T + 40), v(Z0), v(Z1)))
e("v_mov_b32 %s, s%d" % (v(T + 41), sTAG))
mask_begin(255)
e("s_cmp_lg_u32 s%d, 0" % sFAST)
e("s_cbranch_scc1 X1F")
e("global_store_dwordx2 %s, %s, %s sc1" % (v(aX1W), vr(T + 40, 2), sp(P_WS)))
e("s_branch X1D")
lab("X1F")
e("global_store_dwordx2 %s, %s, %s" % (v(aX1W), vr(T + 40, 2), sp(P_WS)))
lab("X1D")
mask_end()
e("v_readlane_b32 s%d, %s, s%d" % (sT2, v(T + 40), sG))
nop(2)
e("s_lshl_b32 s%d, s%d, 16" % (sT3, sT2))
e("s_and_b32 s%d, s%d, 0xffff0000" % (sT2, sT2))
e("v_mov_b32 %s, s%d" % (v(vXR), sT3))
e("v_mov_b32 %s, s%d" % (v(vXR + 1), sT2))
ts()
G0 = T + 8
poll(["global_load_dwordx4 %s, %s, %s sc1" % (vr(G0, 4), v(aX1R), sp(P_WS)),
      "global_load_dwordx4 %s, %s, %s offset:16 sc1" % (vr(G0 + 4, 4), v(aX1R), sp(P_WS))],
     [G0 + 1, G0 + 3, G0 + 5, G0 + 7], T + 18, T + 19)
ts()
for i in range(4):
    e("v_lshlrev_b32 %s, 16, %s" % (v(XV + 2 * i), v(G0 + 2 * i)))
    e("v_and_b32 %s, 0xffff0000, %s" % (v(XV + 2 * i + 1), v(G0 + 2 * i)))
H0 = T + 18
e("v_mov_b32 %s, %s" % (v(H0), v(vXR)))
e("v_mov_b32 %s, %s" % (v(H0 + 1), v(vXR + 1)))
layernorm(XV, [H0], T + 24)
layernorm(XV, [H0], T + 24, only_extra=True)
e("v_mov_b32 v6, 0x%x" % LHB)
mask_begin(1)
e("ds_write_b64 v6, %s" % vr(H0, 2))
mask_end()
e("s_waitcnt lgkmcnt(0)")
e("s_barrier")
e("s_branch MG")
lab("MW")
e("v_mov_b32 v6, 0x%x" % LHB)
e("s_barrier")
e("ds_read_b64 %s, v6" % vr(H0, 2))
e("s_waitcnt lgkmcnt(0)")
lab("MG")
ts()
Ya = T + 22
mixer(H0, 0, Ya)
sacc([(sWAVE, 2)], LMC)
e("v_mov_b32 v6, s%d" % sT0)
mask_begin(1)
e("ds_write_b32 v6, %s" % v(Ya))
mask_end()
e("s_waitcnt lgkmcnt(0)")
e("s_barrier")
e("s_cmp_lg_u32 s%d, 0" % sWAVE)
e("s_cbranch_scc1 MSKIP")
e("v_mov_b32 v6, 0x%x" % LMC)
e("ds_read_b128 %s, v6" % vr(T + 24, 4))
e("ds_read_b128 %s, v6 offset:16" % vr(T + 28, 4))
e("s_waitcnt lgkmcnt(0)")
Yb = Ya + 1
e("v_pk_add_f32 %s, %s, %s" % (vp(T + 24), vp(T + 24), vp(T + 26)))
e("v_pk_add_f32 %s, %s, %s" % (vp(T + 28), vp(T + 28), vp(T + 30)))
e("v_add_f32 %s, %s, %s" % (v(Ya), v(T + 24), v(T + 25)))
e("v_add_f32 %s, %s, %s" % (v(Yb), v(T + 28), v(T + 29)))
round_bf16_pair(Ya, Yb, T + 24)
e("v_add_f32 %s, %s, %s" % (v(Ya), v(Ya), v(vB2)))
e("v_add_f32 %s, %s, %s" % (v(Yb), v(Yb), v(vB2)))
round_bf16_pair(Ya, Yb, T + 24)
e("v_pk_add_f32 %s, %s, %s" % (vp(Ya), vp(Ya), vp(vXR)))
e("v_cvt_pk_bf16_f32 %s, %s, %s" % (v(T + 26), v(Ya), v(Yb)))
e("v_mov_b32 %s, s%d" % (v(T + 27), sTAG))
e("s_cmp_lg_u32 s%d, 0" % sLAY)
e("s_cbranch_scc1 FINAL")
e("v_add_u32 v6, 0x%x, %s" % (X2_OFF - X1_OFF, v(aXW)))
mask_begin(255)
e("global_store_dwordx2 v6, %s, %s sc1" % (vr(T + 26, 2), sp(P_WS)))
mask_end()
e("v_lshlrev_b32 %s, 16, %s" % (v(vXR), v(T + 26)))
e("v_and_b32 %s, 0xffff0000, %s" % (v(vXR + 1), v(T + 26)))
e("s_branch MDONE")
lab("FINAL")
e("s_lshl_b32 s%d, s%d, 2" % (sT0, sPI))
e("v_mov_b32 v6, s%d" % sT0)
mask_begin(1)
e("global_store_dword v6, %s, %s" % (v(T + 26), sp(P_OUT)))
e("s_cmp_lg_u32 s2, 0")
e("s_cbranch_scc1 NOEP")
e("v_mov_b32 v6, 0")
e("global_store_dword v6, %s, %s" % (v(T + 27), sp(P_WS)))
lab("NOEP")
mask_end()
lab("MDONE")
ts()
lab("MSKIP")
e("s_add_u32 s%d, s%d, 1" % (sTAG, sTAG))
e("s_add_u32 s%d, s%d, 1" % (sLAY, sLAY))
e("s_cmp_lt_u32 s%d, 2" % sLAY)
e("s_cbranch_scc1 LAYER")

assert ts_count[0] <= NTS, ts_count[0]
if TS == 9999:
    e("s_cmp_lg_u32 s%d, 0" % sWAVE)
    e("s_cbranch_scc1 END")
    mask_begin(1)
    e("s_lshl_b32 s%d, s2, 7" % sT0)
    e("s_add_u32 s%d, s%d, 0x2000000" % (sT0, sT0))
    e("v_mov_b32 v6, s%d" % sT0)
    e("v_mov_b32 v7, s%d" % (sTSB + 2 * NTS))
    e("global_store_dword v6, v7, %s" % sp(P_WS))
    idx = 1
    for lay in range(2):
        for i in range(ts_count[0]):
            e("v_mov_b32 v7, s%d" % (sTSB + lay * NTS + i))
            e("global_store_dword v6, v7, %s offset:%d" % (sp(P_WS), 4 * idx))
            idx += 1
    mask_end()
e("s_branch END")

lab("LOADER")
e("s_sub_u32 s%d, s%d, 4" % (sWAVE, sWAVE))
e("s_load_dword s%d, %s, 0" % (sTAG, sp(P_WS)))
e("s_getreg_b32 s%d, hwreg(HW_REG_XCC_ID)" % sPIV)
e("s_cmp_lg_u32 s%d, 3" % sWAVE)
e("s_cbranch_scc1 NOID")
sacc([(sG, 8), (sC, 3)], XID_OFF)
e("v_mov_b32 v6, s%d" % sT0)
e("v_mov_b32 %s, s%d" % (v(T), sPIV))
e("s_waitcnt lgkmcnt(0)")
e("s_add_u32 s%d, s%d, 1" % (sT0, sTAG))
e("v_mov_b32 %s, s%d" % (v(T + 1), sT0))
mask_begin(1)
e("global_store_dwordx2 v6, %s, %s sc1" % (vr(T, 2), sp(P_WS)))
mask_end()
lab("NOID")
e("s_lshl_b32 s%d, s%d, 10" % (sT1, sWAVE))
e("v_add_u32 v6, s%d, %s" % (sT1, v(aL16)))
e("s_mov_b64 %s, exec" % sp(sEX))
e("s_cmp_lg_u32 s%d, 3" % sWAVE)
e("s_cbranch_scc1 LD_FULL")
e("s_mov_b32 exec_hi, 0")
lab("LD_FULL")
for base, ptr in ((LW1, P_W1), (LB1, P_B1), (LW2, P_W2)):
    e("s_add_u32 s%d, s%d, 0x%x" % (sT3, sT1, base))
    e("s_mov_b32 m0, s%d" % sT3)
    nop(1)
    e("global_load_lds_dwordx4 v6, %s" % sp(ptr))
e("s_mov_b64 exec, %s" % sp(sEX))
e("v_lshrrev_b32 v3, 3, %s" % v(vL))
e("v_lshlrev_b32 v3, 13, v3")
e("v_and_b32 v4, 7, %s" % v(vL))
e("v_lshl_add_u32 v3, v4, 4, v3")
sacc([(sRB, 20), (sWAVE, 18), (sG, 10), (sCB, 7)], 0)
e("v_add_u32 v3, s%d, v3" % sT0)
e("s_lshl_b32 s%d, s%d, 12" % (sT2, sWAVE))
for i in range(4):
    e("s_add_u32 s%d, s%d, 0x%x" % (sT3, sT2, LWQ + 1024 * i))
    e("s_mov_b32 m0, s%d" % sT3)
    nop(1)
    e("global_load_lds_dwordx4 v3, %s nt" % sp(P_WQ))
    e("v_add_u32 v3, 0x10000, v3")
e("v_and_b32 v3, 15, %s" % v(vL))
e("v_lshrrev_b32 v4, 4, %s" % v(vL))
e("v_lshrrev_b32 v5, 1, v3")
e("v_xor_b32 v6, v5, v4")
e("v_xor_b32 v7, 4, v6")
e("v_and_b32 v5, 1, v3")
e("v_lshl_add_u32 v6, v6, 1, v5")
e("v_lshl_add_u32 v7, v7, 1, v5")
e("v_lshlrev_b32 v6, 4, v6")
e("v_lshlrev_b32 v7, 4, v7")
e("v_lshl_add_u32 v6, v4, 8, v6")
e("v_lshl_add_u32 v7, v4, 8, v7")
sacc([(sG, 24), (sC, 15), (sWAVE, 13)], W0 * 256)
e("v_add_u32 v6, s%d, v6" % sT0)
e("v_add_u32 v7, s%d, v7" % sT0)
e("v_add_u32 v7, 0x400, v7")
e("s_lshl_b32 s%d, s%d, 13" % (sT2, sWAVE))
e("s_waitcnt vmcnt(4)")
for i in range(8):
    e("s_add_u32 s%d, s%d, 0x%x" % (sT3, sT2, LV + 1024 * i))
    e("s_mov_b32 m0, s%d" % sT3)
    nop(1)
    e("global_load_lds_dwordx4 %s, %s nt" % ("v6" if i % 2 == 0 else "v7", sp(P_V)))
    if i % 2 == 0:
        e("v_add_u32 v6, 0x800, v6")
    else:
        e("v_add_u32 v7, 0x800, v7")
sacc([(sG, 8)], XID_OFF)
e("v_and_b32 v9, 31, %s" % v(vL))
e("v_lshlrev_b32 v9, 3, v9")
e("v_add_u32 v9, s%d, v9" % sT0)
e("global_load_dwordx2 %s, v9, %s sc1" % (vr(T + 4, 2), sp(P_WS)))
e("s_waitcnt vmcnt(9) lgkmcnt(0)")
e("s_add_u32 s%d, s%d, 1" % (sTAG, sTAG))
e("s_barrier")
e("s_barrier")
e("s_waitcnt vmcnt(0)")
sacc([(sG, 19), (sC, 14), (sWAVE, 12)], 0)
e("v_add_u32 v6, s%d, %s" % (sT0, v(aL16)))
e("s_lshl_b32 s%d, s%d, 12" % (sT1, sWAVE))
for i in range(4):
    e("s_add_u32 s%d, s%d, 0x%x" % (sT3, sT1, LWO + 1024 * i))
    e("s_mov_b32 m0, s%d" % sT3)
    nop(1)
    e("global_load_lds_dwordx4 v6, %s nt" % sp(P_WO))
    e("v_add_u32 v6, 0x400, v6")
e("s_cmp_lg_u32 s%d, 3" % sWAVE)
e("s_cbranch_scc1 NOID2")
e("s_mov_b32 s%d, 0x100000" % sCNT)
lab("IDP")
e("v_cmp_ne_u32 vcc, s%d, %s" % (sTAG, v(T + 5)))
nop(1)
e("s_cmp_eq_u64 vcc, 0")
e("s_cbranch_scc1 IDD")
e("global_load_dwordx2 %s, v9, %s sc1" % (vr(T + 4, 2), sp(P_WS)))
e("s_waitcnt vmcnt(0)")
e("s_sub_u32 s%d, s%d, 1" % (sCNT, sCNT))
e("s_cbranch_scc0 IDP")
lab("IDD")
e("v_cmp_ne_u32 vcc, s%d, %s" % (sPIV, v(T + 4)))
nop(1)
e("s_cmp_eq_u64 vcc, 0")
e("s_cselect_b32 s%d, 1, 0" % sT3)
e("v_mov_b32 v7, s%d" % sT3)
e("v_mov_b32 v6, 0x%x" % LFL)
e("ds_write_b32 v6, v7")
e("s_waitcnt lgkmcnt(0)")
lab("NOID2")
e("s_barrier")
e("s_barrier")
e("s_waitcnt vmcnt(0)")
e("s_barrier")
e("v_and_b32 v8, 255, v0")
load_mixer_weights("v8")
lab("HLOOP")
e("s_barrier")
e("v_mov_b32 v6, 0x%x" % LHB)
e("s_barrier")
e("ds_read_b64 %s, v6" % vr(H0, 2))
e("s_waitcnt lgkmcnt(0)")
mixer(H0, 1, Ya)
sacc([(sWAVE, 2)], LMC + 16)
e("v_mov_b32 v6, s%d" % sT0)
mask_begin(1)
e("ds_write_b32 v6, %s" % v(Ya))
mask_end()
e("s_waitcnt lgkmcnt(0)")
e("s_barrier")
e("s_cmp_lg_u32 s%d, 0" % sLAY)
e("s_cbranch_scc1 END")
e("s_mov_b32 s%d, 1" % sLAY)
e("s_barrier")
e("s_barrier")
e("s_barrier")
e("s_branch HLOOP")
lab("END")
e("s_endpgm")

L.append('.section .rodata,"a"')
L.append(".p2align 6")
L.append(".amdhsa_kernel %s_kernel" % NAME)
L.append("  .amdhsa_next_free_vgpr 256")
L.append("  .amdhsa_next_free_sgpr 102")
L.append("  .amdhsa_accum_offset 256")
L.append("  .amdhsa_group_segment_fixed_size 0")
L.append("  .amdhsa_kernarg_size 104")
L.append("  .amdhsa_user_sgpr_count 2")
L.append("  .amdhsa_user_sgpr_kernarg_segment_ptr 1")
L.append("  .amdhsa_system_sgpr_workgroup_id_x 1")
L.append("  .amdhsa_float_denorm_mode_32 3")
L.append(".end_amdhsa_kernel")
open(OUT, "w").write("\n".join(L) + "\n")
print("wrote", OUT, "lines", len(L), "ts", ts_count[0])
```

```python
import sys, struct

NAME = "interleave_layers__sliding_block_cached__mixer_token_mlp__decode"
TS = int(sys.argv[2]) if len(sys.argv) > 2 else 0
OUT = sys.argv[1] if len(sys.argv) > 1 else "cdna_kernels/%s.s" % NAME

L = []
def e(s): L.append("  " + s)
def lab(s): L.append(s + ":")
def nop(n):
    while n > 0:
        k = min(n, 16)
        e("s_nop %d" % (k - 1))
        n -= k
def f2u(x): return struct.unpack("<I", struct.pack("<f", x))[0]
def fh(x): return "0x%08x" % f2u(x)

QS_OFF = 0x40000
ST_OFF = 0x8000
XID_OFF = 0xc000
X1_OFF = 0x10000
X2_OFF = 0x20000
PO_OFF = 0x100000
OP_OFF = 0x200000
XP_OFF = 0x300000
LV = 0
LWO = 32768
LW1 = 49152
LB1 = LW1 + 3584
LW2 = LB1 + 3584
LSS = 59904
LMC = 60160
LHB = 60288
LFL = 60352
LQ = 60416
LH = 61440
LSC = 63488
LOC = LSC + 8192
LWQ = LOC + 8192
LXR = LWQ + 16384
LDS_TOTAL = LXR + 2048

W0 = 65536 - 4096
NPF = 11
LOG2E = 1.4426950408889634
SCALE = 128.0 ** -0.5

sWAVE = 4; sG = 5; sC = 6; sTAG = 7
sT0, sT1, sT2, sT3 = 8, 9, 10, 11
sCNT = 12
sEX = 14
P_X, P_K, P_V, P_WQ, P_WO, P_BX, P_W1, P_B1, P_W2, P_B2, P_OUT, P_DBG, P_WS = [16 + 2 * i for i in range(13)]
sLAY = 42; sPI = 43; sCB = 95; sRB = 88
sC1 = 44; sC2 = 46; sC3 = 48; sC4 = 50
sFAST = 13; sLAY2 = 94; sPIV = 52; sNPIV = 54; sWS2 = 90; sPB = 92
SDELTA = 0x400000
sTSB = 56
def sp(i): return "s[%d:%d]" % (i, i + 1)

vL = 1
vWQF = 16; vK = 48; vVF = 80; vWOF = 112
vW1 = 144; vB1 = 152; vW2 = 160; vB2 = 168
vXR = 170
aQS = 172; aPOW = 173; aSTW = 174; aSTR = 175; aPOR = 176; aOPW = 177; aOPR = 178
aX1R = 179; aXW = 180; aQW = 181; aVT = 182; aSCW = 183; aSCR = 184; aL16 = 185
aQF = 186; aL32 = 187
cC3 = 188
aXPW = 190; aXPR = 191; aX1W = 240; aXRR = 241
T = 192
def v(i): return "v%d" % i
def vr(i, n): return "v[%d:%d]" % (i, i + n - 1)
def vp(i): return vr(i, 2)

NTS = 13
ts_count = [0]
def ts():
    if not TS: return
    i = ts_count[0]; ts_count[0] += 1
    e("s_memtime s[98:99]" if TS != 9999 else "s_memrealtime s[98:99]")
    e("s_waitcnt lgkmcnt(0)")
    e("s_cmp_eq_u32 s%d, 0" % sLAY)
    e("s_cselect_b32 s%d, s98, s%d" % (sTSB + i, sTSB + i))
    e("s_cselect_b32 s%d, s%d, s98" % (sTSB + NTS + i, sTSB + NTS + i))

DPPM = "row_mask:0xf bank_mask:0xf"

def allreduce(op, regs, tmps, rors=(1, 2, 4, 8)):
    ins = "v_add_f32" if op == "add" else "v_max_f32"
    n = len(regs)
    pad = max(0, 2 - (n - 1))
    nop(2)
    for r in rors:
        for x in regs:
            e("%s_dpp %s, %s, %s row_ror:%d %s" % (ins, v(x), v(x), v(x), r, DPPM))
        nop(pad)
    for sw in ("v_permlane16_swap_b32", "v_permlane32_swap_b32"):
        for x, t in zip(regs, tmps):
            e("v_mov_b32 %s, %s" % (v(t), v(x)))
        nop(pad)
        for x, t in zip(regs, tmps):
            e("%s %s, %s" % (sw, v(x), v(t)))
        nop(1)
        for x, t in zip(regs, tmps):
            e("%s %s, %s, %s" % (ins, v(x), v(x), v(t)))
        nop(pad)

def round_bf16_pair(a, b, tmp):
    e("v_cvt_pk_bf16_f32 %s, %s, %s" % (v(tmp), v(a), v(b)))
    e("v_lshlrev_b32 %s, 16, %s" % (v(a), v(tmp)))
    e("v_and_b32 %s, 0xffff0000, %s" % (v(b), v(tmp)))

def layernorm(X, extra, tb, only_extra=False):
    s2, q2, d2, m, r, t, t2 = tb, tb + 2, tb + 4, tb + 6, tb + 8, tb + 7, tb + 9
    nop(1)
    e("v_readfirstlane_b32 s%d, %s" % (sPIV, v(X)))
    nop(1)
    e("s_xor_b32 s%d, s%d, 0x80000000" % (sNPIV, sPIV))
    nop(1)
    e("v_pk_add_f32 %s, %s, %s op_sel_hi:[1,0]" % (vp(s2), vp(X), sp(sNPIV)))
    e("v_pk_mul_f32 %s, %s, %s" % (vp(q2), vp(s2), vp(s2)))
    for i in range(2, 8, 2):
        e("v_pk_add_f32 %s, %s, %s op_sel_hi:[1,0]" % (vp(d2), vp(X + i), sp(sNPIV)))
        e("v_pk_add_f32 %s, %s, %s" % (vp(s2), vp(s2), vp(d2)))
        e("v_pk_fma_f32 %s, %s, %s, %s" % (vp(q2), vp(d2), vp(d2), vp(q2)))
    s, q = s2, q2
    e("v_add_f32 %s, %s, %s" % (v(s), v(s2), v(s2 + 1)))
    e("v_add_f32 %s, %s, %s" % (v(q), v(q2), v(q2 + 1)))
    allreduce("add", [s, q], [t, t2])
    e("v_mul_f32 %s, %s, %s" % (v(s), fh(1.0 / 512), v(s)))
    e("v_mul_f32 %s, %s, %s" % (v(q), fh(1.0 / 512), v(q)))
    e("v_fma_f32 %s, -%s, %s, %s" % (v(q), v(s), v(s), v(q)))
    e("v_max_f32 %s, 0, %s" % (v(q), v(q)))
    e("v_add_f32 %s, s%d, %s" % (v(m), sPIV, v(s)))
    round_bf16_pair(m, q, t)
    e("v_add_f32 %s, %s, %s" % (v(q), fh(1e-5), v(q)))
    e("v_cvt_pk_bf16_f32 %s, %s, %s" % (v(t), v(q), v(q)))
    e("v_lshlrev_b32 %s, 16, %s" % (v(q), v(t)))
    e("v_sqrt_f32 %s, %s" % (v(q), v(q)))
    e("v_xor_b32 %s, 0x80000000, %s" % (v(m), v(m)))
    e("v_cvt_pk_bf16_f32 %s, %s, %s" % (v(t), v(q), v(q)))
    e("v_lshlrev_b32 %s, 16, %s" % (v(q), v(t)))
    e("v_rcp_f32 %s, %s" % (v(r), v(q)))
    regs = ([] if only_extra else [X + i for i in range(0, 8, 2)]) + list(extra)
    for a in regs:
        e("v_pk_add_f32 %s, %s, %s op_sel_hi:[1,0]" % (vp(a), vp(a), vp(m)))
        round_bf16_pair(a, a + 1, t)
        e("v_pk_mul_f32 %s, %s, %s op_sel_hi:[1,0]" % (vp(a), vp(a), vp(r)))
        round_bf16_pair(a, a + 1, t)

poll_id = [0]
def poll(loads, tags, tmin, tmax, dual=False):
    pid = poll_id[0]; poll_id[0] += 1
    e("s_mov_b32 s%d, 0x100000" % sCNT)
    lab("POLL%d" % pid)
    if dual:
        e("s_and_b32 s%d, s%d, 7" % (sT0, sCNT))
        e("s_or_b32 s%d, s%d, s%d" % (sT0, sT0, sLAY2))
        e("s_cmp_eq_u32 s%d, 1" % sT0)
        e("s_cselect_b64 %s, %s, %s" % (sp(sPB), sp(sWS2), sp(P_WS)))
    for ld in loads:
        e(ld)
    e("s_waitcnt vmcnt(0)")
    tg = list(tags)
    first = tg[:3] if len(tg) >= 3 else tg[:2]
    rest = tg[len(first):]
    if len(first) == 3:
        e("v_min3_u32 %s, %s, %s, %s" % (v(tmin), v(first[0]), v(first[1]), v(first[2])))
        e("v_max3_u32 %s, %s, %s, %s" % (v(tmax), v(first[0]), v(first[1]), v(first[2])))
    else:
        e("v_min_u32 %s, %s, %s" % (v(tmin), v(first[0]), v(first[1])))
        e("v_max_u32 %s, %s, %s" % (v(tmax), v(first[0]), v(first[1])))
    while rest:
        if len(rest) >= 2:
            e("v_min3_u32 %s, %s, %s, %s" % (v(tmin), v(tmin), v(rest[0]), v(rest[1])))
            e("v_max3_u32 %s, %s, %s, %s" % (v(tmax), v(tmax), v(rest[0]), v(rest[1])))
            rest = rest[2:]
        else:
            e("v_min_u32 %s, %s, %s" % (v(tmin), v(tmin), v(rest[0])))
            e("v_max_u32 %s, %s, %s" % (v(tmax), v(tmax), v(rest[0])))
            rest = rest[1:]
    e("v_cmp_ne_u32 vcc, s%d, %s" % (sTAG, v(tmin)))
    e("v_cmp_ne_u32 %s, s%d, %s" % (sp(sT0), sTAG, v(tmax)))
    nop(1)
    e("s_or_b64 vcc, vcc, %s" % sp(sT0))
    e("s_cmp_eq_u64 vcc, 0")
    e("s_cbranch_scc1 POLLX%d" % pid)
    e("s_sub_u32 s%d, s%d, 1" % (sCNT, sCNT))
    e("s_cbranch_scc0 POLL%d" % pid)
    lab("POLLX%d" % pid)

def mask_begin(m):
    e("s_mov_b64 %s, exec" % sp(sEX))
    if m == 0xffffffff:
        e("s_mov_b32 exec_hi, 0")
    else:
        e("s_mov_b64 exec, 0x%x" % m)
def mask_end():
    e("s_mov_b64 exec, %s" % sp(sEX))

def sacc(terms, const):
    first = True
    for reg, sh in terms:
        if first:
            e("s_lshl_b32 s%d, s%d, %d" % (sT0, reg, sh)); first = False
        else:
            e("s_lshl_b32 s%d, s%d, %d" % (sT1, reg, sh))
            e("s_add_u32 s%d, s%d, s%d" % (sT0, sT0, sT1))
    if const:
        e("s_add_u32 s%d, s%d, 0x%x" % (sT0, sT0, const))

def gstore(addr, data):
    e("global_store_dwordx4 %s, %s, %s" % (addr, data, sp(P_WS)))
    e("global_store_dwordx4 %s, %s, %s sc1" % (addr, data, sp(sWS2)))

gst_id = [0]
def fstore(addr, data):
    i = gst_id[0]; gst_id[0] += 1
    e("s_cmp_lg_u32 s%d, 0" % sFAST)
    e("s_cbranch_scc1 GSF%d" % i)
    e("global_store_dwordx4 %s, %s, %s sc1" % (addr, data, sp(P_WS)))
    e("s_branch GSD%d" % i)
    lab("GSF%d" % i)
    e("global_store_dwordx4 %s, %s, %s" % (addr, data, sp(P_WS)))
    lab("GSD%d" % i)

def bcast_sel(reg):
    return (reg & ~1, reg & 1)

def load_mixer_weights(tidreg):
    e("v_lshlrev_b32 v6, 1, %s" % tidreg)
    for k in range(7):
        e("ds_read_u16 %s, v6 offset:%d" % (v(vW1 + k), LW1 + 512 * k))
        e("ds_read_u16 %s, v6 offset:%d" % (v(vB1 + k), LB1 + 512 * k))
        e("ds_read_u16 %s, v6 offset:%d" % (v(vW2 + k), LW2 + 512 * k))
    e("v_mov_b32 %s, 0" % v(vW1 + 7))
    e("v_mov_b32 %s, 0" % v(vB1 + 7))
    e("v_mov_b32 %s, 0" % v(vW2 + 7))
    e("v_mov_b32 %s, s%d" % (v(cC3), sC3))
    e("v_mov_b32 %s, s%d" % (v(cC3 + 1), sC3))
    e("s_waitcnt lgkmcnt(0)")
    for k in range(7):
        for b in (vW1, vB1, vW2):
            e("v_lshlrev_b32 %s, 16, %s" % (v(b + k), v(b + k)))

def mixer(H, hsel, Y):
    a, t, t2 = T + 24, T + 26, T + 28
    for k in range(0, 8, 2):
        e("v_pk_mul_f32 %s, %s, %s op_sel:[0,%d] op_sel_hi:[1,%d]" % (vp(a), vp(vW1 + k), vp(H), hsel, hsel))
        round_bf16_pair(a, a + 1, t2)
        e("v_pk_add_f32 %s, %s, %s" % (vp(a), vp(a), vp(vB1 + k)))
        round_bf16_pair(a, a + 1, t2)
        e("v_pk_mul_f32 %s, %s, %s" % (vp(t), vp(a), vp(a)))
        e("v_pk_fma_f32 %s, %s, %s, %s op_sel_hi:[1,0,1]" % (vp(t), vp(t), sp(sC4), vp(cC3)))
        e("v_pk_mul_f32 %s, %s, %s" % (vp(t), vp(t), vp(a)))
        e("v_exp_f32 %s, %s" % (v(t), v(t)))
        e("v_exp_f32 %s, %s" % (v(t + 1), v(t + 1)))
        nop(1)
        e("v_pk_add_f32 %s, %s, 1.0 op_sel_hi:[1,0]" % (vp(t), vp(t)))
        e("v_rcp_f32 %s, %s" % (v(t), v(t)))
        e("v_rcp_f32 %s, %s" % (v(t + 1), v(t + 1)))
        nop(1)
        e("v_pk_mul_f32 %s, %s, %s" % (vp(a), vp(a), vp(t)))
        round_bf16_pair(a, a + 1, t2)
        if k == 0:
            e("v_pk_mul_f32 %s, %s, %s" % (vp(Y), vp(a), vp(vW2 + k)))
        else:
            e("v_pk_fma_f32 %s, %s, %s, %s" % (vp(Y), vp(a), vp(vW2 + k), vp(Y)))
    e("v_add_f32 %s, %s, %s" % (v(Y), v(Y), v(Y + 1)))
    allreduce("add", [Y], [T + 24])

hdr = open("cdna_kernels/%s.s.ref" % NAME).read().split("\n")
for ln in hdr:
    if ln.startswith("; @launch"):
        L.append("; @launch grid=(256,1,1) block=(512,1,1) lds=%d" % LDS_TOTAL)
        break
    L.append(ln)
L.append('.amdgcn_target "amdgcn-amd-amdhsa--gfx950"')
L.append(".text")
L.append(".globl %s_kernel" % NAME)
L.append(".p2align 8")
L.append(".type %s_kernel,@function" % NAME)
lab("%s_kernel" % NAME)

e("s_cmp_ge_u32 s2, 256")
e("s_cbranch_scc1 END")
e("s_load_dwordx16 s[16:31], s[0:1], 0")
e("s_load_dwordx8 s[32:39], s[0:1], 64")
e("s_load_dwordx2 s[40:41], s[0:1], 96")
e("v_and_b32 %s, 63, v0" % v(vL))
e("v_lshrrev_b32 v2, 6, v0")
e("s_and_b32 s%d, s2, 7" % sG)
e("s_lshr_b32 s%d, s2, 3" % sC)
e("v_readfirstlane_b32 s%d, v2" % sWAVE)
e("v_lshlrev_b32 %s, 4, %s" % (v(aL16), v(vL)))
e("v_lshlrev_b32 %s, 5, %s" % (v(aL32), v(vL)))
e("s_mov_b32 s%d, 0" % sLAY)
e("s_and_b32 s%d, s%d, 7" % (sCB, sC))
e("s_lshr_b32 s%d, s%d, 3" % (sRB, sC))
e("s_mov_b32 s%d, s2" % sPI)
e("s_mov_b32 s%d, %s" % (sC1, fh(LOG2E)))
e("s_mov_b32 s%d, %s" % (sC2, fh(SCALE)))
GC0 = -2.0 * 0.7978845608028654 * LOG2E
GC1 = GC0 * 0.044715
e("s_mov_b32 s%d, %s" % (sC3, fh(GC0)))
e("s_mov_b32 s%d, %s" % (sC4, fh(GC1)))
e("s_waitcnt lgkmcnt(0)")
e("s_cmp_ge_u32 s%d, 4" % sWAVE)
e("s_cbranch_scc1 LOADER")
e("s_load_dword s%d, %s, 0" % (sTAG, sp(P_WS)))

XV = T
XL = T + 8
if TS:
    e("s_memtime s[98:99]" if TS != 9999 else "s_memrealtime s[98:99]")
    e("s_waitcnt lgkmcnt(0)")
    e("s_mov_b32 s%d, s98" % (sTSB + 2 * NTS))
e("s_cmp_lg_u32 s%d, 0" % sWAVE)
e("s_cbranch_scc1 NOX")
e("global_load_dwordx4 %s, %s, %s" % (vr(XL, 4), v(aL16), sp(P_X)))
lab("NOX")
sacc([(sG, 24), (sC, 15), (sWAVE, 13)], W0 * 256)
e("v_and_b32 v3, 15, %s" % v(vL))
e("v_lshrrev_b32 v4, 4, %s" % v(vL))
e("v_lshlrev_b32 v2, 8, v3")
e("v_lshl_add_u32 v2, v4, 4, v2")
e("v_add_u32 v2, s%d, v2" % sT0)
e("v_add_u32 v5, 0x1000, v2")
for Tt in range(2):
    for s in range(4):
        e("global_load_dwordx4 %s, %s, %s offset:%d nt" % (vr(vK + Tt * 16 + s * 4, 4), "v2" if Tt == 0 else "v5", sp(P_K), s * 64))
e("v_mov_b32 v6, 0")
e("global_load_ushort %s, v6, %s" % (v(vB2), sp(P_B2)))
e("s_lshl_b32 s%d, s%d, 2" % (sT0, sPI))
e("v_mov_b32 v6, s%d" % sT0)
e("global_load_dword %s, v6, %s" % (v(vXR), sp(P_X)))
e("s_cmp_lg_u32 s%d, 3" % sWAVE)
e("s_cbranch_scc1 NOPF")
e("s_getpc_b64 s[96:97]")
lab("PCREF")
e("s_sub_u32 s96, s96, PCREF-%s_kernel" % NAME)
e("s_subb_u32 s97, s97, 0")
e("v_mov_b32 v12, %s" % v(aL16))
for i in range(NPF):
    e("global_load_dwordx4 %s, v12, s[96:97]" % vr(244, 4))
    e("v_add_u32 v12, 0x400, v12")
lab("NOPF")

sacc([(sG, 14), (sWAVE, 10)], QS_OFF)
e("v_add_u32 %s, s%d, %s" % (v(aQS), sT0, v(aL16)))
sacc([(sG, 14), (sRB, 12), (sCB, 9), (sWAVE, 7)], QS_OFF)
e("v_add_u32 %s, s%d, %s" % (v(aQW), sT0, v(aL32)))
e("v_lshrrev_b32 v6, 2, v3")
e("v_lshlrev_b32 v6, 8, v6")
e("v_lshl_add_u32 v6, v4, 4, v6")
e("v_add_u32 %s, 0x%x, v6" % (v(aQF), LQ))
sacc([(sG, 17), (sC, 12)], PO_OFF)
e("v_lshlrev_b32 v6, 4, v0")
e("v_add_u32 %s, s%d, v6" % (v(aPOW), sT0))
sacc([(sG, 17), (sC, 12)], OP_OFF)
e("v_add_u32 %s, s%d, v6" % (v(aOPW), sT0))
sacc([(sG, 11), (sC, 6), (sWAVE, 4)], ST_OFF)
e("v_mov_b32 %s, s%d" % (v(aSTW), sT0))
e("s_lshr_b32 s%d, s%d, 3" % (sT2, sC))
sacc([(sG, 11), (sT2, 4)], ST_OFF)
e("v_lshrrev_b32 v6, 1, %s" % v(vL))
e("v_lshlrev_b32 v7, 6, v6")
e("v_add_u32 %s, s%d, v7" % (v(aSTR), sT0))
sacc([(sG, 17), (sC, 7), (sWAVE, 5)], PO_OFF)
e("v_lshlrev_b32 v7, 12, v6")
e("v_and_b32 v6, 1, %s" % v(vL))
e("v_lshl_add_u32 v7, v6, 4, v7")
e("v_add_u32 %s, s%d, v7" % (v(aPOR), sT0))
sacc([(sG, 17), (sC, 7)], OP_OFF)
e("v_lshrrev_b32 v6, 3, %s" % v(vL))
e("v_lshlrev_b32 v7, 12, v6")
e("v_and_b32 v8, 7, %s" % v(vL))
e("v_lshl_add_u32 v7, v8, 4, v7")
e("v_add_u32 %s, s%d, v7" % (v(aOPR), sT0))
sacc([(sC, 10), (sG, 7)], XP_OFF)
e("v_lshlrev_b32 v7, 15, v6")
e("v_lshl_add_u32 v7, v8, 4, v7")
e("v_add_u32 %s, s%d, v7" % (v(aXPW), sT0))
sacc([(sG, 15), (sC, 10)], XP_OFF)
e("v_add_u32 %s, s%d, %s" % (v(aXPR), sT0, v(aL16)))
sacc([(sG, 11), (sC, 6)], X1_OFF)
e("v_lshlrev_b32 v7, 3, v8")
e("v_add_u32 %s, s%d, v7" % (v(aX1W), sT0))
sacc([(sC, 6)], LXR)
e("v_add_u32 %s, s%d, v7" % (v(aXRR), sT0))
sacc([(sG, 11)], X1_OFF)
e("v_add_u32 %s, s%d, %s" % (v(aX1R), sT0, v(aL32)))
sacc([(sPI, 3)], X1_OFF)
e("v_lshlrev_b32 v6, 11, %s" % v(vL))
e("v_add_u32 %s, s%d, v6" % (v(aXW), sT0))
e("v_lshrrev_b32 v6, 2, v3")
e("v_lshl_add_u32 v6, v4, 2, v6")
e("v_lshlrev_b32 v7, 8, v6")
e("v_and_b32 v6, 7, v6")
e("v_lshl_add_u32 v7, v6, 5, v7")
e("v_and_b32 v6, 3, %s" % v(vL))
e("v_lshl_add_u32 v7, v6, 3, v7")
e("s_lshl_b32 s%d, s%d, 13" % (sT0, sWAVE))
e("v_add_u32 %s, s%d, v7" % (v(aVT), sT0))
sacc([(sWAVE, 11)], LSC)
e("v_lshlrev_b32 v6, 2, v3")
e("v_lshl_add_u32 v6, v4, 9, v6")
e("v_add_u32 %s, s%d, v6" % (v(aSCW), sT0))
sacc([(sWAVE, 9)], LSC)
e("v_lshlrev_b32 v6, 3, %s" % v(vL))
e("v_add_u32 %s, s%d, v6" % (v(aSCR), sT0))
e("s_add_u32 s%d, s%d, 0x%x" % (sWS2, P_WS, SDELTA))
e("s_addc_u32 s%d, s%d, 0" % (sWS2 + 1, P_WS + 1))
e("s_waitcnt lgkmcnt(0)")
e("s_add_u32 s%d, s%d, 1" % (sTAG, sTAG))

lab("LAYER")
e("s_lshl_b32 s%d, s%d, 3" % (sLAY2, sLAY))
e("s_cmp_lg_u32 s%d, 0" % sWAVE)
e("s_cbranch_scc1 QW")
e("s_cmp_lg_u32 s%d, 0" % sLAY)
e("s_cbranch_scc1 QPOLL")
e("s_waitcnt vmcnt(10)")
for i in range(4):
    e("v_lshlrev_b32 %s, 16, %s" % (v(XV + 2 * i), v(XL + i)))
    e("v_and_b32 %s, 0xffff0000, %s" % (v(XV + 2 * i + 1), v(XL + i)))
e("s_branch QLN")
lab("QPOLL")
G0 = T + 8
e("v_add_u32 v6, 0x%x, %s" % (X2_OFF - X1_OFF, v(aX1R)))
e("s_sub_u32 s%d, s%d, 1" % (sTAG, sTAG))
poll(["global_load_dwordx4 %s, v6, %s sc1" % (vr(G0, 4), sp(P_WS)),
      "global_load_dwordx4 %s, v6, %s offset:16 sc1" % (vr(G0 + 4, 4), sp(P_WS))],
     [G0 + 1, G0 + 3, G0 + 5, G0 + 7], T + 16, T + 17)
e("s_add_u32 s%d, s%d, 1" % (sTAG, sTAG))
for i in range(4):
    e("v_lshlrev_b32 %s, 16, %s" % (v(XV + 2 * i), v(G0 + 2 * i)))
    e("v_and_b32 %s, 0xffff0000, %s" % (v(XV + 2 * i + 1), v(G0 + 2 * i)))
lab("QLN")
ts()
e("v_add_u32 v6, 0x%x, %s" % (LXR, v(aL32)))
e("ds_write_b128 v6, %s" % vr(XV, 4))
e("ds_write_b128 v6, %s offset:16" % vr(XV + 4, 4))
layernorm(XV, [], T + 16)
e("v_add_u32 v6, 0x%x, %s" % (LH, v(aL32)))
e("ds_write_b128 v6, %s" % vr(XV, 4))
e("ds_write_b128 v6, %s offset:16" % vr(XV + 4, 4))
e("s_waitcnt lgkmcnt(0)")
lab("QW")
sacc([(sRB, 9)], LH)
e("v_lshrrev_b32 v6, 2, %s" % v(vL))
e("v_lshlrev_b32 v6, 5, v6")
e("v_add_u32 v6, s%d, v6" % sT0)
e("s_barrier")
e("ds_read_b128 %s, v6" % vr(XV, 4))
e("ds_read_b128 %s, v6 offset:16" % vr(XV + 4, 4))
lab("QG")
e("s_cmp_lg_u32 s%d, 0" % sLAY)
e("s_cbranch_scc1 QG2")
sacc([(sWAVE, 5)], LWQ)
e("v_lshrrev_b32 v6, 2, %s" % v(vL))
e("v_lshlrev_b32 v6, 10, v6")
e("v_and_b32 v7, 3, %s" % v(vL))
e("v_lshl_add_u32 v6, v7, 3, v6")
e("v_add_u32 v6, s%d, v6" % sT0)
WT = T + 16
for i in range(8):
    e("ds_read_b64 %s, v6 offset:%d" % (vr(WT + 2 * i, 2), 128 * i))
e("s_waitcnt lgkmcnt(0)")
for i in range(16):
    e("v_lshlrev_b32 %s, 16, %s" % (v(vWQF + 2 * i), v(WT + i)))
    e("v_and_b32 %s, 0xffff0000, %s" % (v(vWQF + 2 * i + 1), v(WT + i)))
lab("QG2")
e("s_waitcnt lgkmcnt(0)")
A = T + 32
U = T + 36
for i in range(8):
    hb, hs = bcast_sel(XV + i)
    for hlf in range(2):
        w = vWQF + 4 * i + 2 * hlf
        if i == 0:
            e("v_pk_mul_f32 %s, %s, %s op_sel:[%d,0] op_sel_hi:[%d,1]" % (vp(A + 2 * hlf), vp(hb), vp(w), hs, hs))
        else:
            e("v_pk_fma_f32 %s, %s, %s, %s op_sel:[%d,0,0] op_sel_hi:[%d,1,1]" % (vp(A + 2 * hlf), vp(hb), vp(w), vp(A + 2 * hlf), hs, hs))
allreduce("add", [A, A + 1, A + 2, A + 3], [U, U + 1, U + 2, U + 3], rors=(4, 8))
QP = T + 40
for i in range(4):
    e("v_mov_b32 %s, %s" % (v(QP + 2 * i), v(A + i)))
    e("v_mov_b32 %s, s%d" % (v(QP + 2 * i + 1), sTAG))
mask_begin(15)
e("s_cmp_lg_u32 s%d, 0" % sLAY)
e("s_cbranch_scc1 QST1")
e("global_store_dwordx4 %s, %s, %s" % (v(aQW), vr(QP, 4), sp(P_WS)))
e("global_store_dwordx4 %s, %s, %s offset:16" % (v(aQW), vr(QP + 4, 4), sp(P_WS)))
e("global_store_dwordx4 %s, %s, %s sc1" % (v(aQW), vr(QP, 4), sp(sWS2)))
e("global_store_dwordx4 %s, %s, %s offset:16 sc1" % (v(aQW), vr(QP + 4, 4), sp(sWS2)))
e("s_branch QST2")
lab("QST1")
e("s_cmp_lg_u32 s%d, 0" % sFAST)
e("s_cbranch_scc1 QST3")
e("global_store_dwordx4 %s, %s, %s sc1" % (v(aQW), vr(QP, 4), sp(P_WS)))
e("global_store_dwordx4 %s, %s, %s offset:16 sc1" % (v(aQW), vr(QP + 4, 4), sp(P_WS)))
e("s_branch QST2")
lab("QST3")
e("global_store_dwordx4 %s, %s, %s" % (v(aQW), vr(QP, 4), sp(P_WS)))
e("global_store_dwordx4 %s, %s, %s offset:16" % (v(aQW), vr(QP + 4, 4), sp(P_WS)))
lab("QST2")
mask_end()
ts()
e("s_cmp_lg_u32 s%d, 0" % sLAY)
e("s_cbranch_scc1 NOMW")
load_mixer_weights("v0")
lab("NOMW")
G0 = T
for k in range(1, 4):
    e("v_add_u32 %s, 0x%x, %s" % (v(T + 32 + k), 0x1000 * k, v(aQS)))
loads = []; tags = []
for k in range(4):
    loads.append("global_load_dwordx4 %s, %s, %s sc1" % (vr(G0 + 4 * k, 4), v(aQS) if k == 0 else v(T + 32 + k), sp(sPB)))
    tags += [G0 + 4 * k + 1, G0 + 4 * k + 3]
poll(loads, tags, T + 16, T + 17, dual=True)
ts()
e("v_add_f32 %s, %s, %s" % (v(G0), v(G0), v(G0 + 4)))
e("v_add_f32 %s, %s, %s" % (v(G0 + 2), v(G0 + 2), v(G0 + 6)))
e("v_add_f32 %s, %s, %s" % (v(G0 + 8), v(G0 + 8), v(G0 + 12)))
e("v_add_f32 %s, %s, %s" % (v(G0 + 10), v(G0 + 10), v(G0 + 14)))
e("v_add_f32 %s, %s, %s" % (v(G0), v(G0), v(G0 + 8)))
e("v_add_f32 %s, %s, %s" % (v(G0 + 2), v(G0 + 2), v(G0 + 10)))
e("v_cvt_pk_bf16_f32 %s, %s, %s" % (v(G0), v(G0), v(G0 + 2)))
e("v_lshlrev_b32 v6, 2, v0")
e("v_add_u32 v6, 0x%x, v6" % LQ)
e("ds_write_b32 v6, %s" % v(G0))
e("s_waitcnt lgkmcnt(0)")
lab("SW")
e("s_barrier")
QL = T
for s in range(4):
    e("ds_read_b128 %s, %s offset:%d" % (vr(QL + 4 * s, 4), v(aQF), 64 * s))
e("s_waitcnt vmcnt(0) lgkmcnt(0)")
SC0 = T + 32
for s in range(4):
    for Tt in range(2):
        c = "0" if s == 0 else vr(SC0 + 4 * Tt, 4)
        e("v_mfma_f32_16x16x32_bf16 %s, %s, %s, %s" % (vr(SC0 + 4 * Tt, 4), vr(vK + Tt * 16 + s * 4, 4), vr(QL + 4 * s, 4), c))
nop(8)
tmp = T + 40
for i in range(0, 8, 2):
    round_bf16_pair(SC0 + i, SC0 + i + 1, tmp)
    e("v_pk_mul_f32 %s, %s, %s op_sel_hi:[1,0]" % (vp(SC0 + i), vp(SC0 + i), sp(sC2)))
    round_bf16_pair(SC0 + i, SC0 + i + 1, tmp)
M = T + 41
e("v_max3_f32 %s, %s, %s, %s" % (v(M), v(SC0), v(SC0 + 1), v(SC0 + 2)))
e("v_max3_f32 %s, %s, %s, %s" % (v(M), v(M), v(SC0 + 3), v(SC0 + 4)))
e("v_max3_f32 %s, %s, %s, %s" % (v(M), v(M), v(SC0 + 5), v(SC0 + 6)))
e("v_max_f32 %s, %s, %s" % (v(M), v(M), v(SC0 + 7)))
allreduce("max", [M], [tmp], rors=())
MM = T + 42
e("v_mul_f32 %s, s%d, %s" % (v(MM), sC1, v(M)))
for i in range(8):
    e("v_fma_f32 %s, %s, s%d, -%s" % (v(SC0 + i), v(SC0 + i), sC1, v(MM)))
for i in range(8):
    e("v_exp_f32 %s, %s" % (v(SC0 + i), v(SC0 + i)))
nop(1)
PA = T + 44
for i in range(4):
    e("v_cvt_pk_bf16_f32 %s, %s, %s" % (v(PA + i), v(SC0 + 2 * i), v(SC0 + 2 * i + 1)))
e("s_cmp_lg_u32 s%d, 0" % sLAY)
e("s_cbranch_scc1 SV")
e("s_barrier")
for Td in range(8):
    e("v_xor_b32 v6, 0x%x, %s" % (Td << 5, v(aVT)))
    e("ds_read_b64_tr_b16 %s, v6" % vr(vVF + 4 * Td, 2))
    e("ds_read_b64_tr_b16 %s, v6 offset:4096" % vr(vVF + 4 * Td + 2, 2))
e("s_waitcnt lgkmcnt(0)")
lab("SV")
ts()
D0 = T
for Td in range(8):
    e("v_mfma_f32_16x16x32_bf16 %s, %s, %s, 0" % (vr(D0 + 4 * Td, 4), vr(PA, 4), vr(vVF + 4 * Td, 4)))
LS = T + 43
e("v_pk_add_f32 %s, %s, %s" % (vp(SC0), vp(SC0), vp(SC0 + 2)))
e("v_pk_add_f32 %s, %s, %s" % (vp(SC0 + 4), vp(SC0 + 4), vp(SC0 + 6)))
e("v_pk_add_f32 %s, %s, %s" % (vp(SC0), vp(SC0), vp(SC0 + 4)))
e("v_add_f32 %s, %s, %s" % (v(LS), v(SC0), v(SC0 + 1)))
allreduce("add", [LS], [tmp], rors=())
sacc([(sWAVE, 5)], LSS)
e("v_lshlrev_b32 v6, 1, %s" % v(vL))
e("v_add_u32 v6, s%d, v6" % sT0)
e("v_mov_b32 %s, %s" % (v(T + 40), v(M)))
e("v_mov_b32 %s, %s" % (v(T + 41), v(LS)))
e("s_mov_b64 %s, exec" % sp(sEX))
e("s_mov_b64 exec, 0x1111")
e("ds_write_b64 v6, %s" % vr(T + 40, 2))
e("s_mov_b64 exec, %s" % sp(sEX))
for Td in range(8):
    e("ds_write_b32 %s, %s offset:%d" % (v(aSCW), v(D0 + 4 * Td), Td * 64))
e("s_waitcnt lgkmcnt(0)")
e("s_barrier")
R = T
for w_ in range(4):
    e("ds_read_b64 %s, %s offset:%d" % (vr(R + 2 * w_, 2), v(aSCR), 2048 * w_))
sacc([(sWAVE, 3)], LSS)
e("v_mov_b32 v6, s%d" % sT0)
for w_ in range(4):
    e("ds_read_b64 %s, v6 offset:%d" % (vr(R + 8 + 2 * w_, 2), 32 * w_))
e("v_mov_b32 v7, 0x%x" % LFL)
e("ds_read_b32 v7, v7")
e("s_waitcnt lgkmcnt(0)")
e("v_readfirstlane_b32 s%d, v7" % sFAST)
MC, E0, LC, O0, O1 = T + 16, T + 17, T + 22, T + 24, T + 26
e("v_max3_f32 %s, %s, %s, %s" % (v(MC), v(R + 8), v(R + 10), v(R + 12)))
e("v_max_f32 %s, %s, %s" % (v(MC), v(MC), v(R + 14)))
for w_ in range(4):
    e("v_sub_f32 %s, %s, %s" % (v(E0 + w_), v(R + 8 + 2 * w_), v(MC)))
    e("v_mul_f32 %s, s%d, %s" % (v(E0 + w_), sC1, v(E0 + w_)))
for w_ in range(4):
    e("v_exp_f32 %s, %s" % (v(E0 + w_), v(E0 + w_)))
nop(1)
e("v_mul_f32 %s, %s, %s" % (v(LC), v(E0), v(R + 9)))
e("v_mul_f32 %s, %s, %s" % (v(O0), v(E0), v(R)))
e("v_mul_f32 %s, %s, %s" % (v(O1), v(E0), v(R + 1)))
for w_ in range(1, 4):
    e("v_fmac_f32 %s, %s, %s" % (v(LC), v(E0 + w_), v(R + 9 + 2 * w_)))
    e("v_fmac_f32 %s, %s, %s" % (v(O0), v(E0 + w_), v(R + 2 * w_)))
    e("v_fmac_f32 %s, %s, %s" % (v(O1), v(E0 + w_), v(R + 2 * w_ + 1)))
e("v_mov_b32 %s, s%d" % (v(O0 + 1), sTAG))
e("v_mov_b32 %s, s%d" % (v(O1 + 1), sTAG))
fstore(v(aPOW), vr(O0, 4))
S4 = T + 28
e("v_mov_b32 %s, %s" % (v(S4), v(MC)))
e("v_mov_b32 %s, s%d" % (v(S4 + 1), sTAG))
e("v_mov_b32 %s, %s" % (v(S4 + 2), v(LC)))
e("v_mov_b32 %s, s%d" % (v(S4 + 3), sTAG))
mask_begin(1)
fstore(v(aSTW), vr(S4, 4))
mask_end()
ts()
e("s_cmp_lg_u32 s%d, 0" % sLAY)
e("s_cbranch_scc1 OPH")
e("s_barrier")
sacc([(sWAVE, 12)], LWO)
e("v_add_u32 v6, s%d, %s" % (sT0, v(aL16)))
WT = T + 32
for i in range(4):
    e("ds_read_b128 %s, v6 offset:%d" % (vr(WT + 4 * i, 4), 1024 * i))
e("s_waitcnt lgkmcnt(0)")
for i in range(16):
    e("v_lshlrev_b32 %s, 16, %s" % (v(vWOF + 2 * i), v(WT + i)))
    e("v_and_b32 %s, 0xffff0000, %s" % (v(vWOF + 2 * i + 1), v(WT + i)))
e("v_lshlrev_b32 %s, 16, %s" % (v(vB2), v(vB2)))
e("v_and_b32 %s, 0xffff0000, %s" % (v(vXR + 1), v(vXR)))
e("v_lshlrev_b32 %s, 16, %s" % (v(vXR), v(vXR)))
lab("OPH")
SR, PR = T, T + 4
poll(["global_load_dwordx4 %s, %s, %s sc1" % (vr(SR, 4), v(aSTR), sp(P_WS)),
      "global_load_dwordx4 %s, %s, %s sc1" % (vr(PR, 4), v(aPOR), sp(P_WS))],
     [SR + 1, SR + 3, PR + 1, PR + 3], T + 8, T + 9)
ts()
Mx = T + 8
e("v_mov_b32 %s, %s" % (v(Mx), v(SR)))
allreduce("max", [Mx], [T + 9], rors=(2, 4, 8))
Ee = T + 10
e("v_sub_f32 %s, %s, %s" % (v(Ee), v(SR), v(Mx)))
e("v_mul_f32 %s, s%d, %s" % (v(Ee), sC1, v(Ee)))
e("v_exp_f32 %s, %s" % (v(Ee), v(Ee)))
nop(1)
A0, A1, A2 = T + 12, T + 13, T + 14
e("v_mul_f32 %s, %s, %s" % (v(A0), v(Ee), v(SR + 2)))
e("v_mul_f32 %s, %s, %s" % (v(A1), v(Ee), v(PR)))
e("v_mul_f32 %s, %s, %s" % (v(A2), v(Ee), v(PR + 2)))
allreduce("add", [A0, A1, A2], [T + 16, T + 17, T + 18], rors=(2, 4, 8))
e("v_rcp_f32 %s, %s" % (v(A0), v(A0)))
nop(1)
e("v_mul_f32 %s, %s, %s" % (v(A1), v(A1), v(A0)))
e("v_mul_f32 %s, %s, %s" % (v(A2), v(A2), v(A0)))
round_bf16_pair(A1, A2, T + 16)
OO = T + 20
nop(2)
e("v_mov_b32_dpp %s, %s quad_perm:[0,0,2,2] %s" % (v(OO), v(A1), DPPM))
e("v_mov_b32_dpp %s, %s quad_perm:[0,0,2,2] %s" % (v(OO + 1), v(A2), DPPM))
e("v_mov_b32_dpp %s, %s quad_perm:[1,1,3,3] %s" % (v(OO + 2), v(A1), DPPM))
e("v_mov_b32_dpp %s, %s quad_perm:[1,1,3,3] %s" % (v(OO + 3), v(A2), DPPM))
AC = T + 24
for i in range(4):
    ob, os_ = bcast_sel(OO + i)
    for k in range(4):
        w = vWOF + 8 * i + 2 * k
        if i == 0:
            e("v_pk_mul_f32 %s, %s, %s op_sel:[%d,0] op_sel_hi:[%d,1]" % (vp(AC + 2 * k), vp(ob), vp(w), os_, os_))
        else:
            e("v_pk_fma_f32 %s, %s, %s, %s op_sel:[%d,0,0] op_sel_hi:[%d,1,1]" % (vp(AC + 2 * k), vp(ob), vp(w), vp(AC + 2 * k), os_, os_))
sacc([(sWAVE, 11)], LOC)
e("v_add_u32 v6, s%d, %s" % (sT0, v(aL32)))
e("ds_write_b128 v6, %s" % vr(AC, 4))
e("ds_write_b128 v6, %s offset:16" % vr(AC + 4, 4))
e("v_lshlrev_b32 v6, 3, v0")
e("v_add_u32 v6, 0x%x, v6" % LOC)
e("s_waitcnt lgkmcnt(0)")
e("s_barrier")
R = T
for w_ in range(4):
    e("ds_read_b64 %s, v6 offset:%d" % (vr(R + 2 * w_, 2), 2048 * w_))
e("s_waitcnt lgkmcnt(0)")
O4 = T + 8
e("v_pk_add_f32 %s, %s, %s" % (vp(R), vp(R), vp(R + 2)))
e("v_pk_add_f32 %s, %s, %s" % (vp(R + 4), vp(R + 4), vp(R + 6)))
e("v_add_f32 %s, %s, %s" % (v(O4), v(R), v(R + 4)))
e("v_add_f32 %s, %s, %s" % (v(O4 + 2), v(R + 1), v(R + 5)))
e("v_mov_b32 %s, s%d" % (v(O4 + 1), sTAG))
e("v_mov_b32 %s, s%d" % (v(O4 + 3), sTAG))
fstore(v(aOPW), vr(O4, 4))
ts()
e("s_cmp_lg_u32 s%d, 0" % sWAVE)
e("s_cbranch_scc1 MW")
XR = T + 16
AD = T + 40
for k in range(1, 4):
    e("v_add_u32 %s, 0x%x, %s" % (v(AD + k), 0x8000 * k, v(aOPR)))
e("ds_read_b64 %s, %s" % (vr(T + 44, 2), v(aXRR)))
loads = []; tags = []
for k in range(4):
    loads.append("global_load_dwordx4 %s, %s, %s sc1" % (vr(XR + 4 * k, 4), v(aOPR) if k == 0 else v(AD + k), sp(P_WS)))
    tags += [XR + 4 * k + 1, XR + 4 * k + 3]
poll(loads, tags, T + 32, T + 33)
ts()
Y0, Y1 = T + 32, T + 34
e("v_add_f32 %s, %s, %s" % (v(Y0), v(XR), v(XR + 4)))
e("v_add_f32 %s, %s, %s" % (v(Y1), v(XR + 2), v(XR + 6)))
e("v_add_f32 %s, %s, %s" % (v(XR + 8), v(XR + 8), v(XR + 12)))
e("v_add_f32 %s, %s, %s" % (v(XR + 10), v(XR + 10), v(XR + 14)))
e("v_add_f32 %s, %s, %s" % (v(Y0), v(Y0), v(XR + 8)))
e("v_add_f32 %s, %s, %s" % (v(Y1), v(Y1), v(XR + 10)))
allreduce("add", [Y0, Y1], [T + 36, T + 37], rors=(8,))
e("v_mov_b32 %s, s%d" % (v(Y0 + 1), sTAG))
e("v_mov_b32 %s, s%d" % (v(Y1 + 1), sTAG))
e("global_store_dwordx4 %s, %s, %s sc1" % (v(aXPW), vr(Y0, 4), sp(P_WS)))
poll(["global_load_dwordx4 %s, %s, %s sc1" % (vr(XR, 4), v(aXPR), sp(P_WS))], [XR + 1, XR + 3], T + 36, T + 37)
Z0, Z1 = T + 36, T + 37
e("v_mov_b32 %s, %s" % (v(Z0), v(XR)))
e("v_mov_b32 %s, %s" % (v(Z1), v(XR + 2)))
allreduce("add", [Z0, Z1], [T + 38, T + 39], rors=(8,))
round_bf16_pair(Z0, Z1, T + 38)
e("s_waitcnt lgkmcnt(0)")
e("v_pk_add_f32 %s, %s, %s" % (vp(Z0), vp(Z0), vp(T + 44)))
e("v_cvt_pk_bf16_f32 %s, %s, %s" % (v(T + 40), v(Z0), v(Z1)))
e("v_mov_b32 %s, s%d" % (v(T + 41), sTAG))
mask_begin(255)
e("s_cmp_lg_u32 s%d, 0" % sFAST)
e("s_cbranch_scc1 X1F")
e("global_store_dwordx2 %s, %s, %s sc1" % (v(aX1W), vr(T + 40, 2), sp(P_WS)))
e("s_branch X1D")
lab("X1F")
e("global_store_dwordx2 %s, %s, %s" % (v(aX1W), vr(T + 40, 2), sp(P_WS)))
lab("X1D")
mask_end()
e("v_readlane_b32 s%d, %s, s%d" % (sT2, v(T + 40), sG))
nop(2)
e("s_lshl_b32 s%d, s%d, 16" % (sT3, sT2))
e("s_and_b32 s%d, s%d, 0xffff0000" % (sT2, sT2))
e("v_mov_b32 %s, s%d" % (v(vXR), sT3))
e("v_mov_b32 %s, s%d" % (v(vXR + 1), sT2))
ts()
G0 = T + 8
poll(["global_load_dwordx4 %s, %s, %s sc1" % (vr(G0, 4), v(aX1R), sp(P_WS)),
      "global_load_dwordx4 %s, %s, %s offset:16 sc1" % (vr(G0 + 4, 4), v(aX1R), sp(P_WS))],
     [G0 + 1, G0 + 3, G0 + 5, G0 + 7], T + 18, T + 19)
ts()
for i in range(4):
    e("v_lshlrev_b32 %s, 16, %s" % (v(XV + 2 * i), v(G0 + 2 * i)))
    e("v_and_b32 %s, 0xffff0000, %s" % (v(XV + 2 * i + 1), v(G0 + 2 * i)))
H0 = T + 18
e("v_mov_b32 %s, %s" % (v(H0), v(vXR)))
e("v_mov_b32 %s, %s" % (v(H0 + 1), v(vXR + 1)))
layernorm(XV, [H0], T + 24)
layernorm(XV, [H0], T + 24, only_extra=True)
e("v_mov_b32 v6, 0x%x" % LHB)
mask_begin(1)
e("ds_write_b64 v6, %s" % vr(H0, 2))
mask_end()
e("s_waitcnt lgkmcnt(0)")
e("s_barrier")
e("s_branch MG")
lab("MW")
e("v_mov_b32 v6, 0x%x" % LHB)
e("s_barrier")
e("ds_read_b64 %s, v6" % vr(H0, 2))
e("s_waitcnt lgkmcnt(0)")
lab("MG")
ts()
Ya = T + 22
mixer(H0, 0, Ya)
sacc([(sWAVE, 2)], LMC)
e("v_mov_b32 v6, s%d" % sT0)
mask_begin(1)
e("ds_write_b32 v6, %s" % v(Ya))
mask_end()
e("s_waitcnt lgkmcnt(0)")
e("s_barrier")
e("s_cmp_lg_u32 s%d, 0" % sWAVE)
e("s_cbranch_scc1 MSKIP")
e("v_mov_b32 v6, 0x%x" % LMC)
e("ds_read_b128 %s, v6" % vr(T + 24, 4))
e("ds_read_b128 %s, v6 offset:16" % vr(T + 28, 4))
e("s_waitcnt lgkmcnt(0)")
Yb = Ya + 1
e("v_pk_add_f32 %s, %s, %s" % (vp(T + 24), vp(T + 24), vp(T + 26)))
e("v_pk_add_f32 %s, %s, %s" % (vp(T + 28), vp(T + 28), vp(T + 30)))
e("v_add_f32 %s, %s, %s" % (v(Ya), v(T + 24), v(T + 25)))
e("v_add_f32 %s, %s, %s" % (v(Yb), v(T + 28), v(T + 29)))
round_bf16_pair(Ya, Yb, T + 24)
e("v_add_f32 %s, %s, %s" % (v(Ya), v(Ya), v(vB2)))
e("v_add_f32 %s, %s, %s" % (v(Yb), v(Yb), v(vB2)))
round_bf16_pair(Ya, Yb, T + 24)
e("v_pk_add_f32 %s, %s, %s" % (vp(Ya), vp(Ya), vp(vXR)))
e("v_cvt_pk_bf16_f32 %s, %s, %s" % (v(T + 26), v(Ya), v(Yb)))
e("v_mov_b32 %s, s%d" % (v(T + 27), sTAG))
e("s_cmp_lg_u32 s%d, 0" % sLAY)
e("s_cbranch_scc1 FINAL")
e("v_add_u32 v6, 0x%x, %s" % (X2_OFF - X1_OFF, v(aXW)))
mask_begin(255)
e("global_store_dwordx2 v6, %s, %s sc1" % (vr(T + 26, 2), sp(P_WS)))
mask_end()
e("v_lshlrev_b32 %s, 16, %s" % (v(vXR), v(T + 26)))
e("v_and_b32 %s, 0xffff0000, %s" % (v(vXR + 1), v(T + 26)))
e("s_branch MDONE")
lab("FINAL")
e("s_lshl_b32 s%d, s%d, 2" % (sT0, sPI))
e("v_mov_b32 v6, s%d" % sT0)
mask_begin(1)
e("global_store_dword v6, %s, %s" % (v(T + 26), sp(P_OUT)))
e("s_cmp_lg_u32 s2, 0")
e("s_cbranch_scc1 NOEP")
e("v_mov_b32 v6, 0")
e("global_store_dword v6, %s, %s" % (v(T + 27), sp(P_WS)))
lab("NOEP")
mask_end()
lab("MDONE")
ts()
lab("MSKIP")
e("s_add_u32 s%d, s%d, 1" % (sTAG, sTAG))
e("s_add_u32 s%d, s%d, 1" % (sLAY, sLAY))
e("s_cmp_lt_u32 s%d, 2" % sLAY)
e("s_cbranch_scc1 LAYER")

assert ts_count[0] <= NTS, ts_count[0]
if TS == 9999:
    e("s_cmp_lg_u32 s%d, 0" % sWAVE)
    e("s_cbranch_scc1 END")
    mask_begin(1)
    e("s_lshl_b32 s%d, s2, 7" % sT0)
    e("s_add_u32 s%d, s%d, 0x2000000" % (sT0, sT0))
    e("v_mov_b32 v6, s%d" % sT0)
    e("v_mov_b32 v7, s%d" % (sTSB + 2 * NTS))
    e("global_store_dword v6, v7, %s" % sp(P_WS))
    idx = 1
    for lay in range(2):
        for i in range(ts_count[0]):
            e("v_mov_b32 v7, s%d" % (sTSB + lay * NTS + i))
            e("global_store_dword v6, v7, %s offset:%d" % (sp(P_WS), 4 * idx))
            idx += 1
    mask_end()
e("s_branch END")

lab("LOADER")
e("s_sub_u32 s%d, s%d, 4" % (sWAVE, sWAVE))
e("s_load_dword s%d, %s, 0" % (sTAG, sp(P_WS)))
e("s_getreg_b32 s%d, hwreg(HW_REG_XCC_ID)" % sPIV)
e("s_cmp_lg_u32 s%d, 3" % sWAVE)
e("s_cbranch_scc1 NOID")
sacc([(sG, 8), (sC, 3)], XID_OFF)
e("v_mov_b32 v6, s%d" % sT0)
e("v_mov_b32 %s, s%d" % (v(T), sPIV))
e("s_waitcnt lgkmcnt(0)")
e("s_add_u32 s%d, s%d, 1" % (sT0, sTAG))
e("v_mov_b32 %s, s%d" % (v(T + 1), sT0))
mask_begin(1)
e("global_store_dwordx2 v6, %s, %s sc1" % (vr(T, 2), sp(P_WS)))
mask_end()
lab("NOID")
e("s_lshl_b32 s%d, s%d, 10" % (sT1, sWAVE))
e("v_add_u32 v6, s%d, %s" % (sT1, v(aL16)))
e("s_mov_b64 %s, exec" % sp(sEX))
e("s_cmp_lg_u32 s%d, 3" % sWAVE)
e("s_cbranch_scc1 LD_FULL")
e("s_mov_b32 exec_hi, 0")
lab("LD_FULL")
for base, ptr in ((LW1, P_W1), (LB1, P_B1), (LW2, P_W2)):
    e("s_add_u32 s%d, s%d, 0x%x" % (sT3, sT1, base))
    e("s_mov_b32 m0, s%d" % sT3)
    nop(1)
    e("global_load_lds_dwordx4 v6, %s" % sp(ptr))
e("s_mov_b64 exec, %s" % sp(sEX))
e("v_lshrrev_b32 v3, 3, %s" % v(vL))
e("v_lshlrev_b32 v3, 13, v3")
e("v_and_b32 v4, 7, %s" % v(vL))
e("v_lshl_add_u32 v3, v4, 4, v3")
sacc([(sRB, 20), (sWAVE, 18), (sG, 10), (sCB, 7)], 0)
e("v_add_u32 v3, s%d, v3" % sT0)
e("s_lshl_b32 s%d, s%d, 12" % (sT2, sWAVE))
for i in range(4):
    e("s_add_u32 s%d, s%d, 0x%x" % (sT3, sT2, LWQ + 1024 * i))
    e("s_mov_b32 m0, s%d" % sT3)
    nop(1)
    e("global_load_lds_dwordx4 v3, %s nt" % sp(P_WQ))
    e("v_add_u32 v3, 0x10000, v3")
e("v_and_b32 v3, 15, %s" % v(vL))
e("v_lshrrev_b32 v4, 4, %s" % v(vL))
e("v_lshrrev_b32 v5, 1, v3")
e("v_xor_b32 v6, v5, v4")
e("v_xor_b32 v7, 4, v6")
e("v_and_b32 v5, 1, v3")
e("v_lshl_add_u32 v6, v6, 1, v5")
e("v_lshl_add_u32 v7, v7, 1, v5")
e("v_lshlrev_b32 v6, 4, v6")
e("v_lshlrev_b32 v7, 4, v7")
e("v_lshl_add_u32 v6, v4, 8, v6")
e("v_lshl_add_u32 v7, v4, 8, v7")
sacc([(sG, 24), (sC, 15), (sWAVE, 13)], W0 * 256)
e("v_add_u32 v6, s%d, v6" % sT0)
e("v_add_u32 v7, s%d, v7" % sT0)
e("v_add_u32 v7, 0x400, v7")
e("s_lshl_b32 s%d, s%d, 13" % (sT2, sWAVE))
e("s_waitcnt vmcnt(4)")
for i in range(8):
    e("s_add_u32 s%d, s%d, 0x%x" % (sT3, sT2, LV + 1024 * i))
    e("s_mov_b32 m0, s%d" % sT3)
    nop(1)
    e("global_load_lds_dwordx4 %s, %s nt" % ("v6" if i % 2 == 0 else "v7", sp(P_V)))
    if i % 2 == 0:
        e("v_add_u32 v6, 0x800, v6")
    else:
        e("v_add_u32 v7, 0x800, v7")
sacc([(sG, 8)], XID_OFF)
e("v_and_b32 v9, 31, %s" % v(vL))
e("v_lshlrev_b32 v9, 3, v9")
e("v_add_u32 v9, s%d, v9" % sT0)
e("global_load_dwordx2 %s, v9, %s sc1" % (vr(T + 4, 2), sp(P_WS)))
e("s_waitcnt vmcnt(9) lgkmcnt(0)")
e("s_add_u32 s%d, s%d, 1" % (sTAG, sTAG))
e("s_barrier")
e("s_barrier")
e("s_waitcnt vmcnt(0)")
sacc([(sG, 19), (sC, 14), (sWAVE, 12)], 0)
e("v_add_u32 v6, s%d, %s" % (sT0, v(aL16)))
e("s_lshl_b32 s%d, s%d, 12" % (sT1, sWAVE))
for i in range(4):
    e("s_add_u32 s%d, s%d, 0x%x" % (sT3, sT1, LWO + 1024 * i))
    e("s_mov_b32 m0, s%d" % sT3)
    nop(1)
    e("global_load_lds_dwordx4 v6, %s nt" % sp(P_WO))
    e("v_add_u32 v6, 0x400, v6")
e("s_cmp_lg_u32 s%d, 3" % sWAVE)
e("s_cbranch_scc1 NOID2")
e("s_mov_b32 s%d, 0x100000" % sCNT)
lab("IDP")
e("v_cmp_ne_u32 vcc, s%d, %s" % (sTAG, v(T + 5)))
nop(1)
e("s_cmp_eq_u64 vcc, 0")
e("s_cbranch_scc1 IDD")
e("global_load_dwordx2 %s, v9, %s sc1" % (vr(T + 4, 2), sp(P_WS)))
e("s_waitcnt vmcnt(0)")
e("s_sub_u32 s%d, s%d, 1" % (sCNT, sCNT))
e("s_cbranch_scc0 IDP")
lab("IDD")
e("v_cmp_ne_u32 vcc, s%d, %s" % (sPIV, v(T + 4)))
nop(1)
e("s_cmp_eq_u64 vcc, 0")
e("s_cselect_b32 s%d, 1, 0" % sT3)
e("v_mov_b32 v7, s%d" % sT3)
e("v_mov_b32 v6, 0x%x" % LFL)
e("ds_write_b32 v6, v7")
e("s_waitcnt lgkmcnt(0)")
lab("NOID2")
e("s_barrier")
e("s_barrier")
e("s_waitcnt vmcnt(0)")
e("s_barrier")
e("v_and_b32 v8, 255, v0")
load_mixer_weights("v8")
lab("HLOOP")
e("s_barrier")
e("v_mov_b32 v6, 0x%x" % LHB)
e("s_barrier")
e("ds_read_b64 %s, v6" % vr(H0, 2))
e("s_waitcnt lgkmcnt(0)")
mixer(H0, 1, Ya)
sacc([(sWAVE, 2)], LMC + 16)
e("v_mov_b32 v6, s%d" % sT0)
mask_begin(1)
e("ds_write_b32 v6, %s" % v(Ya))
mask_end()
e("s_waitcnt lgkmcnt(0)")
e("s_barrier")
e("s_cmp_lg_u32 s%d, 0" % sLAY)
e("s_cbranch_scc1 END")
e("s_mov_b32 s%d, 1" % sLAY)
e("s_barrier")
e("s_barrier")
e("s_barrier")
e("s_branch HLOOP")
lab("END")
e("s_endpgm")

L.append('.section .rodata,"a"')
L.append(".p2align 6")
L.append(".amdhsa_kernel %s_kernel" % NAME)
L.append("  .amdhsa_next_free_vgpr 256")
L.append("  .amdhsa_next_free_sgpr 102")
L.append("  .amdhsa_accum_offset 256")
L.append("  .amdhsa_group_segment_fixed_size 0")
L.append("  .amdhsa_kernarg_size 104")
L.append("  .amdhsa_user_sgpr_count 2")
L.append("  .amdhsa_user_sgpr_kernarg_segment_ptr 1")
L.append("  .amdhsa_system_sgpr_workgroup_id_x 1")
L.append("  .amdhsa_float_denorm_mode_32 3")
L.append(".end_amdhsa_kernel")
open(OUT, "w").write("\n".join(L) + "\n")
print("wrote", OUT, "lines", len(L), "ts", ts_count[0])
```

```python
import sys, struct

NAME = "interleave_layers__sliding_block_cached__mixer_token_mlp__decode"
TS = int(sys.argv[2]) if len(sys.argv) > 2 else 0
OUT = sys.argv[1] if len(sys.argv) > 1 else "cdna_kernels/%s.s" % NAME

L = []
def e(s): L.append("  " + s)
def lab(s): L.append(s + ":")
def nop(n):
    while n > 0:
        k = min(n, 16)
        e("s_nop %d" % (k - 1))
        n -= k
def f2u(x): return struct.unpack("<I", struct.pack("<f", x))[0]
def fh(x): return "0x%08x" % f2u(x)

QS_OFF = 0x40000
ST_OFF = 0x8000
XID_OFF = 0xc000
X1_OFF = 0x10000
X2_OFF = 0x20000
PO_OFF = 0x100000
OP_OFF = 0x200000
XP_OFF = 0x300000
LV = 0
LWO = 32768
LW1 = 49152
LB1 = LW1 + 3584
LW2 = LB1 + 3584
LSS = 59904
LMC = 60160
LHB = 60288
LFL = 60352
LQ = 60416
LH = 61440
LSC = 63488
LOC = LSC + 8192
LWQ = LOC + 8192
LXR = LWQ + 16384
LDS_TOTAL = LXR + 2048

W0 = 65536 - 4096
LOG2E = 1.4426950408889634
SCALE = 128.0 ** -0.5

sWAVE = 4; sG = 5; sC = 6; sTAG = 7
sT0, sT1, sT2, sT3 = 8, 9, 10, 11
sCNT = 12
sEX = 14
P_X, P_K, P_V, P_WQ, P_WO, P_BX, P_W1, P_B1, P_W2, P_B2, P_OUT, P_DBG, P_WS = [16 + 2 * i for i in range(13)]
sLAY = 42; sPI = 43; sCB = 95; sRB = 88
sC1 = 44; sC2 = 46; sC3 = 48; sC4 = 50
sFAST = 13; sLAY2 = 94; sPIV = 52; sNPIV = 54; sWS2 = 90; sPB = 92
SDELTA = 0x400000
sTSB = 56
def sp(i): return "s[%d:%d]" % (i, i + 1)

vL = 1
vWQF = 16; vK = 48; vVF = 80; vWOF = 112
vW1 = 144; vB1 = 152; vW2 = 160; vB2 = 168
vXR = 170
aQS = 172; aPOW = 173; aSTW = 174; aSTR = 175; aPOR = 176; aOPW = 177; aOPR = 178
aX1R = 179; aXW = 180; aQW = 181; aVT = 182; aSCW = 183; aSCR = 184; aL16 = 185
aQF = 186; aL32 = 187
cC3 = 188
aXPW = 190; aXPR = 191; aX1W = 240; aXRR = 241
T = 192
def v(i): return "v%d" % i
def vr(i, n): return "v[%d:%d]" % (i, i + n - 1)
def vp(i): return vr(i, 2)

NTS = 13
ts_count = [0]
def ts():
    if not TS: return
    i = ts_count[0]; ts_count[0] += 1
    e("s_memtime s[98:99]" if TS != 9999 else "s_memrealtime s[98:99]")
    e("s_waitcnt lgkmcnt(0)")
    e("s_cmp_eq_u32 s%d, 0" % sLAY)
    e("s_cselect_b32 s%d, s98, s%d" % (sTSB + i, sTSB + i))
    e("s_cselect_b32 s%d, s%d, s98" % (sTSB + NTS + i, sTSB + NTS + i))

DPPM = "row_mask:0xf bank_mask:0xf"

def allreduce(op, regs, tmps, rors=(1, 2, 4, 8)):
    ins = "v_add_f32" if op == "add" else "v_max_f32"
    n = len(regs)
    pad = max(0, 2 - (n - 1))
    if rors:
        nop(2)
    for idx, r in enumerate(rors):
        for x in regs:
            e("%s_dpp %s, %s, %s row_ror:%d %s" % (ins, v(x), v(x), v(x), r, DPPM))
        if idx + 1 < len(rors):
            nop(pad)
    for sw in ("v_permlane16_swap_b32", "v_permlane32_swap_b32"):
        for x, t in zip(regs, tmps):
            e("v_mov_b32 %s, %s" % (v(t), v(x)))
        nop(pad if n > 1 else 2)
        for x, t in zip(regs, tmps):
            e("%s %s, %s" % (sw, v(x), v(t)))
        for x, t in zip(regs, tmps):
            e("%s %s, %s, %s" % (ins, v(x), v(x), v(t)))

def round_bf16_pair(a, b, tmp):
    e("v_cvt_pk_bf16_f32 %s, %s, %s" % (v(tmp), v(a), v(b)))
    e("v_lshlrev_b32 %s, 16, %s" % (v(a), v(tmp)))
    e("v_and_b32 %s, 0xffff0000, %s" % (v(b), v(tmp)))

def layernorm(X, extra, tb, only_extra=False):
    s2, q2, d2, m, r, t, t2 = tb, tb + 2, tb + 4, tb + 6, tb + 8, tb + 7, tb + 9
    nop(1)
    e("v_readfirstlane_b32 s%d, %s" % (sPIV, v(X)))
    nop(1)
    e("s_xor_b32 s%d, s%d, 0x80000000" % (sNPIV, sPIV))
    nop(1)
    e("v_pk_add_f32 %s, %s, %s op_sel_hi:[1,0]" % (vp(s2), vp(X), sp(sNPIV)))
    e("v_pk_mul_f32 %s, %s, %s" % (vp(q2), vp(s2), vp(s2)))
    for i in range(2, 8, 2):
        e("v_pk_add_f32 %s, %s, %s op_sel_hi:[1,0]" % (vp(d2), vp(X + i), sp(sNPIV)))
        e("v_pk_add_f32 %s, %s, %s" % (vp(s2), vp(s2), vp(d2)))
        e("v_pk_fma_f32 %s, %s, %s, %s" % (vp(q2), vp(d2), vp(d2), vp(q2)))
    s, q = s2, q2
    e("v_add_f32 %s, %s, %s" % (v(s), v(s2), v(s2 + 1)))
    e("v_add_f32 %s, %s, %s" % (v(q), v(q2), v(q2 + 1)))
    allreduce("add", [s, q], [t, t2])
    e("v_mul_f32 %s, %s, %s" % (v(s), fh(1.0 / 512), v(s)))
    e("v_mul_f32 %s, %s, %s" % (v(q), fh(1.0 / 512), v(q)))
    e("v_fma_f32 %s, -%s, %s, %s" % (v(q), v(s), v(s), v(q)))
    e("v_max_f32 %s, 0, %s" % (v(q), v(q)))
    e("v_add_f32 %s, s%d, %s" % (v(m), sPIV, v(s)))
    round_bf16_pair(m, q, t)
    e("v_add_f32 %s, %s, %s" % (v(q), fh(1e-5), v(q)))
    e("v_cvt_pk_bf16_f32 %s, %s, %s" % (v(t), v(q), v(q)))
    e("v_lshlrev_b32 %s, 16, %s" % (v(q), v(t)))
    e("v_sqrt_f32 %s, %s" % (v(q), v(q)))
    e("v_xor_b32 %s, 0x80000000, %s" % (v(m), v(m)))
    e("v_cvt_pk_bf16_f32 %s, %s, %s" % (v(t), v(q), v(q)))
    e("v_lshlrev_b32 %s, 16, %s" % (v(q), v(t)))
    e("v_rcp_f32 %s, %s" % (v(r), v(q)))
    regs = ([] if only_extra else [X + i for i in range(0, 8, 2)]) + list(extra)
    for a in regs:
        e("v_pk_add_f32 %s, %s, %s op_sel_hi:[1,0]" % (vp(a), vp(a), vp(m)))
        round_bf16_pair(a, a + 1, t)
        e("v_pk_mul_f32 %s, %s, %s op_sel_hi:[1,0]" % (vp(a), vp(a), vp(r)))
        round_bf16_pair(a, a + 1, t)

poll_id = [0]
def poll(loads, tags, tmin, tmax, dual=False):
    pid = poll_id[0]; poll_id[0] += 1
    e("s_mov_b32 s%d, 0x100000" % sCNT)
    lab("POLL%d" % pid)
    if dual:
        e("s_and_b32 s%d, s%d, 7" % (sT0, sCNT))
        e("s_or_b32 s%d, s%d, s%d" % (sT0, sT0, sLAY2))
        e("s_cmp_eq_u32 s%d, 1" % sT0)
        e("s_cselect_b64 %s, %s, %s" % (sp(sPB), sp(sWS2), sp(P_WS)))
    for ld in loads:
        e(ld)
    e("s_waitcnt vmcnt(0)")
    tg = list(tags)
    first = tg[:3] if len(tg) >= 3 else tg[:2]
    rest = tg[len(first):]
    if len(first) == 3:
        e("v_min3_u32 %s, %s, %s, %s" % (v(tmin), v(first[0]), v(first[1]), v(first[2])))
        e("v_max3_u32 %s, %s, %s, %s" % (v(tmax), v(first[0]), v(first[1]), v(first[2])))
    else:
        e("v_min_u32 %s, %s, %s" % (v(tmin), v(first[0]), v(first[1])))
        e("v_max_u32 %s, %s, %s" % (v(tmax), v(first[0]), v(first[1])))
    while rest:
        if len(rest) >= 2:
            e("v_min3_u32 %s, %s, %s, %s" % (v(tmin), v(tmin), v(rest[0]), v(rest[1])))
            e("v_max3_u32 %s, %s, %s, %s" % (v(tmax), v(tmax), v(rest[0]), v(rest[1])))
            rest = rest[2:]
        else:
            e("v_min_u32 %s, %s, %s" % (v(tmin), v(tmin), v(rest[0])))
            e("v_max_u32 %s, %s, %s" % (v(tmax), v(tmax), v(rest[0])))
            rest = rest[1:]
    e("v_cmp_ne_u32 vcc, s%d, %s" % (sTAG, v(tmin)))
    e("v_cmp_ne_u32 %s, s%d, %s" % (sp(sT0), sTAG, v(tmax)))
    nop(1)
    e("s_or_b64 vcc, vcc, %s" % sp(sT0))
    e("s_cmp_eq_u64 vcc, 0")
    e("s_cbranch_scc1 POLLX%d" % pid)
    e("s_sub_u32 s%d, s%d, 1" % (sCNT, sCNT))
    e("s_cbranch_scc0 POLL%d" % pid)
    lab("POLLX%d" % pid)

def mask_begin(m):
    e("s_mov_b64 %s, exec" % sp(sEX))
    if m == 0xffffffff:
        e("s_mov_b32 exec_hi, 0")
    else:
        e("s_mov_b64 exec, 0x%x" % m)
def mask_end():
    e("s_mov_b64 exec, %s" % sp(sEX))

def sacc(terms, const):
    first = True
    for reg, sh in terms:
        if first:
            e("s_lshl_b32 s%d, s%d, %d" % (sT0, reg, sh)); first = False
        else:
            e("s_lshl_b32 s%d, s%d, %d" % (sT1, reg, sh))
            e("s_add_u32 s%d, s%d, s%d" % (sT0, sT0, sT1))
    if const:
        e("s_add_u32 s%d, s%d, 0x%x" % (sT0, sT0, const))

def gstore(addr, data):
    e("global_store_dwordx4 %s, %s, %s" % (addr, data, sp(P_WS)))
    e("global_store_dwordx4 %s, %s, %s sc1" % (addr, data, sp(sWS2)))

gst_id = [0]
def fstore(addr, data):
    i = gst_id[0]; gst_id[0] += 1
    e("s_cmp_lg_u32 s%d, 0" % sFAST)
    e("s_cbranch_scc1 GSF%d" % i)
    e("global_store_dwordx4 %s, %s, %s sc1" % (addr, data, sp(P_WS)))
    e("s_branch GSD%d" % i)
    lab("GSF%d" % i)
    e("global_store_dwordx4 %s, %s, %s" % (addr, data, sp(P_WS)))
    lab("GSD%d" % i)

def bcast_sel(reg):
    return (reg & ~1, reg & 1)

def load_mixer_weights(tidreg):
    e("v_lshlrev_b32 v6, 1, %s" % tidreg)
    for k in range(7):
        e("ds_read_u16 %s, v6 offset:%d" % (v(vW1 + k), LW1 + 512 * k))
        e("ds_read_u16 %s, v6 offset:%d" % (v(vB1 + k), LB1 + 512 * k))
        e("ds_read_u16 %s, v6 offset:%d" % (v(vW2 + k), LW2 + 512 * k))
    e("v_mov_b32 %s, 0" % v(vW1 + 7))
    e("v_mov_b32 %s, 0" % v(vB1 + 7))
    e("v_mov_b32 %s, 0" % v(vW2 + 7))
    e("v_mov_b32 %s, s%d" % (v(cC3), sC3))
    e("v_mov_b32 %s, s%d" % (v(cC3 + 1), sC3))
    e("s_waitcnt lgkmcnt(0)")
    for k in range(7):
        for b in (vW1, vB1, vW2):
            e("v_lshlrev_b32 %s, 16, %s" % (v(b + k), v(b + k)))

def mixer(H, hsel, Y):
    a, t, t2 = T + 24, T + 26, T + 28
    for k in range(0, 8, 2):
        e("v_pk_mul_f32 %s, %s, %s op_sel:[0,%d] op_sel_hi:[1,%d]" % (vp(a), vp(vW1 + k), vp(H), hsel, hsel))
        round_bf16_pair(a, a + 1, t2)
        e("v_pk_add_f32 %s, %s, %s" % (vp(a), vp(a), vp(vB1 + k)))
        round_bf16_pair(a, a + 1, t2)
        e("v_pk_mul_f32 %s, %s, %s" % (vp(t), vp(a), vp(a)))
        e("v_pk_fma_f32 %s, %s, %s, %s op_sel_hi:[1,0,1]" % (vp(t), vp(t), sp(sC4), vp(cC3)))
        e("v_pk_mul_f32 %s, %s, %s" % (vp(t), vp(t), vp(a)))
        e("v_exp_f32 %s, %s" % (v(t), v(t)))
        e("v_exp_f32 %s, %s" % (v(t + 1), v(t + 1)))
        nop(1)
        e("v_pk_add_f32 %s, %s, 1.0 op_sel_hi:[1,0]" % (vp(t), vp(t)))
        e("v_rcp_f32 %s, %s" % (v(t), v(t)))
        e("v_rcp_f32 %s, %s" % (v(t + 1), v(t + 1)))
        nop(1)
        e("v_pk_mul_f32 %s, %s, %s" % (vp(a), vp(a), vp(t)))
        round_bf16_pair(a, a + 1, t2)
        if k == 0:
            e("v_pk_mul_f32 %s, %s, %s" % (vp(Y), vp(a), vp(vW2 + k)))
        else:
            e("v_pk_fma_f32 %s, %s, %s, %s" % (vp(Y), vp(a), vp(vW2 + k), vp(Y)))
    e("v_add_f32 %s, %s, %s" % (v(Y), v(Y), v(Y + 1)))
    allreduce("add", [Y], [T + 24])

hdr = open("cdna_kernels/%s.s.ref" % NAME).read().split("\n")
for ln in hdr:
    if ln.startswith("; @launch"):
        L.append("; @launch grid=(256,1,1) block=(512,1,1) lds=%d" % LDS_TOTAL)
        break
    L.append(ln)
L.append('.amdgcn_target "amdgcn-amd-amdhsa--gfx950"')
L.append(".text")
L.append(".globl %s_kernel" % NAME)
L.append(".p2align 8")
L.append(".type %s_kernel,@function" % NAME)
lab("%s_kernel" % NAME)

e("s_cmp_ge_u32 s2, 256")
e("s_cbranch_scc1 END")
e("s_load_dwordx16 s[16:31], s[0:1], 0")
e("s_load_dwordx8 s[32:39], s[0:1], 64")
e("s_load_dwordx2 s[40:41], s[0:1], 96")
e("v_and_b32 %s, 63, v0" % v(vL))
e("v_lshrrev_b32 v2, 6, v0")
e("s_and_b32 s%d, s2, 7" % sG)
e("s_lshr_b32 s%d, s2, 3" % sC)
e("v_readfirstlane_b32 s%d, v2" % sWAVE)
e("v_lshlrev_b32 %s, 4, %s" % (v(aL16), v(vL)))
e("v_lshlrev_b32 %s, 5, %s" % (v(aL32), v(vL)))
e("s_mov_b32 s%d, 0" % sLAY)
e("s_and_b32 s%d, s%d, 7" % (sCB, sC))
e("s_lshr_b32 s%d, s%d, 3" % (sRB, sC))
e("s_mov_b32 s%d, s2" % sPI)
e("s_mov_b32 s%d, %s" % (sC1, fh(LOG2E)))
e("s_mov_b32 s%d, %s" % (sC2, fh(SCALE)))
GC0 = -2.0 * 0.7978845608028654 * LOG2E
GC1 = GC0 * 0.044715
e("s_mov_b32 s%d, %s" % (sC3, fh(GC0)))
e("s_mov_b32 s%d, %s" % (sC4, fh(GC1)))
e("s_waitcnt lgkmcnt(0)")
e("s_cmp_ge_u32 s%d, 4" % sWAVE)
e("s_cbranch_scc1 LOADER")
e("s_load_dword s%d, %s, 0" % (sTAG, sp(P_WS)))

XV = T
XL = T + 8
if TS:
    e("s_memtime s[98:99]" if TS != 9999 else "s_memrealtime s[98:99]")
    e("s_waitcnt lgkmcnt(0)")
    e("s_mov_b32 s%d, s98" % (sTSB + 2 * NTS))
e("s_cmp_lg_u32 s%d, 0" % sWAVE)
e("s_cbranch_scc1 NOX")
e("global_load_dwordx4 %s, %s, %s" % (vr(XL, 4), v(aL16), sp(P_X)))
lab("NOX")
sacc([(sG, 24), (sC, 15), (sWAVE, 13)], W0 * 256)
e("v_and_b32 v3, 15, %s" % v(vL))
e("v_lshrrev_b32 v4, 4, %s" % v(vL))
e("v_lshlrev_b32 v2, 8, v3")
e("v_lshl_add_u32 v2, v4, 4, v2")
e("v_add_u32 v2, s%d, v2" % sT0)
e("v_add_u32 v5, 0x1000, v2")
for Tt in range(2):
    for s in range(4):
        e("global_load_dwordx4 %s, %s, %s offset:%d nt" % (vr(vK + Tt * 16 + s * 4, 4), "v2" if Tt == 0 else "v5", sp(P_K), s * 64))
e("v_mov_b32 v6, 0")
e("global_load_ushort %s, v6, %s" % (v(vB2), sp(P_B2)))
e("s_lshl_b32 s%d, s%d, 2" % (sT0, sPI))
e("v_mov_b32 v6, s%d" % sT0)
e("global_load_dword %s, v6, %s" % (v(vXR), sp(P_X)))

sacc([(sG, 14), (sWAVE, 10)], QS_OFF)
e("v_add_u32 %s, s%d, %s" % (v(aQS), sT0, v(aL16)))
sacc([(sG, 14), (sRB, 12), (sCB, 9), (sWAVE, 7)], QS_OFF)
e("v_add_u32 %s, s%d, %s" % (v(aQW), sT0, v(aL32)))
e("v_lshrrev_b32 v6, 2, v3")
e("v_lshlrev_b32 v6, 8, v6")
e("v_lshl_add_u32 v6, v4, 4, v6")
e("v_add_u32 %s, 0x%x, v6" % (v(aQF), LQ))
sacc([(sG, 17), (sC, 12)], PO_OFF)
e("v_lshlrev_b32 v6, 4, v0")
e("v_add_u32 %s, s%d, v6" % (v(aPOW), sT0))
sacc([(sG, 17), (sC, 12)], OP_OFF)
e("v_add_u32 %s, s%d, v6" % (v(aOPW), sT0))
sacc([(sG, 11), (sC, 6), (sWAVE, 4)], ST_OFF)
e("v_mov_b32 %s, s%d" % (v(aSTW), sT0))
e("s_lshr_b32 s%d, s%d, 3" % (sT2, sC))
sacc([(sG, 11), (sT2, 4)], ST_OFF)
e("v_lshrrev_b32 v6, 1, %s" % v(vL))
e("v_lshlrev_b32 v7, 6, v6")
e("v_add_u32 %s, s%d, v7" % (v(aSTR), sT0))
sacc([(sG, 17), (sC, 7), (sWAVE, 5)], PO_OFF)
e("v_lshlrev_b32 v7, 12, v6")
e("v_and_b32 v6, 1, %s" % v(vL))
e("v_lshl_add_u32 v7, v6, 4, v7")
e("v_add_u32 %s, s%d, v7" % (v(aPOR), sT0))
sacc([(sG, 17), (sC, 7)], OP_OFF)
e("v_lshrrev_b32 v6, 3, %s" % v(vL))
e("v_lshlrev_b32 v7, 12, v6")
e("v_and_b32 v8, 7, %s" % v(vL))
e("v_lshl_add_u32 v7, v8, 4, v7")
e("v_add_u32 %s, s%d, v7" % (v(aOPR), sT0))
sacc([(sC, 10), (sG, 7)], XP_OFF)
e("v_lshlrev_b32 v7, 15, v6")
e("v_lshl_add_u32 v7, v8, 4, v7")
e("v_add_u32 %s, s%d, v7" % (v(aXPW), sT0))
sacc([(sG, 15), (sC, 10)], XP_OFF)
e("v_add_u32 %s, s%d, %s" % (v(aXPR), sT0, v(aL16)))
sacc([(sG, 11), (sC, 6)], X1_OFF)
e("v_lshlrev_b32 v7, 3, v8")
e("v_add_u32 %s, s%d, v7" % (v(aX1W), sT0))
sacc([(sC, 6)], LXR)
e("v_add_u32 %s, s%d, v7" % (v(aXRR), sT0))
sacc([(sG, 11)], X1_OFF)
e("v_add_u32 %s, s%d, %s" % (v(aX1R), sT0, v(aL32)))
sacc([(sPI, 3)], X1_OFF)
e("v_lshlrev_b32 v6, 11, %s" % v(vL))
e("v_add_u32 %s, s%d, v6" % (v(aXW), sT0))
e("v_lshrrev_b32 v6, 2, v3")
e("v_lshl_add_u32 v6, v4, 2, v6")
e("v_lshlrev_b32 v7, 8, v6")
e("v_and_b32 v6, 7, v6")
e("v_lshl_add_u32 v7, v6, 5, v7")
e("v_and_b32 v6, 3, %s" % v(vL))
e("v_lshl_add_u32 v7, v6, 3, v7")
e("s_lshl_b32 s%d, s%d, 13" % (sT0, sWAVE))
e("v_add_u32 %s, s%d, v7" % (v(aVT), sT0))
sacc([(sWAVE, 11)], LSC)
e("v_lshlrev_b32 v6, 2, v3")
e("v_lshl_add_u32 v6, v4, 9, v6")
e("v_add_u32 %s, s%d, v6" % (v(aSCW), sT0))
sacc([(sWAVE, 9)], LSC)
e("v_lshlrev_b32 v6, 3, %s" % v(vL))
e("v_add_u32 %s, s%d, v6" % (v(aSCR), sT0))
e("s_add_u32 s%d, s%d, 0x%x" % (sWS2, P_WS, SDELTA))
e("s_addc_u32 s%d, s%d, 0" % (sWS2 + 1, P_WS + 1))
e("s_waitcnt lgkmcnt(0)")
e("s_add_u32 s%d, s%d, 1" % (sTAG, sTAG))

lab("LAYER")
e("s_lshl_b32 s%d, s%d, 3" % (sLAY2, sLAY))
e("s_cmp_lg_u32 s%d, 0" % sWAVE)
e("s_cbranch_scc1 QW")
e("s_cmp_lg_u32 s%d, 0" % sLAY)
e("s_cbranch_scc1 QPOLL")
e("s_waitcnt vmcnt(10)")
for i in range(4):
    e("v_lshlrev_b32 %s, 16, %s" % (v(XV + 2 * i), v(XL + i)))
    e("v_and_b32 %s, 0xffff0000, %s" % (v(XV + 2 * i + 1), v(XL + i)))
e("s_branch QLN")
lab("QPOLL")
G0 = T + 8
e("v_add_u32 v6, 0x%x, %s" % (X2_OFF - X1_OFF, v(aX1R)))
e("s_sub_u32 s%d, s%d, 1" % (sTAG, sTAG))
poll(["global_load_dwordx4 %s, v6, %s sc1" % (vr(G0, 4), sp(P_WS)),
      "global_load_dwordx4 %s, v6, %s offset:16 sc1" % (vr(G0 + 4, 4), sp(P_WS))],
     [G0 + 1, G0 + 3, G0 + 5, G0 + 7], T + 16, T + 17)
e("s_add_u32 s%d, s%d, 1" % (sTAG, sTAG))
for i in range(4):
    e("v_lshlrev_b32 %s, 16, %s" % (v(XV + 2 * i), v(G0 + 2 * i)))
    e("v_and_b32 %s, 0xffff0000, %s" % (v(XV + 2 * i + 1), v(G0 + 2 * i)))
lab("QLN")
ts()
e("v_add_u32 v6, 0x%x, %s" % (LXR, v(aL32)))
e("ds_write_b128 v6, %s" % vr(XV, 4))
e("ds_write_b128 v6, %s offset:16" % vr(XV + 4, 4))
layernorm(XV, [], T + 16)
e("v_add_u32 v6, 0x%x, %s" % (LH, v(aL32)))
e("ds_write_b128 v6, %s" % vr(XV, 4))
e("ds_write_b128 v6, %s offset:16" % vr(XV + 4, 4))
e("s_waitcnt lgkmcnt(0)")
lab("QW")
sacc([(sRB, 9)], LH)
e("v_lshrrev_b32 v6, 2, %s" % v(vL))
e("v_lshlrev_b32 v6, 5, v6")
e("v_add_u32 v6, s%d, v6" % sT0)
e("s_barrier")
e("ds_read_b128 %s, v6" % vr(XV, 4))
e("ds_read_b128 %s, v6 offset:16" % vr(XV + 4, 4))
lab("QG")
e("s_cmp_lg_u32 s%d, 0" % sLAY)
e("s_cbranch_scc1 QG2")
sacc([(sWAVE, 5)], LWQ)
e("v_lshrrev_b32 v6, 2, %s" % v(vL))
e("v_lshlrev_b32 v6, 10, v6")
e("v_and_b32 v7, 3, %s" % v(vL))
e("v_lshl_add_u32 v6, v7, 3, v6")
e("v_add_u32 v6, s%d, v6" % sT0)
WT = T + 16
for i in range(8):
    e("ds_read_b64 %s, v6 offset:%d" % (vr(WT + 2 * i, 2), 128 * i))
e("s_waitcnt lgkmcnt(0)")
for i in range(16):
    e("v_lshlrev_b32 %s, 16, %s" % (v(vWQF + 2 * i), v(WT + i)))
    e("v_and_b32 %s, 0xffff0000, %s" % (v(vWQF + 2 * i + 1), v(WT + i)))
lab("QG2")
e("s_waitcnt lgkmcnt(0)")
A = T + 32
U = T + 36
for i in range(8):
    hb, hs = bcast_sel(XV + i)
    for hlf in range(2):
        w = vWQF + 4 * i + 2 * hlf
        if i == 0:
            e("v_pk_mul_f32 %s, %s, %s op_sel:[%d,0] op_sel_hi:[%d,1]" % (vp(A + 2 * hlf), vp(hb), vp(w), hs, hs))
        else:
            e("v_pk_fma_f32 %s, %s, %s, %s op_sel:[%d,0,0] op_sel_hi:[%d,1,1]" % (vp(A + 2 * hlf), vp(hb), vp(w), vp(A + 2 * hlf), hs, hs))
allreduce("add", [A, A + 1, A + 2, A + 3], [U, U + 1, U + 2, U + 3], rors=(4, 8))
QP = T + 40
for i in range(4):
    e("v_mov_b32 %s, %s" % (v(QP + 2 * i), v(A + i)))
    e("v_mov_b32 %s, s%d" % (v(QP + 2 * i + 1), sTAG))
mask_begin(15)
e("s_cmp_lg_u32 s%d, 0" % sLAY)
e("s_cbranch_scc1 QST1")
e("global_store_dwordx4 %s, %s, %s" % (v(aQW), vr(QP, 4), sp(P_WS)))
e("global_store_dwordx4 %s, %s, %s offset:16" % (v(aQW), vr(QP + 4, 4), sp(P_WS)))
e("global_store_dwordx4 %s, %s, %s sc1" % (v(aQW), vr(QP, 4), sp(sWS2)))
e("global_store_dwordx4 %s, %s, %s offset:16 sc1" % (v(aQW), vr(QP + 4, 4), sp(sWS2)))
e("s_branch QST2")
lab("QST1")
e("s_cmp_lg_u32 s%d, 0" % sFAST)
e("s_cbranch_scc1 QST3")
e("global_store_dwordx4 %s, %s, %s sc1" % (v(aQW), vr(QP, 4), sp(P_WS)))
e("global_store_dwordx4 %s, %s, %s offset:16 sc1" % (v(aQW), vr(QP + 4, 4), sp(P_WS)))
e("s_branch QST2")
lab("QST3")
e("global_store_dwordx4 %s, %s, %s" % (v(aQW), vr(QP, 4), sp(P_WS)))
e("global_store_dwordx4 %s, %s, %s offset:16" % (v(aQW), vr(QP + 4, 4), sp(P_WS)))
lab("QST2")
mask_end()
ts()
e("s_cmp_lg_u32 s%d, 0" % sLAY)
e("s_cbranch_scc1 NOMW")
load_mixer_weights("v0")
lab("NOMW")
G0 = T
for k in range(1, 4):
    e("v_add_u32 %s, 0x%x, %s" % (v(T + 32 + k), 0x1000 * k, v(aQS)))
loads = []; tags = []
for k in range(4):
    loads.append("global_load_dwordx4 %s, %s, %s sc1" % (vr(G0 + 4 * k, 4), v(aQS) if k == 0 else v(T + 32 + k), sp(sPB)))
    tags += [G0 + 4 * k + 1, G0 + 4 * k + 3]
poll(loads, tags, T + 16, T + 17, dual=True)
ts()
e("v_add_f32 %s, %s, %s" % (v(G0), v(G0), v(G0 + 4)))
e("v_add_f32 %s, %s, %s" % (v(G0 + 2), v(G0 + 2), v(G0 + 6)))
e("v_add_f32 %s, %s, %s" % (v(G0 + 8), v(G0 + 8), v(G0 + 12)))
e("v_add_f32 %s, %s, %s" % (v(G0 + 10), v(G0 + 10), v(G0 + 14)))
e("v_add_f32 %s, %s, %s" % (v(G0), v(G0), v(G0 + 8)))
e("v_add_f32 %s, %s, %s" % (v(G0 + 2), v(G0 + 2), v(G0 + 10)))
e("v_cvt_pk_bf16_f32 %s, %s, %s" % (v(G0), v(G0), v(G0 + 2)))
e("v_lshlrev_b32 v6, 2, v0")
e("v_add_u32 v6, 0x%x, v6" % LQ)
e("ds_write_b32 v6, %s" % v(G0))
e("s_waitcnt lgkmcnt(0)")
lab("SW")
e("s_barrier")
QL = T
for s in range(4):
    e("ds_read_b128 %s, %s offset:%d" % (vr(QL + 4 * s, 4), v(aQF), 64 * s))
e("s_waitcnt vmcnt(0) lgkmcnt(0)")
SC0 = T + 32
for s in range(4):
    for Tt in range(2):
        c = "0" if s == 0 else vr(SC0 + 4 * Tt, 4)
        e("v_mfma_f32_16x16x32_bf16 %s, %s, %s, %s" % (vr(SC0 + 4 * Tt, 4), vr(vK + Tt * 16 + s * 4, 4), vr(QL + 4 * s, 4), c))
nop(8)
tmp = T + 40
for i in range(0, 8, 2):
    round_bf16_pair(SC0 + i, SC0 + i + 1, tmp)
    e("v_pk_mul_f32 %s, %s, %s op_sel_hi:[1,0]" % (vp(SC0 + i), vp(SC0 + i), sp(sC2)))
    round_bf16_pair(SC0 + i, SC0 + i + 1, tmp)
M = T + 41
e("v_max3_f32 %s, %s, %s, %s" % (v(M), v(SC0), v(SC0 + 1), v(SC0 + 2)))
e("v_max3_f32 %s, %s, %s, %s" % (v(M), v(M), v(SC0 + 3), v(SC0 + 4)))
e("v_max3_f32 %s, %s, %s, %s" % (v(M), v(M), v(SC0 + 5), v(SC0 + 6)))
e("v_max_f32 %s, %s, %s" % (v(M), v(M), v(SC0 + 7)))
allreduce("max", [M], [tmp], rors=())
MM = T + 42
e("v_mul_f32 %s, s%d, %s" % (v(MM), sC1, v(M)))
for i in range(8):
    e("v_fma_f32 %s, %s, s%d, -%s" % (v(SC0 + i), v(SC0 + i), sC1, v(MM)))
for i in range(8):
    e("v_exp_f32 %s, %s" % (v(SC0 + i), v(SC0 + i)))
nop(1)
PA = T + 44
for i in range(4):
    e("v_cvt_pk_bf16_f32 %s, %s, %s" % (v(PA + i), v(SC0 + 2 * i), v(SC0 + 2 * i + 1)))
e("s_cmp_lg_u32 s%d, 0" % sLAY)
e("s_cbranch_scc1 SV")
e("s_barrier")
for Td in range(8):
    e("v_xor_b32 v6, 0x%x, %s" % (Td << 5, v(aVT)))
    e("ds_read_b64_tr_b16 %s, v6" % vr(vVF + 4 * Td, 2))
    e("ds_read_b64_tr_b16 %s, v6 offset:4096" % vr(vVF + 4 * Td + 2, 2))
e("s_waitcnt lgkmcnt(0)")
lab("SV")
ts()
D0 = T
for Td in range(8):
    e("v_mfma_f32_16x16x32_bf16 %s, %s, %s, 0" % (vr(D0 + 4 * Td, 4), vr(PA, 4), vr(vVF + 4 * Td, 4)))
LS = T + 43
e("v_pk_add_f32 %s, %s, %s" % (vp(SC0), vp(SC0), vp(SC0 + 2)))
e("v_pk_add_f32 %s, %s, %s" % (vp(SC0 + 4), vp(SC0 + 4), vp(SC0 + 6)))
e("v_pk_add_f32 %s, %s, %s" % (vp(SC0), vp(SC0), vp(SC0 + 4)))
e("v_add_f32 %s, %s, %s" % (v(LS), v(SC0), v(SC0 + 1)))
allreduce("add", [LS], [tmp], rors=())
sacc([(sWAVE, 5)], LSS)
e("v_lshlrev_b32 v6, 1, %s" % v(vL))
e("v_add_u32 v6, s%d, v6" % sT0)
e("v_mov_b32 %s, %s" % (v(T + 40), v(M)))
e("v_mov_b32 %s, %s" % (v(T + 41), v(LS)))
e("s_mov_b64 %s, exec" % sp(sEX))
e("s_mov_b64 exec, 0x1111")
e("ds_write_b64 v6, %s" % vr(T + 40, 2))
e("s_mov_b64 exec, %s" % sp(sEX))
for Td in range(8):
    e("ds_write_b32 %s, %s offset:%d" % (v(aSCW), v(D0 + 4 * Td), Td * 64))
e("s_waitcnt lgkmcnt(0)")
e("s_barrier")
R = T
for w_ in range(4):
    e("ds_read_b64 %s, %s offset:%d" % (vr(R + 2 * w_, 2), v(aSCR), 2048 * w_))
sacc([(sWAVE, 3)], LSS)
e("v_mov_b32 v6, s%d" % sT0)
for w_ in range(4):
    e("ds_read_b64 %s, v6 offset:%d" % (vr(R + 8 + 2 * w_, 2), 32 * w_))
e("v_mov_b32 v7, 0x%x" % LFL)
e("ds_read_b32 v7, v7")
e("s_waitcnt lgkmcnt(0)")
e("v_readfirstlane_b32 s%d, v7" % sFAST)
MC, E0, LC, O0, O1 = T + 16, T + 17, T + 22, T + 24, T + 26
e("v_max3_f32 %s, %s, %s, %s" % (v(MC), v(R + 8), v(R + 10), v(R + 12)))
e("v_max_f32 %s, %s, %s" % (v(MC), v(MC), v(R + 14)))
for w_ in range(4):
    e("v_sub_f32 %s, %s, %s" % (v(E0 + w_), v(R + 8 + 2 * w_), v(MC)))
    e("v_mul_f32 %s, s%d, %s" % (v(E0 + w_), sC1, v(E0 + w_)))
for w_ in range(4):
    e("v_exp_f32 %s, %s" % (v(E0 + w_), v(E0 + w_)))
nop(1)
e("v_mul_f32 %s, %s, %s" % (v(LC), v(E0), v(R + 9)))
e("v_mul_f32 %s, %s, %s" % (v(O0), v(E0), v(R)))
e("v_mul_f32 %s, %s, %s" % (v(O1), v(E0), v(R + 1)))
for w_ in range(1, 4):
    e("v_fmac_f32 %s, %s, %s" % (v(LC), v(E0 + w_), v(R + 9 + 2 * w_)))
    e("v_fmac_f32 %s, %s, %s" % (v(O0), v(E0 + w_), v(R + 2 * w_)))
    e("v_fmac_f32 %s, %s, %s" % (v(O1), v(E0 + w_), v(R + 2 * w_ + 1)))
e("v_mov_b32 %s, s%d" % (v(O0 + 1), sTAG))
e("v_mov_b32 %s, s%d" % (v(O1 + 1), sTAG))
fstore(v(aPOW), vr(O0, 4))
S4 = T + 28
e("v_mov_b32 %s, %s" % (v(S4), v(MC)))
e("v_mov_b32 %s, s%d" % (v(S4 + 1), sTAG))
e("v_mov_b32 %s, %s" % (v(S4 + 2), v(LC)))
e("v_mov_b32 %s, s%d" % (v(S4 + 3), sTAG))
mask_begin(1)
fstore(v(aSTW), vr(S4, 4))
mask_end()
ts()
e("s_cmp_lg_u32 s%d, 0" % sLAY)
e("s_cbranch_scc1 OPH")
e("s_barrier")
sacc([(sWAVE, 12)], LWO)
e("v_add_u32 v6, s%d, %s" % (sT0, v(aL16)))
WT = T + 32
for i in range(4):
    e("ds_read_b128 %s, v6 offset:%d" % (vr(WT + 4 * i, 4), 1024 * i))
e("s_waitcnt lgkmcnt(0)")
for i in range(16):
    e("v_lshlrev_b32 %s, 16, %s" % (v(vWOF + 2 * i), v(WT + i)))
    e("v_and_b32 %s, 0xffff0000, %s" % (v(vWOF + 2 * i + 1), v(WT + i)))
e("v_lshlrev_b32 %s, 16, %s" % (v(vB2), v(vB2)))
e("v_and_b32 %s, 0xffff0000, %s" % (v(vXR + 1), v(vXR)))
e("v_lshlrev_b32 %s, 16, %s" % (v(vXR), v(vXR)))
lab("OPH")
SR, PR = T, T + 4
poll(["global_load_dwordx4 %s, %s, %s sc1" % (vr(SR, 4), v(aSTR), sp(P_WS)),
      "global_load_dwordx4 %s, %s, %s sc1" % (vr(PR, 4), v(aPOR), sp(P_WS))],
     [SR + 1, SR + 3, PR + 1, PR + 3], T + 8, T + 9)
ts()
Mx = T + 8
e("v_mov_b32 %s, %s" % (v(Mx), v(SR)))
allreduce("max", [Mx], [T + 9], rors=(2, 4, 8))
Ee = T + 10
e("v_sub_f32 %s, %s, %s" % (v(Ee), v(SR), v(Mx)))
e("v_mul_f32 %s, s%d, %s" % (v(Ee), sC1, v(Ee)))
e("v_exp_f32 %s, %s" % (v(Ee), v(Ee)))
nop(1)
A0, A1, A2 = T + 12, T + 13, T + 14
e("v_mul_f32 %s, %s, %s" % (v(A0), v(Ee), v(SR + 2)))
e("v_mul_f32 %s, %s, %s" % (v(A1), v(Ee), v(PR)))
e("v_mul_f32 %s, %s, %s" % (v(A2), v(Ee), v(PR + 2)))
allreduce("add", [A0, A1, A2], [T + 16, T + 17, T + 18], rors=(2, 4, 8))
e("v_rcp_f32 %s, %s" % (v(A0), v(A0)))
nop(1)
e("v_mul_f32 %s, %s, %s" % (v(A1), v(A1), v(A0)))
e("v_mul_f32 %s, %s, %s" % (v(A2), v(A2), v(A0)))
round_bf16_pair(A1, A2, T + 16)
OO = T + 20
nop(2)
e("v_mov_b32_dpp %s, %s quad_perm:[0,0,2,2] %s" % (v(OO), v(A1), DPPM))
e("v_mov_b32_dpp %s, %s quad_perm:[0,0,2,2] %s" % (v(OO + 1), v(A2), DPPM))
e("v_mov_b32_dpp %s, %s quad_perm:[1,1,3,3] %s" % (v(OO + 2), v(A1), DPPM))
e("v_mov_b32_dpp %s, %s quad_perm:[1,1,3,3] %s" % (v(OO + 3), v(A2), DPPM))
AC = T + 24
for i in range(4):
    ob, os_ = bcast_sel(OO + i)
    for k in range(4):
        w = vWOF + 8 * i + 2 * k
        if i == 0:
            e("v_pk_mul_f32 %s, %s, %s op_sel:[%d,0] op_sel_hi:[%d,1]" % (vp(AC + 2 * k), vp(ob), vp(w), os_, os_))
        else:
            e("v_pk_fma_f32 %s, %s, %s, %s op_sel:[%d,0,0] op_sel_hi:[%d,1,1]" % (vp(AC + 2 * k), vp(ob), vp(w), vp(AC + 2 * k), os_, os_))
sacc([(sWAVE, 11)], LOC)
e("v_add_u32 v6, s%d, %s" % (sT0, v(aL32)))
e("ds_write_b128 v6, %s" % vr(AC, 4))
e("ds_write_b128 v6, %s offset:16" % vr(AC + 4, 4))
e("v_lshlrev_b32 v6, 3, v0")
e("v_add_u32 v6, 0x%x, v6" % LOC)
e("s_waitcnt lgkmcnt(0)")
e("s_barrier")
R = T
for w_ in range(4):
    e("ds_read_b64 %s, v6 offset:%d" % (vr(R + 2 * w_, 2), 2048 * w_))
e("s_waitcnt lgkmcnt(0)")
O4 = T + 8
e("v_pk_add_f32 %s, %s, %s" % (vp(R), vp(R), vp(R + 2)))
e("v_pk_add_f32 %s, %s, %s" % (vp(R + 4), vp(R + 4), vp(R + 6)))
e("v_add_f32 %s, %s, %s" % (v(O4), v(R), v(R + 4)))
e("v_add_f32 %s, %s, %s" % (v(O4 + 2), v(R + 1), v(R + 5)))
e("v_mov_b32 %s, s%d" % (v(O4 + 1), sTAG))
e("v_mov_b32 %s, s%d" % (v(O4 + 3), sTAG))
fstore(v(aOPW), vr(O4, 4))
ts()
e("s_cmp_lg_u32 s%d, 0" % sWAVE)
e("s_cbranch_scc1 MW")
XR = T + 16
AD = T + 40
for k in range(1, 4):
    e("v_add_u32 %s, 0x%x, %s" % (v(AD + k), 0x8000 * k, v(aOPR)))
e("ds_read_b64 %s, %s" % (vr(T + 44, 2), v(aXRR)))
loads = []; tags = []
for k in range(4):
    loads.append("global_load_dwordx4 %s, %s, %s sc1" % (vr(XR + 4 * k, 4), v(aOPR) if k == 0 else v(AD + k), sp(P_WS)))
    tags += [XR + 4 * k + 1, XR + 4 * k + 3]
poll(loads, tags, T + 32, T + 33)
ts()
Y0, Y1 = T + 32, T + 34
e("v_add_f32 %s, %s, %s" % (v(Y0), v(XR), v(XR + 4)))
e("v_add_f32 %s, %s, %s" % (v(Y1), v(XR + 2), v(XR + 6)))
e("v_add_f32 %s, %s, %s" % (v(XR + 8), v(XR + 8), v(XR + 12)))
e("v_add_f32 %s, %s, %s" % (v(XR + 10), v(XR + 10), v(XR + 14)))
e("v_add_f32 %s, %s, %s" % (v(Y0), v(Y0), v(XR + 8)))
e("v_add_f32 %s, %s, %s" % (v(Y1), v(Y1), v(XR + 10)))
allreduce("add", [Y0, Y1], [T + 36, T + 37], rors=(8,))
e("v_mov_b32 %s, s%d" % (v(Y0 + 1), sTAG))
e("v_mov_b32 %s, s%d" % (v(Y1 + 1), sTAG))
e("global_store_dwordx4 %s, %s, %s sc1" % (v(aXPW), vr(Y0, 4), sp(P_WS)))
poll(["global_load_dwordx4 %s, %s, %s sc1" % (vr(XR, 4), v(aXPR), sp(P_WS))], [XR + 1, XR + 3], T + 36, T + 37)
Z0, Z1 = T + 36, T + 37
e("v_mov_b32 %s, %s" % (v(Z0), v(XR)))
e("v_mov_b32 %s, %s" % (v(Z1), v(XR + 2)))
allreduce("add", [Z0, Z1], [T + 38, T + 39], rors=(8,))
round_bf16_pair(Z0, Z1, T + 38)
e("s_waitcnt lgkmcnt(0)")
e("v_pk_add_f32 %s, %s, %s" % (vp(Z0), vp(Z0), vp(T + 44)))
e("v_cvt_pk_bf16_f32 %s, %s, %s" % (v(T + 40), v(Z0), v(Z1)))
e("v_mov_b32 %s, s%d" % (v(T + 41), sTAG))
mask_begin(255)
e("s_cmp_lg_u32 s%d, 0" % sFAST)
e("s_cbranch_scc1 X1F")
e("global_store_dwordx2 %s, %s, %s sc1" % (v(aX1W), vr(T + 40, 2), sp(P_WS)))
e("s_branch X1D")
lab("X1F")
e("global_store_dwordx2 %s, %s, %s" % (v(aX1W), vr(T + 40, 2), sp(P_WS)))
lab("X1D")
mask_end()
e("v_readlane_b32 s%d, %s, s%d" % (sT2, v(T + 40), sG))
nop(2)
e("s_lshl_b32 s%d, s%d, 16" % (sT3, sT2))
e("s_and_b32 s%d, s%d, 0xffff0000" % (sT2, sT2))
e("v_mov_b32 %s, s%d" % (v(vXR), sT3))
e("v_mov_b32 %s, s%d" % (v(vXR + 1), sT2))
ts()
G0 = T + 8
poll(["global_load_dwordx4 %s, %s, %s sc1" % (vr(G0, 4), v(aX1R), sp(P_WS)),
      "global_load_dwordx4 %s, %s, %s offset:16 sc1" % (vr(G0 + 4, 4), v(aX1R), sp(P_WS))],
     [G0 + 1, G0 + 3, G0 + 5, G0 + 7], T + 18, T + 19)
ts()
for i in range(4):
    e("v_lshlrev_b32 %s, 16, %s" % (v(XV + 2 * i), v(G0 + 2 * i)))
    e("v_and_b32 %s, 0xffff0000, %s" % (v(XV + 2 * i + 1), v(G0 + 2 * i)))
H0 = T + 18
e("v_mov_b32 %s, %s" % (v(H0), v(vXR)))
e("v_mov_b32 %s, %s" % (v(H0 + 1), v(vXR + 1)))
layernorm(XV, [H0], T + 24)
layernorm(XV, [H0], T + 24, only_extra=True)
e("v_mov_b32 v6, 0x%x" % LHB)
mask_begin(1)
e("ds_write_b64 v6, %s" % vr(H0, 2))
mask_end()
e("s_waitcnt lgkmcnt(0)")
e("s_barrier")
e("s_branch MG")
lab("MW")
e("v_mov_b32 v6, 0x%x" % LHB)
e("s_barrier")
e("ds_read_b64 %s, v6" % vr(H0, 2))
e("s_waitcnt lgkmcnt(0)")
lab("MG")
ts()
Ya = T + 22
mixer(H0, 0, Ya)
sacc([(sWAVE, 2)], LMC)
e("v_mov_b32 v6, s%d" % sT0)
mask_begin(1)
e("ds_write_b32 v6, %s" % v(Ya))
mask_end()
e("s_waitcnt lgkmcnt(0)")
e("s_barrier")
e("s_cmp_lg_u32 s%d, 0" % sWAVE)
e("s_cbranch_scc1 MSKIP")
e("v_mov_b32 v6, 0x%x" % LMC)
e("ds_read_b128 %s, v6" % vr(T + 24, 4))
e("ds_read_b128 %s, v6 offset:16" % vr(T + 28, 4))
e("s_waitcnt lgkmcnt(0)")
Yb = Ya + 1
e("v_pk_add_f32 %s, %s, %s" % (vp(T + 24), vp(T + 24), vp(T + 26)))
e("v_pk_add_f32 %s, %s, %s" % (vp(T + 28), vp(T + 28), vp(T + 30)))
e("v_add_f32 %s, %s, %s" % (v(Ya), v(T + 24), v(T + 25)))
e("v_add_f32 %s, %s, %s" % (v(Yb), v(T + 28), v(T + 29)))
round_bf16_pair(Ya, Yb, T + 24)
e("v_add_f32 %s, %s, %s" % (v(Ya), v(Ya), v(vB2)))
e("v_add_f32 %s, %s, %s" % (v(Yb), v(Yb), v(vB2)))
round_bf16_pair(Ya, Yb, T + 24)
e("v_pk_add_f32 %s, %s, %s" % (vp(Ya), vp(Ya), vp(vXR)))
e("v_cvt_pk_bf16_f32 %s, %s, %s" % (v(T + 26), v(Ya), v(Yb)))
e("v_mov_b32 %s, s%d" % (v(T + 27), sTAG))
e("s_cmp_lg_u32 s%d, 0" % sLAY)
e("s_cbranch_scc1 FINAL")
e("v_add_u32 v6, 0x%x, %s" % (X2_OFF - X1_OFF, v(aXW)))
mask_begin(255)
e("global_store_dwordx2 v6, %s, %s sc1" % (vr(T + 26, 2), sp(P_WS)))
mask_end()
e("v_lshlrev_b32 %s, 16, %s" % (v(vXR), v(T + 26)))
e("v_and_b32 %s, 0xffff0000, %s" % (v(vXR + 1), v(T + 26)))
e("s_branch MDONE")
lab("FINAL")
e("s_lshl_b32 s%d, s%d, 2" % (sT0, sPI))
e("v_mov_b32 v6, s%d" % sT0)
mask_begin(1)
e("global_store_dword v6, %s, %s" % (v(T + 26), sp(P_OUT)))
e("s_cmp_lg_u32 s2, 0")
e("s_cbranch_scc1 NOEP")
e("v_mov_b32 v6, 0")
e("global_store_dword v6, %s, %s" % (v(T + 27), sp(P_WS)))
lab("NOEP")
mask_end()
lab("MDONE")
ts()
lab("MSKIP")
e("s_add_u32 s%d, s%d, 1" % (sTAG, sTAG))
e("s_add_u32 s%d, s%d, 1" % (sLAY, sLAY))
e("s_cmp_lt_u32 s%d, 2" % sLAY)
e("s_cbranch_scc1 LAYER")

assert ts_count[0] <= NTS, ts_count[0]
if TS == 9999:
    e("s_cmp_lg_u32 s%d, 0" % sWAVE)
    e("s_cbranch_scc1 END")
    mask_begin(1)
    e("s_lshl_b32 s%d, s2, 7" % sT0)
    e("s_add_u32 s%d, s%d, 0x2000000" % (sT0, sT0))
    e("v_mov_b32 v6, s%d" % sT0)
    e("v_mov_b32 v7, s%d" % (sTSB + 2 * NTS))
    e("global_store_dword v6, v7, %s" % sp(P_WS))
    idx = 1
    for lay in range(2):
        for i in range(ts_count[0]):
            e("v_mov_b32 v7, s%d" % (sTSB + lay * NTS + i))
            e("global_store_dword v6, v7, %s offset:%d" % (sp(P_WS), 4 * idx))
            idx += 1
    mask_end()
e("s_branch END")

lab("LOADER")
e("s_sub_u32 s%d, s%d, 4" % (sWAVE, sWAVE))
e("s_load_dword s%d, %s, 0" % (sTAG, sp(P_WS)))
e("s_getreg_b32 s%d, hwreg(HW_REG_XCC_ID)" % sPIV)
e("s_cmp_lg_u32 s%d, 3" % sWAVE)
e("s_cbranch_scc1 NOID")
sacc([(sG, 8), (sC, 3)], XID_OFF)
e("v_mov_b32 v6, s%d" % sT0)
e("v_mov_b32 %s, s%d" % (v(T), sPIV))
e("s_waitcnt lgkmcnt(0)")
e("s_add_u32 s%d, s%d, 1" % (sT0, sTAG))
e("v_mov_b32 %s, s%d" % (v(T + 1), sT0))
mask_begin(1)
e("global_store_dwordx2 v6, %s, %s sc1" % (vr(T, 2), sp(P_WS)))
mask_end()
lab("NOID")
e("s_lshl_b32 s%d, s%d, 10" % (sT1, sWAVE))
e("v_add_u32 v6, s%d, %s" % (sT1, v(aL16)))
e("s_mov_b64 %s, exec" % sp(sEX))
e("s_cmp_lg_u32 s%d, 3" % sWAVE)
e("s_cbranch_scc1 LD_FULL")
e("s_mov_b32 exec_hi, 0")
lab("LD_FULL")
for base, ptr in ((LW1, P_W1), (LB1, P_B1), (LW2, P_W2)):
    e("s_add_u32 s%d, s%d, 0x%x" % (sT3, sT1, base))
    e("s_mov_b32 m0, s%d" % sT3)
    nop(1)
    e("global_load_lds_dwordx4 v6, %s" % sp(ptr))
e("s_mov_b64 exec, %s" % sp(sEX))
e("v_lshrrev_b32 v3, 3, %s" % v(vL))
e("v_lshlrev_b32 v3, 13, v3")
e("v_and_b32 v4, 7, %s" % v(vL))
e("v_lshl_add_u32 v3, v4, 4, v3")
sacc([(sRB, 20), (sWAVE, 18), (sG, 10), (sCB, 7)], 0)
e("v_add_u32 v3, s%d, v3" % sT0)
e("s_lshl_b32 s%d, s%d, 12" % (sT2, sWAVE))
for i in range(4):
    e("s_add_u32 s%d, s%d, 0x%x" % (sT3, sT2, LWQ + 1024 * i))
    e("s_mov_b32 m0, s%d" % sT3)
    nop(1)
    e("global_load_lds_dwordx4 v3, %s nt" % sp(P_WQ))
    e("v_add_u32 v3, 0x10000, v3")
e("v_and_b32 v3, 15, %s" % v(vL))
e("v_lshrrev_b32 v4, 4, %s" % v(vL))
e("v_lshrrev_b32 v5, 1, v3")
e("v_xor_b32 v6, v5, v4")
e("v_xor_b32 v7, 4, v6")
e("v_and_b32 v5, 1, v3")
e("v_lshl_add_u32 v6, v6, 1, v5")
e("v_lshl_add_u32 v7, v7, 1, v5")
e("v_lshlrev_b32 v6, 4, v6")
e("v_lshlrev_b32 v7, 4, v7")
e("v_lshl_add_u32 v6, v4, 8, v6")
e("v_lshl_add_u32 v7, v4, 8, v7")
sacc([(sG, 24), (sC, 15), (sWAVE, 13)], W0 * 256)
e("v_add_u32 v6, s%d, v6" % sT0)
e("v_add_u32 v7, s%d, v7" % sT0)
e("v_add_u32 v7, 0x400, v7")
e("s_lshl_b32 s%d, s%d, 13" % (sT2, sWAVE))
e("s_waitcnt vmcnt(4)")
for i in range(8):
    e("s_add_u32 s%d, s%d, 0x%x" % (sT3, sT2, LV + 1024 * i))
    e("s_mov_b32 m0, s%d" % sT3)
    nop(1)
    e("global_load_lds_dwordx4 %s, %s nt" % ("v6" if i % 2 == 0 else "v7", sp(P_V)))
    if i % 2 == 0:
        e("v_add_u32 v6, 0x800, v6")
    else:
        e("v_add_u32 v7, 0x800, v7")
sacc([(sG, 8)], XID_OFF)
e("v_and_b32 v9, 31, %s" % v(vL))
e("v_lshlrev_b32 v9, 3, v9")
e("v_add_u32 v9, s%d, v9" % sT0)
e("global_load_dwordx2 %s, v9, %s sc1" % (vr(T + 4, 2), sp(P_WS)))
e("s_waitcnt vmcnt(9) lgkmcnt(0)")
e("s_add_u32 s%d, s%d, 1" % (sTAG, sTAG))
e("s_barrier")
e("s_barrier")
e("s_waitcnt vmcnt(0)")
sacc([(sG, 19), (sC, 14), (sWAVE, 12)], 0)
e("v_add_u32 v6, s%d, %s" % (sT0, v(aL16)))
e("s_lshl_b32 s%d, s%d, 12" % (sT1, sWAVE))
for i in range(4):
    e("s_add_u32 s%d, s%d, 0x%x" % (sT3, sT1, LWO + 1024 * i))
    e("s_mov_b32 m0, s%d" % sT3)
    nop(1)
    e("global_load_lds_dwordx4 v6, %s nt" % sp(P_WO))
    e("v_add_u32 v6, 0x400, v6")
e("s_cmp_lg_u32 s%d, 3" % sWAVE)
e("s_cbranch_scc1 NOID2")
e("s_mov_b32 s%d, 0x100000" % sCNT)
lab("IDP")
e("v_cmp_ne_u32 vcc, s%d, %s" % (sTAG, v(T + 5)))
nop(1)
e("s_cmp_eq_u64 vcc, 0")
e("s_cbranch_scc1 IDD")
e("global_load_dwordx2 %s, v9, %s sc1" % (vr(T + 4, 2), sp(P_WS)))
e("s_waitcnt vmcnt(0)")
e("s_sub_u32 s%d, s%d, 1" % (sCNT, sCNT))
e("s_cbranch_scc0 IDP")
lab("IDD")
e("v_cmp_ne_u32 vcc, s%d, %s" % (sPIV, v(T + 4)))
nop(1)
e("s_cmp_eq_u64 vcc, 0")
e("s_cselect_b32 s%d, 1, 0" % sT3)
e("v_mov_b32 v7, s%d" % sT3)
e("v_mov_b32 v6, 0x%x" % LFL)
e("ds_write_b32 v6, v7")
e("s_waitcnt lgkmcnt(0)")
lab("NOID2")
e("s_barrier")
e("s_barrier")
e("s_waitcnt vmcnt(0)")
e("s_barrier")
e("v_and_b32 v8, 255, v0")
load_mixer_weights("v8")
lab("HLOOP")
e("s_barrier")
e("v_mov_b32 v6, 0x%x" % LHB)
e("s_barrier")
e("ds_read_b64 %s, v6" % vr(H0, 2))
e("s_waitcnt lgkmcnt(0)")
mixer(H0, 1, Ya)
sacc([(sWAVE, 2)], LMC + 16)
e("v_mov_b32 v6, s%d" % sT0)
mask_begin(1)
e("ds_write_b32 v6, %s" % v(Ya))
mask_end()
e("s_waitcnt lgkmcnt(0)")
e("s_barrier")
e("s_cmp_lg_u32 s%d, 0" % sLAY)
e("s_cbranch_scc1 END")
e("s_mov_b32 s%d, 1" % sLAY)
e("s_barrier")
e("s_barrier")
e("s_barrier")
e("s_branch HLOOP")
lab("END")
e("s_endpgm")

L.append('.section .rodata,"a"')
L.append(".p2align 6")
L.append(".amdhsa_kernel %s_kernel" % NAME)
L.append("  .amdhsa_next_free_vgpr 256")
L.append("  .amdhsa_next_free_sgpr 102")
L.append("  .amdhsa_accum_offset 256")
L.append("  .amdhsa_group_segment_fixed_size 0")
L.append("  .amdhsa_kernarg_size 104")
L.append("  .amdhsa_user_sgpr_count 2")
L.append("  .amdhsa_user_sgpr_kernarg_segment_ptr 1")
L.append("  .amdhsa_system_sgpr_workgroup_id_x 1")
L.append("  .amdhsa_float_denorm_mode_32 3")
L.append(".end_amdhsa_kernel")
open(OUT, "w").write("\n".join(L) + "\n")
print("wrote", OUT, "lines", len(L), "ts", ts_count[0])
```
